```python
import torch

def _softmax(x, axis=-1):
    return torch.softmax(x, dim=axis)

def _gelu(x):
    return torch.nn.functional.gelu(x, approximate='tanh')

def _silu(x):
    return torch.nn.functional.silu(x)

def _sigmoid(x):
    return torch.sigmoid(x)

def _layernorm(x, axis=-1, eps=1e-05):
    m = x.mean(dim=axis, keepdim=True)
    v = x.var(dim=axis, keepdim=True, unbiased=False)
    return (x - m) / torch.sqrt(v + eps)

def _scatter_add(tgt, idx, src, axis=0):
    return tgt.clone().index_add_(axis, idx, src)

def _segment_sum(src, seg, n):
    out = torch.zeros((n,) + src.shape[1:], dtype=src.dtype)
    return out.index_add_(0, seg, src)

def _pad(x, pw):
    flat = tuple((v for pair in reversed(pw) for v in pair))
    return torch.nn.functional.pad(x, flat)
kernel_name = 'parallel_sum__compressed_kv_cla__mixer_gmlp__prompt'

def setup_inputs():

    _w = lambda a: (lambda t: t.to(torch.bfloat16) if t.is_floating_point() else t)(torch.as_tensor(a))

    def _A_setup():
        B, H, Sq, Sk, D, M = (1, 32, 2048, 2048, 128, 512)
        Dc = 4 * D
        return {'x': _w((lambda *s: torch.randn(*s, dtype=torch.bfloat16) * 0.05)(B, Sq, M)), 'c_kv': _w((lambda *s: torch.randn(*s, dtype=torch.bfloat16) * 1.6)(B, Sk, Dc)), 'w_q': _w((lambda *s: torch.randn(*s, dtype=torch.bfloat16) * 1.6)(M, H, D) * M ** (-0.5)), 'w_uk': _w((lambda *s: torch.randn(*s, dtype=torch.bfloat16) * 1.6)(Dc, H, D) * Dc ** (-0.5)), 'w_uv': _w((lambda *s: torch.randn(*s, dtype=torch.bfloat16) * 1.6)(Dc, H, D) * Dc ** (-0.5)), 'w_o': _w((lambda *s: torch.randn(*s, dtype=torch.bfloat16) * 1.6)(H, D, M) * (H * D) ** (-0.5))}
    _A_in = _A_setup()

    def _B_setup():
        B, S, D, F = (1, 2048, 512, 1376)
        Fh = F // 2
        return {'x': _w((lambda *s: torch.randn(*s, dtype=torch.bfloat16) * 0.05)(B, S, D)), 'w_in': _w((lambda *s: torch.randn(*s, dtype=torch.bfloat16) * 0.4)(D, 2 * Fh)), 'w_sp': _w(0.01 * (lambda *s: torch.randn(*s, dtype=torch.bfloat16) * 0.4)(S, S)), 'b_sp': _w(1.0 + 0.01 * (lambda *s: torch.randn(*s, dtype=torch.bfloat16) * 0.05)(S)), 'w_out': _w((lambda *s: torch.randn(*s, dtype=torch.bfloat16) * 0.05)(Fh, D))}
    _B_in = _B_setup()
    return {'A_x': _A_in['x'], 'A_c_kv': _A_in['c_kv'], 'A_w_q': _A_in['w_q'], 'A_w_uk': _A_in['w_uk'], 'A_w_uv': _A_in['w_uv'], 'A_w_o': _A_in['w_o'], 'B_x': _B_in['x'], 'B_w_in': _B_in['w_in'], 'B_w_sp': _B_in['w_sp'], 'B_b_sp': _B_in['b_sp'], 'B_w_out': _B_in['w_out']}

def reference(A_x, A_c_kv, A_w_q, A_w_uk, A_w_uv, A_w_o, B_x, B_w_in, B_w_sp, B_b_sp, B_w_out):

    def _A_ref(x, c_kv, w_q, w_uk, w_uv, w_o):
        B, Sq, M = (x.shape[0], x.shape[1], x.shape[2])
        Sk = c_kv.shape[1]
        H, D = (w_q.shape[1], w_q.shape[2])
        q = torch.einsum('bqm,mhd->bhqd', x, w_q)
        k = torch.einsum('bkc,chd->bhkd', c_kv, w_uk)
        v = torch.einsum('bkc,chd->bhkd', c_kv, w_uv)
        scores = torch.einsum('bhqd,bhkd->bhqk', q, k) * D ** (-0.5)
        off = Sk - Sq
        qi = torch.arange(Sq)[:, None]
        kj = torch.arange(Sk)[None, :]
        cmask = kj <= qi + off
        scores = torch.where(cmask[None, None], scores, -1000000000.0)
        p = _softmax(scores, axis=-1)
        ctx = torch.einsum('bhqk,bhkd->bhqd', p, v)
        return torch.einsum('bhqd,hdm->bqm', ctx, w_o)

    def _B_ref(x, w_in, w_sp, b_sp, w_out):
        B, S, D = x.shape
        F = w_in.shape[-1]
        Fh = F // 2
        z = _gelu(torch.einsum('bsd,df->bsf', x, w_in))
        z1 = z[..., :Fh].clone()
        z2 = _layernorm(z[..., Fh:], axis=-1)
        g = torch.einsum('ts,bsf->btf', w_sp, z2) + b_sp[None, :, None]
        return torch.einsum('bsf,fd->bsd', z1 * g, w_out)
    x = A_x
    xn = _layernorm(x, axis=-1)
    return x + _A_ref(xn, A_c_kv, A_w_q, A_w_uk, A_w_uv, A_w_o) + _B_ref(xn, B_w_in, B_w_sp, B_b_sp, B_w_out)
```

```python
import re

_REG = re.compile(r"^(-?)(?:abs\()?([vas])(?:(\d+)|\[(\d+):(\d+)\])\)?$")

def regs_of(op):
    op = op.strip()
    if op == "vcc": return [("s", 106), ("s", 107)]
    if op == "exec": return [("s", 126), ("s", 127)]
    if op == "m0": return [("s", 124)]
    m = _REG.match(op)
    if not m: return []
    k = m.group(2)
    if m.group(3) is not None: return [(k, int(m.group(3)))]
    return [(k, i) for i in range(int(m.group(4)), int(m.group(5)) + 1)]

TRANS = ("v_exp_f32", "v_log_f32", "v_rcp_f32", "v_rsq_f32", "v_sqrt_f32", "v_sin_f32", "v_cos_f32")

class Ins:
    __slots__ = ("text", "mn", "cls", "wr", "rd", "srcc", "passes", "ws", "dpp", "wide_store")
    def __init__(self, text):
        self.text = text
        body = text.split(";")[0].strip()
        parts = body.split(None, 1)
        mn = parts[0]; self.mn = mn
        rest = parts[1] if len(parts) > 1 else ""
        ops = []
        depth = 0; cur = ""
        for ch in rest:
            if ch in "[(": depth += 1
            if ch in "])": depth -= 1
            if ch == "," and depth == 0: ops.append(cur.strip()); cur = ""
            else: cur += ch
        if cur.strip(): ops.append(cur.strip())
        mods = ""
        if ops:
            last = ops[-1].split(None, 1)
            if len(last) > 1: ops[-1] = last[0]; mods = last[1]
        self.wr = []; self.rd = []; self.srcc = []; self.passes = 0; self.ws = 1
        self.dpp = any(x in mods for x in ("quad_perm", "row_", "wave_"))
        self.wide_store = False
        R = lambda i: regs_of(ops[i]) if i < len(ops) else []
        if mn.startswith("v_mfma"):
            self.cls = "mfma"; self.passes = 8 if "32x32" in mn else 4
            self.wr = R(0); self.rd = R(1) + R(2) + R(3); self.srcc = R(3)
        elif mn.startswith("v_permlane"):
            self.cls = "permlane"; self.wr = R(0) + R(1); self.rd = R(0) + R(1)
        elif mn.startswith("v_readfirstlane") or mn.startswith("v_readlane"):
            self.cls = "readlane"; self.wr = R(0); self.rd = R(1) + R(2)
        elif mn.startswith("v_"):
            self.cls = "trans" if mn.replace("_e32", "").replace("_e64", "") in TRANS else "valu"
            self.wr = R(0); self.rd = sum((R(i) for i in range(1, len(ops))), [])
            if mn.startswith("v_fmac") or mn.startswith("v_pk_fmac") or mn.startswith("v_dot2c"): self.rd += R(0)
            if mn.startswith("v_add_co") or mn.startswith("v_sub_co") or mn.startswith("v_addc_co"):
                self.wr += R(1)
            if mn.startswith("v_cmpx"): self.wr += regs_of("exec")
        elif mn.startswith("ds_read") or mn.startswith("ds_bpermute") or mn.startswith("ds_swizzle"):
            self.cls = "ds"; self.wr = R(0); self.rd = sum((R(i) for i in range(1, len(ops))), [])
        elif mn.startswith("ds_"):
            self.cls = "ds"; self.rd = sum((R(i) for i in range(len(ops))), [])
        elif mn.startswith("buffer_load") or mn.startswith("global_load"):
            self.cls = "vmem"
            if " lds" in (" " + mods) or "_lds_" in mn:
                self.cls = "dma"; self.rd = sum((R(i) for i in range(len(ops))), []) + regs_of("m0")
            else:
                self.wr = R(0); self.rd = sum((R(i) for i in range(1, len(ops))), [])
        elif mn.startswith("buffer_") or mn.startswith("global_"):
            self.cls = "vmem"; self.rd = sum((R(i) for i in range(len(ops))), [])
            if "x4" in mn or "x3" in mn:
                self.wide_store = True
                self.srcc = R(0) if mn.startswith("buffer_") else R(1)
            if "atomic" in mn and "sc0" in mods: self.wr = R(0)
        elif mn == "s_nop":
            self.cls = "nop"; self.ws = int(ops[0], 0) + 1
        elif mn.startswith("s_"):
            self.cls = "salu"
            if mn.startswith(("s_cmp", "s_cbranch", "s_branch", "s_waitcnt", "s_barrier", "s_endpgm", "s_setprio", "s_sleep", "s_bitcmp")):
                self.rd = sum((R(i) for i in range(len(ops))), [])
            else:
                self.wr = R(0); self.rd = sum((R(i) for i in range(1, len(ops))), [])
                if "saveexec" in mn: self.wr += regs_of("exec")
        else:
            raise ValueError("unknown instruction " + text)

def need(prod, cons):
    n = 0
    pw = set(prod.wr)
    pv = {r for r in pw if r[0] in "va"}
    ps = {r for r in pw if r[0] == "s"}
    cr = set(cons.rd); cw = set(cons.wr)
    isvalu = lambda c: c in ("valu", "trans", "permlane", "readlane")
    if prod.cls == "mfma":
        d = {4: (6, 8), 8: (10, 12)}[prod.passes]
        if cons.cls == "mfma":
            ab = set(cons.rd) - set(cons.srcc) if set(cons.srcc) != set(cons.rd) else set()
            ab = set(cons.rd[:len(cons.rd) - len(cons.srcc)])
            if pv & ab: n = max(n, d[1])
            if pv & set(cons.srcc):
                if not (set(cons.srcc) == pv and cons.passes == prod.passes): n = max(n, d[0])
            elif pv & cw: n = max(n, d[1])
        elif pv & (cr | cw): n = max(n, d[1])
        if isvalu(cons.cls) and set(prod.srcc) & cw: n = max(n, {4: 3, 8: 7}[prod.passes])
    if isvalu(prod.cls):
        if cons.cls == "mfma" and pv & cr: n = max(n, 2)
        if cons.cls == "permlane" and pv & cr: n = max(n, 2)
        if cons.dpp and pv & cr: n = max(n, 2)
        if cons.cls == "readlane" and pv & cr: n = max(n, 1)
        if prod.cls == "trans" and cons.cls != "trans" and pv & cr: n = max(n, 1)
        if ps:
            if isvalu(cons.cls) and ps & cr: n = max(n, 4 if cons.cls == "readlane" else 2)
            if cons.cls in ("vmem", "dma") and ps & cr: n = max(n, 5)
            if (("s", 126) in ps):
                if cons.cls == "mfma" or cons.cls == "permlane" or cons.cls == "readlane": n = max(n, 4)
                if cons.dpp: n = max(n, 5)
    if prod.cls == "salu" and ("s", 124) in pw and cons.cls == "dma": n = max(n, 1)
    if prod.wide_store and set(prod.srcc) & cw: n = max(n, 2)
    return n

class Asm:
    def __init__(self, auto=True):
        self.lines = []
        self.nlabel = 0
        self.hist = []
        self.auto = auto
        self.nops = 0
    def __call__(self, s):
        ins = Ins(s)
        if self.auto:
            dist = 0; pad = 0
            for p in reversed(self.hist):
                if dist >= 20: break
                pad = max(pad, need(p, ins) - dist)
                dist += p.ws
            if pad > 0:
                self.nops += 1
                while pad > 0:
                    k = min(pad, 16)
                    t = f"s_nop {k-1}"
                    self.lines.append("    " + t); self.hist.append(Ins(t)); pad -= k
        self.hist.append(ins)
        if len(self.hist) > 24: self.hist = self.hist[-24:]
        self.lines.append("    " + s)
    def raw(self, s):
        self.lines.append(s)
    def label(self, name):
        self.lines.append(name + ":")
    def settle(self, n=12):
        while n > 0:
            k = min(n, 16); self(f"s_nop {k-1}"); n -= k
    def newlabel(self, base="L"):
        self.nlabel += 1
        return f"{base}_{self.nlabel}"
    def comment(self, s):
        self.lines.append("    ; " + s)
    def text(self):
        return "\n".join(self.lines) + "\n"

def vr(lo, n=1):
    return f"v{lo}" if n == 1 else f"v[{lo}:{lo+n-1}]"
def ar(lo, n=1):
    return f"a{lo}" if n == 1 else f"a[{lo}:{lo+n-1}]"
def sr(lo, n=1):
    return f"s{lo}" if n == 1 else f"s[{lo}:{lo+n-1}]"

def kernel_header(a, name):
    a.raw(f".globl {name}")
    a.raw(".p2align 8")
    a.raw(f".type {name},@function")
    a.label(name)
    a.hist = []

def kernel_desc(name, vgpr, sgpr=102, accum=None, karg=112):
    if accum is None:
        accum = min(256, (vgpr + 3) // 4 * 4)
    return f""".amdhsa_kernel {name}
  .amdhsa_next_free_vgpr {vgpr}
  .amdhsa_next_free_sgpr {sgpr}
  .amdhsa_accum_offset {accum}
  .amdhsa_group_segment_fixed_size 0
  .amdhsa_kernarg_size {karg}
  .amdhsa_user_sgpr_count 2
  .amdhsa_user_sgpr_kernarg_segment_ptr 1
  .amdhsa_system_sgpr_workgroup_id_x 1
.end_amdhsa_kernel
"""
```

```python
import sys, math, struct
from asmlib import *

NAME = "parallel_sum__compressed_kv_cla__mixer_gmlp__prompt"
XNF = 0x0000000
KF  = 0x0200000
VF  = 0x1200000
AF  = 0x2200000
AF_KS = 150
Z1F = 0x3600000
Z2F = 0x3A00000
Z2N = 0x3E00000
TSO = 0x8000000
WS_BYTES = 0x10000000
KA = dict(x=0, ckv=8, wq=16, wuk=24, wuv=32, wo=40, bx=48, win=56, wsp=64, bsp=72, wout=80, out=88, dbg=96, ws=104)
STAMP = False
OPT = {}
SC = ""

def stamp(a, i):
    if STAMP: a(f"s_memrealtime s[{64 + 2*i}:{65 + 2*i}]")
def stampc(a, i):
    if STAMP: a(f"s_memtime s[{64 + 2*i}:{65 + 2*i}]")
def stamp_flush(a, kidx, n):
    if not STAMP: return
    a("s_waitcnt lgkmcnt(0)")
    a("s_lshl_b32 s100, s2, 3")
    a("s_add_u32 s100, s100, s3")
    a("s_lshl_b32 s100, s100, 6")
    a(f"s_add_u32 s100, s100, {TSO + kidx * 256 * 8 * 64}")
    a("v_mov_b32 v3, 0")
    for i in range(n):
        a(f"v_mov_b32 v2, s{64 + 2*i}")
        a(f"buffer_store_dword v2, v3, s[4:7], s100 offen offset:{4*i}")

def f32(x):
    return "0x%08x" % struct.unpack("<I", struct.pack("<f", x))[0]

def srd(a, d, lo, hi, nbytes):
    a(f"s_mov_b32 s{d}, s{lo}")
    a(f"s_and_b32 s{d+1}, s{hi}, 0xffff")
    a(f"s_mov_b32 s{d+2}, {nbytes:#x}")
    a(f"s_mov_b32 s{d+3}, 0x00020000")

def wave_allreduce(a, v, t, op="v_add_f32"):
    for mod in ("quad_perm:[1,0,3,2]", "quad_perm:[2,3,0,1]", "row_half_mirror", "row_mirror"):
        a(f"{op} v{v}, v{v}, v{v} {mod} row_mask:0xf bank_mask:0xf")
    a(f"v_mov_b32 v{t}, v{v}")
    a(f"v_permlane16_swap_b32 v{v}, v{t}")
    a(f"{op} v{v}, v{v}, v{t}")
    a(f"v_mov_b32 v{t}, v{v}")
    a(f"v_permlane32_swap_b32 v{v}, v{t}")
    a(f"{op} v{v}, v{v}, v{t}")

def pi_of(a, dst, src, tmp):
    a(f"v_lshrrev_b32 v{tmp}, 1, v{src}")
    a(f"v_mul_u32_u24 v{tmp}, 3, v{tmp}")
    a(f"v_lshlrev_b32 v{dst}, 1, v{src}")
    a(f"v_xor_b32 v{dst}, v{dst}, v{tmp}")
    a(f"v_and_b32 v{dst}, 3, v{dst}")

class VM:
    def __init__(self): self.q = []
    def issue(self, tag): self.q.append(tag)
    def count_after(self, tag):
        idx = max(i for i, t in enumerate(self.q) if t == tag)
        return len(self.q) - 1 - idx

def entry(a, name):
    kernel_header(a, name)
    a("s_cmp_ge_u32 s2, 256")
    a(f"s_cbranch_scc1 {name}_end")
    stamp(a, 0)
    a("s_load_dwordx2 s[8:9], s[0:1], 104")
    a("v_and_b32 v1, 63, v0")
    a("v_lshrrev_b32 v2, 6, v0")
    a("v_readfirstlane_b32 s3, v2")
    a("s_waitcnt lgkmcnt(0)")
    srd(a, 4, 8, 9, WS_BYTES)

def leave(a, name, kidx, nst):
    if STAMP:
        a("s_waitcnt vmcnt(0)")
        stamp(a, nst)
        stamp_flush(a, kidx, nst + 1)
    a.label(f"{name}_end")
    a("s_endpgm")

def phase_kv(a, name):
    a("s_load_dwordx4 s[8:11], s[0:1], 0")
    a("s_load_dwordx4 s[12:15], s[0:1], 24")
    a("s_and_b32 s33, s2, 7")
    a("s_lshr_b32 s34, s2, 3")
    a("s_and_b32 s35, s34, 7")
    a("s_lshr_b32 s36, s34, 3")
    a("s_lshr_b32 s37, s36, 1")
    a("s_and_b32 s36, s36, 1")
    a("s_lshl_b32 s38, s33, 1")
    a("s_add_u32 s38, s38, s36")
    a("v_lshrrev_b32 v4, 2, v1")
    a("v_lshlrev_b32 v4, 10, v4")
    a("v_lshrrev_b32 v6, 4, v1")
    pi_of(a, 7, 6, 8)
    a("v_and_b32 v5, 3, v1")
    a("v_xor_b32 v5, v5, v7")
    a("v_lshl_add_u32 v10, v5, 4, v4")
    a("v_lshrrev_b32 v4, 5, v1")
    a("v_and_b32 v5, 31, v1")
    a("v_lshrrev_b32 v6, 1, v5")
    a("v_and_b32 v5, 1, v5")
    a("s_and_b32 s41, s3, 2")
    a("s_lshl_b32 s41, s41, 1")
    a("v_or_b32 v7, s41, v4")
    a("v_xor_b32 v6, v6, v7")
    a("v_lshlrev_b32 v6, 5, v6")
    a("v_lshl_add_u32 v6, v5, 4, v6")
    a("v_lshl_add_u32 v12, v4, 13, v6")
    a("v_xor_b32 v13, 64, v12")
    a("s_lshl_b32 s42, s35, 8")
    a("s_lshl_b32 s43, s3, 5")
    a("s_add_u32 s42, s42, s43")
    a("s_lshl_b32 s42, s42, 10")
    a("s_lshl_b32 s43, s3, 15")
    a("s_lshl_b32 s44, s38, 9")
    a("s_add_u32 s43, s43, s44")
    a("s_lshl_b32 s44, s3, 11")
    a("s_lshl_b32 s39, s2, 3")
    a("s_add_u32 s39, s39, s3")
    a("s_lshl_b32 s40, s39, 10")
    a("v_lshlrev_b32 v3, 4, v1")
    a("s_waitcnt lgkmcnt(0)")
    srd(a, 16, 10, 11, 2048 * 1024)
    a("s_cmp_eq_u32 s37, 0")
    a("s_cselect_b32 s12, s12, s14")
    a("s_cselect_b32 s13, s13, s15")
    srd(a, 20, 12, 13, 512 * 8192)
    srd(a, 28, 8, 9, 2048 * 1024)
    def dma_list(st, rel):
        out = []
        for m in range(2):
            out.append([f"s_add_u32 m0, s44, {st * 32768 + m * 1024}",
                        f"s_add_u32 s45, s42, {m * 16384 + rel * 64}",
                        f"buffer_load_dwordx4 v10, s[16:19], s45 offen lds"])
            out.append([f"s_add_u32 m0, s44, {st * 32768 + 16384 + m * 1024}",
                        f"s_add_u32 s45, s43, {rel * 32 * 8192 + m * 2 * 8192}",
                        f"buffer_load_dwordx4 v{12 + m}, s[20:23], s45 offen lds"])
        return out
    for g in dma_list(0, 0):
        for s in g: a(s)
    a("buffer_load_dwordx4 v[32:35], v3, s[28:31], s40 offen")
    for g in dma_list(1, 1):
        for s in g: a(s)
    a("v_and_b32 v4, 15, v1")
    a("v_lshrrev_b32 v5, 4, v1")
    a("v_lshrrev_b32 v6, 2, v4")
    pi_of(a, 7, 6, 8)
    a("v_xor_b32 v6, v7, v5")
    a("v_lshlrev_b32 v6, 4, v6")
    a("v_lshl_add_u32 v6, v4, 6, v6")
    a("s_and_b32 s46, s3, 1")
    a("s_lshr_b32 s47, s3, 1")
    a("s_lshl_b32 s48, s46, 13")
    a("v_add_u32 v14, s48, v6")
    a("v_add_u32 v15, 0x10000, v14")
    a("v_lshrrev_b32 v6, 2, v4")
    a("v_and_b32 v7, 1, v5")
    a("v_lshl_or_b32 v7, v7, 2, v6")
    a("v_lshl_add_u32 v6, v5, 3, v6")
    a("v_lshlrev_b32 v6, 9, v6")
    a("v_and_b32 v8, 3, v1")
    a("v_lshl_add_u32 v6, v8, 3, v6")
    a("v_add_u32 v6, 16384, v6")
    a("s_lshl_b32 s48, s47, 2")
    for nt in range(4):
        a(f"s_add_u32 s49, s48, {nt}")
        a(f"v_xor_b32 v8, s49, v7")
        a(f"v_lshl_add_u32 v{18 + nt}, v8, 5, v6")
        a(f"v_add_u32 v{22 + nt}, 0x10000, v{18 + nt}")
    for r in range(128, 256): a(f"v_mov_b32 v{r}, 0")
    for c in range(2, 4):
        for g in dma_list(c, c):
            for s in g: a(s)
    a("s_waitcnt vmcnt(12)")
    for i in range(4):
        a(f"v_lshlrev_b32 v{40 + 2*i}, 16, v{32 + i}")
        a(f"v_and_b32 v{41 + 2*i}, 0xffff0000, v{32 + i}")
    a("v_add_f32 v36, v40, v41")
    for i in range(2, 8): a(f"v_add_f32 v36, v36, v{40 + i}")
    wave_allreduce(a, 36, 37)
    a(f"v_mul_f32 v36, {f32(1.0/512)}, v36")
    for i in range(8): a(f"v_sub_f32 v{40 + i}, v{40 + i}, v36")
    a("v_mul_f32 v38, v40, v40")
    for i in range(1, 8): a(f"v_fmac_f32 v38, v{40 + i}, v{40 + i}")
    wave_allreduce(a, 38, 37)
    a(f"v_mov_b32 v37, {f32(1e-5)}")
    a(f"v_fmac_f32 v37, {f32(1.0/512)}, v38")
    a("v_rsq_f32 v37, v37")
    for i in range(8): a(f"v_mul_f32 v{40 + i}, v{40 + i}, v37")
    for i in range(4): a(f"v_cvt_pk_bf16_f32 v{120 + i}, v{40 + 2*i}, v{41 + 2*i}")
    a("v_lshrrev_b32 v4, 2, v1")
    a("v_lshlrev_b32 v4, 10, v4")
    a("v_and_b32 v5, 3, v1")
    a("v_lshl_add_u32 v4, v5, 8, v4")
    a("s_lshr_b32 s48, s39, 4")
    a("s_lshl_b32 s48, s48, 14")
    a("s_and_b32 s49, s39, 15")
    a("s_lshl_b32 s49, s49, 4")
    a("s_add_u32 s48, s48, s49")
    if XNF: a(f"s_add_u32 s48, s48, {XNF}")
    a(f"buffer_store_dwordx4 v[120:123], v4, s[4:7], s48 offen{SC}")
    F2, ACC = (32, 80), 128
    def reads(st, F):
        hi = st >> 1; off = (st & 1) * 32768
        xs = [f"ds_read_b128 v[{F + 4*rt}:{F + 4*rt + 3}], v{14 + hi} offset:{off + rt * 1024}" for rt in range(8)]
        ws = []
        for nt in range(4):
            b = F + 32 + 4 * nt
            ws.append(f"ds_read_b64_tr_b16 v[{b}:{b+1}], v{18 + 4*hi + nt} offset:{off}")
            ws.append(f"ds_read_b64_tr_b16 v[{b+2}:{b+3}], v{18 + 4*hi + nt} offset:{off + 2048}")
        return [xs[0]] + ws[0:8] + xs[1:]
    def mfmas(F, isV, fill):
        j = 0
        for rt in range(8):
            for nt in range(4):
                acc = ACC + 16 * rt + 4 * nt
                x = f"v[{F + 4*rt}:{F + 4*rt + 3}]"; w = f"v[{F + 32 + 4*nt}:{F + 32 + 4*nt + 3}]"
                A, B = (x, w) if isV else (w, x)
                a(f"v_mfma_f32_16x16x32_bf16 v[{acc}:{acc+3}], {A}, {B}, v[{acc}:{acc+3}]")
                for s in fill.get(j, []): a(s)
                j += 1
    a("s_barrier")
    stamp(a, 1)
    for s in reads(0, F2[0]): a(s)
    a("s_mov_b32 s50, 0")
    a("s_cmp_eq_u32 s37, 0")
    a(f"s_cbranch_scc0 {name}_kv_v")
    for isV in (0, 1):
        if isV: a.label(f"{name}_kv_v")
        for tail in (0, 1):
            if not tail: a.label(f"{name}_kv_loop{isV}")
            for s in range(4):
                vm = 8 if not tail else max(0, 8 - 4 * s)
                a(f"s_waitcnt vmcnt({vm}) lgkmcnt(0)")
                fill = {}
                if not (tail and s == 3):
                    a("s_barrier")
                    rd = reads((s + 1) & 3, F2[(s + 1) & 1])
                    fill = {j: [x] for j, x in enumerate(rd)}
                    if not tail:
                        for i, g in enumerate(dma_list(s, s + 4)): fill[16 + 4 * i] = g
                mfmas(F2[s & 1], isV, fill)
            if not tail:
                a("s_add_u32 s42, s42, 256")
                a(f"s_add_u32 s43, s43, {128 * 8192}")
                a("s_add_u32 s50, s50, 1")
                a("s_cmp_lt_u32 s50, 3")
                a(f"s_cbranch_scc1 {name}_kv_loop{isV}")
        stamp(a, 2)
        a("s_lshl_b32 s48, s38, 1")
        a("s_lshr_b32 s49, s47, 1")
        a("s_add_u32 s48, s48, s49")
        a("s_lshl_b32 s48, s48, 6")
        a("s_lshl_b32 s49, s35, 3")
        a("s_add_u32 s48, s48, s49")
        a("s_lshl_b32 s49, s46, 2")
        a("s_add_u32 s48, s48, s49")
        a("s_lshl_b32 s48, s48, 13")
        a("s_and_b32 s49, s47, 1")
        a("v_and_b32 v4, 15, v1")
        a("v_lshrrev_b32 v5, 4, v1")
        a("v_and_b32 v6, 1, v5")
        a("v_lshrrev_b32 v7, 1, v5")
        if not isV:
            a("s_lshl_b32 s49, s49, 12")
            a("s_add_u32 s48, s48, s49")
            a(f"s_add_u32 s48, s48, {KF}")
            a("v_lshl_add_u32 v4, v7, 5, v4")
            a("v_lshlrev_b32 v4, 4, v4")
            a("v_lshl_add_u32 v4, v6, 10, v4")
            k = 0
            for rt in range(8):
                for p in range(2):
                    t = 32 + 4 * (k % 8); k += 1
                    for i, nt in enumerate((2 * p, 2 * p + 1)):
                        acc = ACC + 16 * rt + 4 * nt
                        a(f"v_cvt_pk_bf16_f32 v{t + 2*i}, v{acc}, v{acc+1}")
                        a(f"v_cvt_pk_bf16_f32 v{t + 2*i + 1}, v{acc+2}, v{acc+3}")
                    a(f"s_add_u32 s49, s48, {(rt >> 1) * 8192}")
                    a(f"buffer_store_dwordx4 v[{t}:{t+3}], v4, s[4:7], s49 offen offset:{(rt & 1) * 256 + p * 2048}{SC}")
            a(f"s_branch {name}_kv_done")
        else:
            a("s_lshl_b32 s49, s49, 11")
            a("s_add_u32 s48, s48, s49")
            a(f"s_add_u32 s48, s48, {VF}")
            a("v_lshl_add_u32 v4, v6, 5, v4")
            a("v_lshlrev_b32 v4, 4, v4")
            a("v_lshl_add_u32 v4, v7, 12, v4")
            k = 0
            for m in range(4):
                for nt in range(4):
                    t = 32 + 4 * (k % 8); k += 1
                    for i, rt in enumerate((2 * m, 2 * m + 1)):
                        acc = ACC + 16 * rt + 4 * nt
                        a(f"v_cvt_pk_bf16_f32 v{t + 2*i}, v{acc}, v{acc+1}")
                        a(f"v_cvt_pk_bf16_f32 v{t + 2*i + 1}, v{acc+2}, v{acc+3}")
                    a(f"s_add_u32 s49, s48, {m * 8192}")
                    a(f"buffer_store_dwordx4 v[{t}:{t+3}], v4, s[4:7], s49 offen offset:{(nt & 1) * 256 + (nt >> 1) * 1024}{SC}")
    a.label(f"{name}_kv_done")
    a.settle(2)
    stamp(a, 3)

from gen_attn import phase_qz, phase_attn
from gen_tail import phase_lnz, phase_s, phase_o

def k1(a):
    n = "k1_kernel"; entry(a, n); phase_kv(a, n); leave(a, n, 0, 4)
    return n, 256, 512, 131072, 256
def k2(a):
    n = "k2_kernel"; entry(a, n); phase_qz(a, n); phase_attn(a, n); leave(a, n, 1, 5)
    return n, 256, 512, 163840, 256
def k3(a):
    n = "k3_kernel"; entry(a, n); phase_lnz(a, n); leave(a, n, 2, 1)
    return n, 256, 512, 0, 256
def k4(a):
    n = "k4_kernel"; entry(a, n); phase_s(a, n); leave(a, n, 3, 4)
    return n, 256, 512, 163840, 256
def k5(a):
    n = "k5_kernel"; entry(a, n); phase_o(a, n); leave(a, n, 4, 4)
    return n, 256, 512, 163840, 256

def build(kernels):
    infos = []
    body = Asm()
    for g in kernels:
        infos.append(g(body))
    hdr = open("cdna_kernels/" + NAME + ".s.ref").read().split("\n")
    top = [l for l in hdr if l.startswith(";") and "@launch" not in l and "Override launch" not in l and "grid=ceil" not in l]
    out = "\n".join(top) + "\n"
    for name, grid, block, lds, vg in infos:
        out += f"; @launch kernel={name} grid=({grid},1,1) block=({block},1,1) lds={lds}\n"
    out += '.amdgcn_target "amdgcn-amd-amdhsa--gfx950"\n.text\n'
    out += body.text()
    out += '.section .rodata,"a"\n'
    for name, grid, block, lds, vg in infos:
        out += ".p2align 6\n" + kernel_desc(name, vg)
    return out

def main():
    import gen as G
    if "--stamp" in sys.argv:
        G.STAMP = True; sys.argv.remove("--stamp")
    for x in list(sys.argv):
        if x.startswith("-D"):
            k, _, v = x[2:].partition("="); G.OPT[k] = int(v or 1); sys.argv.remove(x)
    ks = [G.k1, G.k2, G.k3, G.k4, G.k5][:G.OPT.get("nk", 5)]
    open(sys.argv[1] if len(sys.argv) > 1 else "k.s", "w").write(G.build(ks))

if __name__ == "__main__":
    main()
```

```python
import math
from asmlib import *
import gen as G

sH, sI, sTILE, sR0, sZT, sN0, sNT, sU, sUC, sNI = 33, 34, 35, 36, 38, 39, 40, 41, 42, 43
sKSRC, sVSRC, sTHR = 44, 45, 46
RING = 65536; STG = 24576
QACC, ZACC, XF, WF = 192, 168, 24, (56, 100)
QF = 112

def setup_ids(a):
    a("s_and_b32 s8, s2, 7")
    a("s_lshr_b32 s9, s2, 3")
    a("s_and_b32 s10, s9, 3")
    a("s_lshl_b32 s8, s8, 2")
    a(f"s_add_u32 s{sH}, s8, s10")
    a(f"s_lshr_b32 s{sI}, s9, 2")
    a(f"s_sub_u32 s8, 15, s{sI}")
    a("s_cmp_ge_u32 s3, 4")
    a(f"s_cselect_b32 s{sTILE}, s{sI}, s8")
    a("s_and_b32 s9, s3, 3")
    a(f"s_lshl_b32 s8, s{sTILE}, 2")
    a(f"s_add_u32 s{sU}, s8, s9")
    a(f"s_lshl_b32 s{sR0}, s{sU}, 1")
    a(f"s_lshl_b32 s8, s{sI}, 1")
    a(f"s_sub_u32 s{sNT}, 32, s8")
    a(f"s_mul_i32 s{sN0}, s{sH}, 3")
    a(f"s_sub_u32 s8, s{sN0}, 2")
    a(f"s_cmp_ge_u32 s{sH}, 15")
    a(f"s_cselect_b32 s{sZT}, 1, 0")
    a(f"s_cselect_b32 s{sN0}, s8, s{sN0}")
    a(f"s_min_u32 s{sN0}, s{sN0}, 86")

def phase_qz(a, name):
    SC = G.SC
    vm = G.VM()
    a("s_load_dwordx2 s[12:13], s[0:1], 16")
    a("s_load_dwordx2 s[14:15], s[0:1], 56")
    setup_ids(a)
    a("v_lshrrev_b32 v4, 4, v1")
    a("v_and_b32 v5, 15, v1")
    a("v_lshrrev_b32 v6, 1, v5")
    a("v_and_b32 v5, 1, v5")
    a("s_and_b32 s8, s3, 1")
    a("s_lshl_b32 s9, s8, 2")
    a("v_or_b32 v7, s9, v4")
    a("v_xor_b32 v6, v6, v7")
    a("v_lshlrev_b32 v6, 5, v6")
    a("v_lshl_add_u32 v6, v5, 4, v6")
    a("v_lshl_add_u32 v10, v4, 13, v6")
    a("v_lshrrev_b32 v4, 3, v1")
    a("v_and_b32 v5, 7, v1")
    a("v_lshrrev_b32 v6, 1, v5")
    a("v_and_b32 v5, 1, v5")
    a("v_bfe_u32 v7, v1, 4, 1")
    a("s_lshl_b32 s9, s8, 1")
    a("v_or_b32 v7, s9, v7")
    a("v_xor_b32 v6, v6, v7")
    a("v_lshlrev_b32 v6, 5, v6")
    a("v_lshl_add_u32 v6, v5, 4, v6")
    a("v_mul_u32_u24 v4, 2752, v4")
    a("v_add_u32 v11, v4, v6")
    a("v_lshlrev_b32 v2, 4, v1")
    a("s_lshl_b32 s47, s3, 16")
    a(f"s_lshl_b32 s8, s{sH}, 8")
    a("s_add_u32 s47, s47, s8")
    a(f"s_mul_i32 s48, s3, {8 * 2752}")
    a(f"s_lshl_b32 s8, s{sN0}, 5")
    a("s_add_u32 s48, s48, s8")
    a("s_lshl_b32 s49, s3, 11")
    a("s_lshl_b32 s50, s3, 10")
    a(f"s_lshl_b32 s51, s{sR0}, 14")
    if G.XNF: a(f"s_add_u32 s51, s51, {G.XNF}")
    a("s_waitcnt lgkmcnt(0)")
    G.srd(a, 16, 12, 13, 512 * 8192)
    G.srd(a, 20, 14, 15, 512 * 2752)
    def dma_list(st):
        base = RING + (st & 3) * STG
        out = []
        for m in range(2):
            out.append([f"s_add_u32 m0, s49, {base + m * 1024}",
                        f"s_add_u32 s52, s47, {(st * 64 + 4 * m) * 8192}",
                        f"buffer_load_dwordx4 v10, s[16:19], s52 offen lds"])
        out.append([f"s_add_u32 m0, s50, {base + 16384}",
                    f"s_add_u32 s52, s48, {st * 64 * 2752}",
                    f"buffer_load_dwordx4 v11, s[20:23], s52 offen lds"])
        return out
    def emit_dma(st):
        for g in dma_list(st):
            for s in g: a(s)
            vm.issue(("w", st))
    def xload(ks):
        out = []
        for T in range(2):
            r = XF + 8 * (ks & 3) + 4 * T
            out.append([f"s_add_u32 s53, s51, {T * 16384 + (ks >> 2) * 4096}",
                        f"buffer_load_dwordx4 v[{r}:{r+3}], v2, s[4:7], s53 offen offset:{(ks & 3) * 1024}{SC}"])
        return out
    def emit_x(ks):
        for g in xload(ks):
            for s in g: a(s)
            vm.issue(("x", ks))
    emit_dma(0); emit_x(0); emit_x(1); emit_dma(1); emit_x(2); emit_x(3)
    a("v_and_b32 v4, 15, v1")
    a("v_lshrrev_b32 v5, 4, v1")
    a("v_lshrrev_b32 v6, 2, v4")
    a("v_and_b32 v7, 1, v5")
    a("v_lshl_or_b32 v8, v7, 2, v6")
    a("v_lshl_add_u32 v9, v5, 3, v6")
    a("v_and_b32 v4, 3, v1")
    a("v_lshlrev_b32 v4, 3, v4")
    a("v_lshl_add_u32 v3, v9, 8, v4")
    a(f"v_add_u32 v3, {RING}, v3")
    for dt in range(8):
        a(f"v_xor_b32 v23, {dt}, v8")
        a(f"v_lshl_add_u32 v{12 + dt}, v23, 5, v3")
    a("v_lshrrev_b32 v6, 1, v6")
    a("v_lshl_or_b32 v8, v7, 1, v6")
    a("v_lshl_add_u32 v3, v9, 7, v4")
    a(f"v_add_u32 v3, {RING + 16384}, v3")
    for ft in range(3):
        a(f"v_xor_b32 v23, {ft}, v8")
        a(f"v_lshl_add_u32 v{20 + ft}, v23, 5, v3")
    for r in range(ZACC, 256): a(f"v_mov_b32 v{r}, 0")
    emit_dma(2); emit_dma(3)
    a(f"s_lshl_b32 s8, s{sH}, 19")
    a(f"s_add_u32 s{sKSRC}, s8, {G.KF}")
    a(f"s_add_u32 s{sVSRC}, s8, {G.VF - 8192}")
    def kvpre():
        out = []
        for src, tile, lds in ((sKSRC, 0, 0), (sKSRC, 1, 16384), (sVSRC, 0, 65536), (sKSRC, 2, 32768), (sVSRC, 1, 65536 + 16384)):
            out.append([f"s_add_u32 m0, s49, {lds}",
                        f"s_add_u32 s52, s{src}, s49",
                        f"s_add_u32 s52, s52, {tile * 16384}",
                        f"buffer_load_dwordx4 v2, s[4:7], s52 offen lds{SC}",
                        f"buffer_load_dwordx4 v2, s[4:7], s52 offen offset:1024 lds{SC}"])
        return out
    def reads(ks, F):
        e = ks & 1
        out = []
        for dt in range(8):
            b = F + 4 * dt
            out.append(f"ds_read_b64_tr_b16 v[{b}:{b+1}], v{12 + dt} offset:{e * 8192}")
            out.append(f"ds_read_b64_tr_b16 v[{b+2}:{b+3}], v{12 + dt} offset:{e * 8192 + 1024}")
        for ft in range(3):
            b = F + 32 + 4 * ft
            out.append(f"ds_read_b64_tr_b16 v[{b}:{b+1}], v{20 + ft} offset:{e * 4096}")
            out.append(f"ds_read_b64_tr_b16 v[{b+2}:{b+3}], v{20 + ft} offset:{e * 4096 + 512}")
        return out
    def advance(st_next):
        d = STG if (st_next & 3) else -3 * STG
        for r in range(12, 23):
            if d > 0: a(f"v_add_u32 v{r}, {d}, v{r}")
            else: a(f"v_subrev_u32 v{r}, {-d}, v{r}")
    a(f"s_waitcnt vmcnt({vm.count_after(('w', 0))})")
    a("s_barrier")
    G.stamp(a, 1)
    for s in reads(0, WF[0]): a(s)
    pre = kvpre()
    for ks in range(16):
        st = ks >> 1
        F = WF[ks & 1]
        need = [("x", ks)]
        if ks & 1 and ks < 15: need.append(("w", st + 1))
        a(f"s_waitcnt vmcnt({min(vm.count_after(t) for t in need)}) lgkmcnt(0)")
        fill = {}
        if ks < 15:
            if ks & 1:
                a("s_barrier")
                advance(st + 1)
            rd = reads(ks + 1, WF[(ks + 1) & 1])
            for j, x in enumerate(rd): fill.setdefault(j * 16 // 22, []).append(x)
        late = []
        if ks & 1 and st + 4 < 8:
            late += [(g, ("w", st + 4), 1) for g in dma_list(st + 4)]
        if ks >= 11:
            late += [(pre[ks - 11], ("kv",), 2)]
        j = 0
        for dt in range(8):
            for T in range(2):
                acc = QACC + 8 * dt + 4 * T
                x = XF + 8 * (ks & 3) + 4 * T
                a(f"v_mfma_f32_16x16x32_bf16 v[{acc}:{acc+3}], v[{F + 4*dt}:{F + 4*dt + 3}], v[{x}:{x+3}], v[{acc}:{acc+3}]")
                for s in fill.get(j, []): a(s)
                j += 1
        for g, tag, n in late:
            for s in g: a(s)
            for _ in range(n): vm.issue(tag)
        l2 = a.newlabel(f"{name}_z2"); l3 = a.newlabel(f"{name}_zd")
        a(f"s_cmp_eq_u32 s{sZT}, 0")
        a(f"s_cbranch_scc0 {l2}")
        for zt in range(2):
            if zt: a.label(l2)
            for ft in range(3):
                for T in range(2):
                    acc = ZACC + 8 * ft + 4 * T
                    x = f"v[{XF + 8 * (ks & 3) + 4 * T}:{XF + 8 * (ks & 3) + 4 * T + 3}]"
                    w = f"v[{F + 32 + 4*ft}:{F + 32 + 4*ft + 3}]"
                    A, B = (x, w) if zt else (w, x)
                    a(f"v_mfma_f32_16x16x32_bf16 v[{acc}:{acc+3}], {A}, {B}, v[{acc}:{acc+3}]")
            if not zt: a(f"s_branch {l3}")
        a.label(l3)
        if ks + 4 < 16: emit_x(ks + 4)
    G.stamp(a, 2)
    a.settle(8)
    c0 = -2.0 * math.sqrt(2.0 / math.pi) * math.log2(math.e); c1 = c0 * 0.044715
    a(f"s_mov_b32 s8, {G.f32(c0)}")
    a(f"s_mov_b32 s9, {G.f32(c1)}")
    a("v_mov_b32 v3, s8")
    for grp in range(3):
        regs = list(range(ZACC + 8 * grp, ZACC + 8 * grp + 8))
        T0 = 56
        for k, r in enumerate(regs): a(f"v_mul_f32 v{T0 + k}, v{r}, v{r}")
        for k, r in enumerate(regs): a(f"v_fma_f32 v{T0 + k}, v{T0 + k}, s9, v3")
        for k, r in enumerate(regs): a(f"v_mul_f32 v{T0 + k}, v{T0 + k}, v{r}")
        for k, r in enumerate(regs): a(f"v_exp_f32 v{T0 + k}, v{T0 + k}")
        for k, r in enumerate(regs): a(f"v_add_f32 v{T0 + k}, 1.0, v{T0 + k}")
        for k, r in enumerate(regs): a(f"v_rcp_f32 v{T0 + k}, v{T0 + k}")
        for k, r in enumerate(regs): a(f"v_mul_f32 v{r}, v{T0 + k}, v{r}")
        for T in range(2):
            r = ZACC + 8 * grp + 4 * T
            a(f"v_cvt_pk_bf16_f32 v{64 + 4*grp + 2*T}, v{r}, v{r+1}")
            a(f"v_cvt_pk_bf16_f32 v{65 + 4*grp + 2*T}, v{r+2}, v{r+3}")
    a("v_and_b32 v4, 15, v1")
    a("v_lshrrev_b32 v5, 5, v1")
    a("v_lshl_add_u32 v4, v5, 4, v4")
    a("v_lshlrev_b32 v4, 4, v4")
    a("v_bfe_u32 v5, v1, 4, 1")
    a("v_lshl_add_u32 v4, v5, 3, v4")
    a("s_movk_i32 s11, 512")
    a(f"s_cmp_eq_u32 s{sZT}, 0")
    a("s_cselect_b64 vcc, -1, 0")
    a("v_cndmask_b32 v4, v4, v2, vcc")
    a("s_cselect_b32 s10, 43, 86")
    a(f"s_cselect_b32 s11, {22 * 1024}, s11")
    for ft in range(3):
        a(f"s_add_u32 s12, s{sN0}, {ft}")
        a(f"s_mul_i32 s13, s{sR0}, 22")
        a("s_lshr_b32 s14, s12, 1")
        a("s_add_u32 s13, s13, s14")
        a("s_lshl_b32 s13, s13, 10")
        a("s_and_b32 s14, s12, 1")
        a("s_lshl_b32 s14, s14, 3")
        a("s_add_u32 s13, s13, s14")
        a(f"s_add_u32 s13, s13, {G.Z1F}")
        a("s_sub_u32 s14, s12, 43")
        a("s_lshl_b32 s14, s14, 6")
        a(f"s_lshr_b32 s15, s{sR0}, 1")
        a("s_add_u32 s14, s14, s15")
        a("s_lshl_b32 s14, s14, 10")
        a(f"s_add_u32 s14, s14, {G.Z2F}")
        a(f"s_cmp_eq_u32 s{sZT}, 0")
        a("s_cselect_b32 s13, s13, s14")
        a("s_cmp_lt_u32 s12, s10")
        a("s_cselect_b32 s13, s13, 0x20000000")
        for T in range(2):
            a(f"buffer_store_dwordx2 v[{64 + 4*ft + 2*T}:{65 + 4*ft + 2*T}], v4, s[4:7], s13 offen{SC}")
            vm.issue(("z",))
            if T == 0: a("s_add_u32 s13, s13, s11")
    a(f"s_mov_b32 s8, {G.f32(128 ** -0.5 * math.log2(math.e))}")
    for dt in range(8):
        D, e = dt >> 1, dt & 1
        for T in range(2):
            r = QACC + 8 * dt + 4 * T
            for k in range(4): a(f"v_mul_f32 v{r + k}, s8, v{r + k}")
            q = QF + (2 * D + T) * 4 + 2 * e
            a(f"v_cvt_pk_bf16_f32 v{q}, v{r}, v{r+1}")
            a(f"v_cvt_pk_bf16_f32 v{q+1}, v{r+2}, v{r+3}")
    for D in range(4):
        for k in range(4):
            a(f"v_permlane16_swap_b32 v{QF + 8*D + k}, v{QF + 8*D + 4 + k}")
    a(f"s_waitcnt vmcnt({vm.count_after(('kv',))})")
    G.stamp(a, 3)

O, S, NEGM, FR, P, E, T_, LS = 192, (160, 176), 144, 80, (64, 72), 56, (54, 55), 53
vK, vV, vD = 20, 21, 22
ORDER = [0, 1, 2, 3, 8, 9, 10, 11, 4, 5, 6, 7, 12, 13, 14, 15]

def phase_attn(a, name):
    SC = G.SC
    def fr(m): return f"v[{FR + 4 * (m & 7)}:{FR + 4 * (m & 7) + 3}]"
    def rdK(m, half): return f"ds_read_b128 {fr(m)}, v{vK} offset:{half * 8192 + (m & 7) * 1024}"
    def rdV(m, half): return f"ds_read_b128 {fr(m)}, v{vV} offset:{half * 8192 + (m & 7) * 1024}"
    def qk(m, p, c=None):
        d = f"v[{S[p]}:{S[p]+15}]"
        if c is None: c = f"v[{NEGM}:{NEGM+15}]" if m == 0 else d
        return f"v_mfma_f32_32x32x16_bf16 {d}, {fr(m)}, v[{QF + 4*m}:{QF + 4*m + 3}], {c}"
    def pv(m, p):
        s, dt = (m & 7) >> 2, m & 3
        o = f"v[{O + 16*dt}:{O + 16*dt + 15}]"
        return f"v_mfma_f32_32x32x16_bf16 {o}, {fr(m)}, v[{P[p] + 4*s}:{P[p] + 4*s + 3}], {o}"
    def ex(p, e): return f"v_exp_f32 v{E + (e & 3)}, v{S[p] + ORDER[e]}"
    def ad(p, e):
        if e == 0: return None
        if e == 1: return f"v_add_f32 v{T_[p]}, v{E}, v{E + 1}"
        return f"v_add_f32 v{T_[p]}, v{T_[p]}, v{E + (e & 3)}"
    def cv(p, e):
        return f"v_cvt_pk_bf16_f32 v{P[p] + e // 2}, v{E + ((e - 1) & 3)}, v{E + (e & 3)}" if e & 1 else None
    def slot(p, e):
        out = []
        if e >= 1: out.append(ad(p, e - 1))
        if e < 16: out.append(ex(p, e))
        if e >= 1: out.append(cv(p, e - 1))
        return [x for x in out if x]
    cmp_ = lambda p: f"v_cmp_nge_f32 vcc, s{sTHR}, v{T_[p]}"
    sites = []
    def check(p):
        l = a.newlabel(f"{name}_rs"); back = a.newlabel(f"{name}_rb")
        a(f"s_cbranch_vccnz {l}")
        a.label(back)
        a(f"v_add_f32 v{LS}, v{LS}, v{T_[p]}")
        sites.append((l, back, p))
    def begin_interval(isA):
        if isA: a("s_waitcnt vmcnt(8)")
        a("s_barrier")
        a(f"s_add_u32 s{sNI}, s{sNI}, 1")
        a(f"s_and_b32 s8, s{sNI}, 3")
        a("s_lshl_b32 s8, s8, 14")
        a("s_add_u32 s9, s8, 0x4000")
        a("s_and_b32 s9, s9, 0xc000")
        a("s_add_u32 s8, s8, 0x10000")
        a(f"v_add_u32 v{vK}, s9, v2")
        a(f"v_add_u32 v{vV}, s8, v2")
        if isA: dma_interval()
    def dma_interval():
        a(f"s_add_u32 s10, s{sNI}, 3")
        a("s_lshl_b32 s11, s10, 14")
        a("s_and_b32 s10, s11, 0xc000")
        a("s_add_u32 m0, s10, s47")
        a(f"s_add_u32 s11, s11, s{sKSRC}")
        for j in range(4): a(f"buffer_load_dwordx4 v2, s[4:7], s11 offen offset:{j * 1024} lds{SC}")
        a(f"s_add_u32 s10, s{sNI}, 2")
        a("s_lshl_b32 s11, s10, 14")
        a("s_and_b32 s10, s11, 0xc000")
        a("s_add_u32 s10, s10, s48")
        a("s_mov_b32 m0, s10")
        a(f"s_add_u32 s11, s11, s{sVSRC}")
        for j in range(4): a(f"buffer_load_dwordx4 v2, s[4:7], s11 offen offset:{j * 1024} lds{SC}")
    def mask(p):
        for r in range(16):
            sp = ("s[8:9]", "s[10:11]", "s[12:13]", "s[14:15]")[r & 3]
            a(f"v_cmp_le_i32 {sp}, {8 * (r >> 2) + (r & 3)}, v{vD}")
            if r & 3 == 3:
                for k in range(4):
                    sp = ("s[8:9]", "s[10:11]", "s[12:13]", "s[14:15]")[k]
                    a(f"v_cndmask_b32 v{S[p] + r - 3 + k}, v3, v{S[p] + r - 3 + k}, {sp}")
    def rowmax(p, dst, tmp):
        a(f"v_max3_f32 v{dst}, v{S[p]}, v{S[p]+1}, v{S[p]+2}")
        for k in range(3, 15, 2): a(f"v_max3_f32 v{dst}, v{dst}, v{S[p]+k}, v{S[p]+k+1}")
        a(f"v_max_f32 v{dst}, v{dst}, v{S[p]+15}")
        a(f"v_mov_b32 v{tmp}, v{dst}")
        a(f"v_permlane32_swap_b32 v{dst}, v{tmp}")
        a(f"v_max_f32 v{dst}, v{dst}, v{tmp}")
    def early(p):
        for e in range(6):
            for s in slot(p, e): a(s)
    def steady(p, do_early=True, do_pv=True):
        for m in range(16):
            if m >= 8 and not do_pv: mf = None
            else: mf = qk(m, p ^ 1) if m < 8 else pv(m, p ^ 1)
            if mf:
                if m % 2 == 0: a("s_waitcnt lgkmcnt(6)")
                a(mf)
                if do_pv: rd = rdV(m, p) if m < 8 else (rdK(m, p) if do_early else None)
                else: rd = rdK(m, p) if do_early else None
                if rd: a(rd)
                elif do_pv and m % 2 == 1 and m < 15: a(f"s_waitcnt lgkmcnt({max(0, 13 - m)})")
                elif not do_pv and m % 2 == 1 and m < 7: a(f"s_waitcnt lgkmcnt({max(0, 5 - m)})")
            if m <= 10:
                for s in slot(p, m + 6): a(s)
            if m == 11: a(cmp_(p))
            if m >= 10 and do_early:
                for s in slot(p ^ 1, m - 10): a(s)
        check(p)
    def last_step(p, do_pv=True):
        if do_pv:
            for m in range(8): a(rdV(m, p))
        mask(p)
        for e in range(17):
            if do_pv and e >= 8 and e < 16:
                a(f"s_waitcnt lgkmcnt({15 - e})")
                a(pv(e, p ^ 1))
            for s in slot(p, e): a(s)
        a(cmp_(p))
        check(p)
    def final_pv(p):
        for m in range(8): a(rdV(m, p ^ 1))
        for m in range(8):
            a(f"s_waitcnt lgkmcnt({7 - m})")
            a(pv(m, p))
    def epilogue():
        a(f"v_mov_b32 v4, v{LS}")
        a(f"v_permlane32_swap_b32 v{LS}, v4")
        a(f"v_add_f32 v{LS}, v{LS}, v4")
        a(f"v_rcp_f32 v{LS}, v{LS}")
        a("v_bfe_u32 v4, v1, 4, 1")
        a(f"v_mul_u32_u24 v4, {G.AF_KS * 1024}, v4")
        a("v_and_b32 v5, 15, v1")
        a("v_lshrrev_b32 v6, 5, v1")
        a("v_lshl_add_u32 v5, v6, 4, v5")
        a("v_lshl_add_u32 v4, v5, 4, v4")
        a(f"s_mul_i32 s8, s{sR0}, {G.AF_KS}")
        a(f"s_lshl_b32 s9, s{sH}, 2")
        a("s_add_u32 s8, s8, s9")
        a("s_lshl_b32 s8, s8, 10")
        a(f"s_add_u32 s8, s8, {G.AF}")
        for dt in range(4):
            for k in range(16): a(f"v_mul_f32 v{O + 16*dt + k}, v{O + 16*dt + k}, v{LS}")
            for pc in range(2):
                t = FR + 4 * ((2 * dt + pc) & 7)
                for i, g in enumerate((pc, pc + 2)):
                    r = O + 16 * dt + 4 * g
                    a(f"v_cvt_pk_bf16_f32 v{t + 2*i}, v{r}, v{r+1}")
                    a(f"v_cvt_pk_bf16_f32 v{t + 2*i + 1}, v{r+2}, v{r+3}")
                a(f"buffer_store_dwordx4 v[{t}:{t+3}], v4, s[4:7], s8 offen offset:{dt * 1024 + pc * 512}{SC}")

    a(f"s_mov_b32 s{sTHR}, {G.f32(2.0 ** 30)}")
    a("v_mov_b32 v3, 0xff800000")
    a("v_and_b32 v4, 31, v1")
    a("v_lshrrev_b32 v5, 5, v1")
    a("v_lshlrev_b32 v5, 2, v5")
    a(f"v_sub_u32 v{vD}, v4, v5")
    for r in range(O, O + 64): a(f"v_mov_b32 v{r}, 0")
    a(f"v_mov_b32 v{LS}, 0")
    a("s_and_b32 s47, s3, 3")
    a("s_lshl_b32 s47, s47, 12")
    a("s_add_u32 s48, s47, 0x10000")
    a(f"s_add_u32 s{sKSRC}, s{sKSRC}, s47")
    a(f"s_add_u32 s{sVSRC}, s{sVSRC}, s47")
    a(f"s_mov_b32 s{sNI}, -1")
    a(f"v_mov_b32 v{vK}, v2")
    a("s_barrier")
    for m in range(8): a(rdK(m, 0))
    for m in range(8):
        a("s_waitcnt lgkmcnt(7)")
        a(qk(m, 0, "0" if m == 0 else None))
        a(rdK(m, 1))
    lm = a.newlabel(f"{name}_nomask")
    a(f"s_cmp_eq_u32 s{sU}, 0")
    a(f"s_cbranch_scc0 {lm}")
    a.settle(12)
    mask(0)
    a.label(lm)
    a.settle(12)
    rowmax(0, 4, 5)
    for r in range(16): a(f"v_sub_f32 v{NEGM + r}, 0, v4")
    for r in range(16): a(f"v_sub_f32 v{S[0] + r}, v{S[0] + r}, v4")
    early(0)
    a("s_cmp_ge_u32 s3, 4")
    a(f"s_cbranch_scc1 {name}_at_A")
    for isA in (0, 1):
        k = "AB"[1 - isA]
        if isA:
            a.label(f"{name}_at_A")
        begin_interval(isA)
        if isA:
            a(f"s_cmp_lt_u32 s{sU}, 2")
            a(f"s_cbranch_scc1 {name}_at_small")
        steady(0, do_pv=False)
        a(f"s_sub_u32 s{sUC}, s{sU}, 2")
        a.label(f"{name}_at_loop{k}")
        a(f"s_cmp_eq_u32 s{sUC}, 0")
        a(f"s_cbranch_scc1 {name}_at_todd{k}")
        steady(1)
        begin_interval(isA)
        a(f"s_cmp_eq_u32 s{sUC}, 1")
        a(f"s_cbranch_scc1 {name}_at_teven{k}")
        steady(0)
        a(f"s_sub_u32 s{sUC}, s{sUC}, 2")
        a(f"s_branch {name}_at_loop{k}")
        a.label(f"{name}_at_todd{k}")
        steady(1, do_early=False)
        begin_interval(isA)
        last_step(0)
        final_pv(0)
        a(f"s_branch {name}_at_epi{k}")
        a.label(f"{name}_at_teven{k}")
        steady(0, do_early=False)
        if isA: a.label(f"{name}_at_u1b")
        last_step(1)
        begin_interval(isA)
        final_pv(1)
        a.label(f"{name}_at_epi{k}")
        a.settle(12)
        epilogue()
        if not isA:
            a.label(f"{name}_at_restB")
            a(f"s_cmp_ge_u32 s{sNI}, s{sNT}")
            a(f"s_cbranch_scc1 {name}_at_done")
            a("s_barrier")
            a(f"s_add_u32 s{sNI}, s{sNI}, 1")
            a(f"s_branch {name}_at_restB")
        else:
            a(f"s_sub_u32 s49, s{sNT}, 2")
            a.label(f"{name}_at_ld")
            a(f"s_cmp_ge_u32 s{sNI}, s49")
            a(f"s_cbranch_scc1 {name}_at_ld2")
            a("s_waitcnt vmcnt(8)")
            a("s_barrier")
            a(f"s_add_u32 s{sNI}, s{sNI}, 1")
            dma_interval()
            a(f"s_branch {name}_at_ld")
            a.label(f"{name}_at_ld2")
            a("s_waitcnt vmcnt(8)")
            a("s_barrier")
            a("s_waitcnt vmcnt(0)")
            a("s_barrier")
            a(f"s_branch {name}_at_done")
            a.label(f"{name}_at_small")
            a(f"s_cmp_eq_u32 s{sU}, 0")
            a(f"s_cbranch_scc1 {name}_at_u0")
            steady(0, do_early=False, do_pv=False)
            a(f"s_branch {name}_at_u1b")
            a.label(f"{name}_at_u0")
            a("s_waitcnt lgkmcnt(0)")
            last_step(0, do_pv=False)
            final_pv(0)
            a(f"s_branch {name}_at_epiA")
    for l, back, p in sites:
        a.label(l)
        a(f"s_call_b64 s[30:31], {name}_rare{p}")
        a(f"s_branch {back}")
    for p in range(2):
        a.label(f"{name}_rare{p}")
        a.settle(16)
        rowmax(p, 4, 5)
        a("v_max_f32 v4, 0, v4")
        a("v_sub_f32 v5, 0, v4")
        a("v_exp_f32 v5, v5")
        for r in range(16): a(f"v_sub_f32 v{NEGM + r}, v{NEGM + r}, v4")
        for r in range(16): a(f"v_sub_f32 v{S[p] + r}, v{S[p] + r}, v4")
        for r in range(16): a(f"v_sub_f32 v{S[p^1] + r}, v{S[p^1] + r}, v4")
        for r in range(64): a(f"v_mul_f32 v{O + r}, v{O + r}, v5")
        a(f"v_mul_f32 v{LS}, v{LS}, v5")
        for e in range(17):
            for s in slot(p, e): a(s)
        early(p ^ 1)
        a.settle(4)
        a("s_setpc_b64 s[30:31]")
    a.label(f"{name}_at_done")
    G.stamp(a, 4)
```

```python
from asmlib import *
import gen as G

def lnz_parts(a, sUnit, st):
    SC = G.SC
    PZ, SUM, SQ, TA, TB = 64, 108, 116, 124, 125
    s0, s1 = st[0], st[1]
    def load():
        a("v_lshrrev_b32 v4, 4, v1")
        a("v_lshlrev_b32 v4, 16, v4")
        a("v_and_b32 v5, 15, v1")
        a("v_lshl_add_u32 v6, v5, 4, v4")
        a("v_mov_b32 v4, 0x20000000")
        a("v_cmp_gt_u32 vcc, 48, v1")
        a("v_cndmask_b32 v7, v4, v6, vcc")
        a(f"s_lshl_b32 s{s0}, s{sUnit}, 8")
        for m in range(11):
            a(f"s_add_u32 s{s1}, s{s0}, {G.Z2F + m * 262144}")
            a(f"buffer_load_dwordx4 v[{PZ + 4*m}:{PZ + 4*m + 3}], v{7 if m == 10 else 6}, s[4:7], s{s1} offen{SC}")
    def sums():
        for m in range(11):
            for d in range(4):
                r = PZ + 4 * m + d
                a(f"v_lshlrev_b32 v{TA}, 16, v{r}")
                a(f"v_and_b32 v{TB}, 0xffff0000, v{r}")
                if m == 0:
                    a(f"v_mov_b32 v{SUM + 2*d}, v{TA}"); a(f"v_mov_b32 v{SUM + 2*d + 1}, v{TB}")
                    a(f"v_mul_f32 v{SQ + 2*d}, v{TA}, v{TA}"); a(f"v_mul_f32 v{SQ + 2*d + 1}, v{TB}, v{TB}")
                else:
                    a(f"v_add_f32 v{SUM + 2*d}, v{SUM + 2*d}, v{TA}"); a(f"v_add_f32 v{SUM + 2*d + 1}, v{SUM + 2*d + 1}, v{TB}")
                    a(f"v_fmac_f32 v{SQ + 2*d}, v{TA}, v{TA}"); a(f"v_fmac_f32 v{SQ + 2*d + 1}, v{TB}, v{TB}")
    def stats():
        for mod in ("quad_perm:[1,0,3,2]", "quad_perm:[2,3,0,1]", "row_half_mirror", "row_mirror"):
            for j in range(16):
                a(f"v_add_f32 v{SUM + j}, v{SUM + j}, v{SUM + j} {mod} row_mask:0xf bank_mask:0xf")
        for op in ("v_permlane16_swap_b32", "v_permlane32_swap_b32"):
            for j0 in range(0, 16, 4):
                for j in range(4): a(f"v_mov_b32 v{126 + j}, v{SUM + j0 + j}")
                for j in range(4): a(f"{op} v{SUM + j0 + j}, v{126 + j}")
                for j in range(4): a(f"v_add_f32 v{SUM + j0 + j}, v{SUM + j0 + j}, v{126 + j}")
        a(f"s_mov_b32 s{s1}, {G.f32(1.0 / 688)}")
        for j in range(8):
            a(f"v_mul_f32 v{SUM + j}, s{s1}, v{SUM + j}")
            a(f"v_mul_f32 v{SQ + j}, s{s1}, v{SQ + j}")
            a(f"v_fma_f32 v{SQ + j}, -v{SUM + j}, v{SUM + j}, v{SQ + j}")
            a(f"v_max_f32 v{SQ + j}, 0, v{SQ + j}")
            a(f"v_add_f32 v{SQ + j}, {G.f32(1e-5)}, v{SQ + j}")
            a(f"v_rsq_f32 v{SQ + j}, v{SQ + j}")
        for j in range(8):
            a(f"v_mul_f32 v{SUM + j}, v{SUM + j}, v{SQ + j}")
    def store():
        for m in range(11):
            for d in range(4):
                r = PZ + 4 * m + d
                a(f"v_lshlrev_b32 v{TA}, 16, v{r}")
                a(f"v_and_b32 v{TB}, 0xffff0000, v{r}")
                a(f"v_fma_f32 v{TA}, v{TA}, v{SQ + 2*d}, -v{SUM + 2*d}")
                a(f"v_fma_f32 v{TB}, v{TB}, v{SQ + 2*d + 1}, -v{SUM + 2*d + 1}")
                a(f"v_cvt_pk_bf16_f32 v{r}, v{TA}, v{TB}")
            a(f"s_add_u32 s{s1}, s{s0}, {G.Z2N + m * 262144}")
            a(f"buffer_store_dwordx4 v[{PZ + 4*m}:{PZ + 4*m + 3}], v{7 if m == 10 else 6}, s[4:7], s{s1} offen{SC}")
    return load, sums, stats, store

def phase_lnz(a, name):
    a("s_cmp_lg_u32 s3, 0")
    a(f"s_cbranch_scc1 {name}_lnz_done")
    load, sums, stats, store = lnz_parts(a, 2, (8, 9))
    load(); a("s_waitcnt vmcnt(0)"); sums(); stats(); store()
    a.label(f"{name}_lnz_done")

def reduce_rounds(a, name, tag, R, ntiles, offs, vaddr_own, vtmp):
    n = ntiles
    for rnd, bit in enumerate((4, 2, 1)):
        h = n // 2
        lab = f"{name}_{tag}_r{rnd}"
        a(f"s_xor_b32 s8, s3, {bit}")
        a("s_mul_i32 s8, s8, 20480")
        a(f"v_add_u32 v{vtmp}, s8, v2")
        a(f"s_and_b32 s9, s3, {bit}")
        a(f"s_cbranch_scc1 {lab}_hi")
        for hi in (0, 1):
            if hi: a.label(f"{lab}_hi")
            send = 0 if hi else h
            keep = h if hi else 0
            for t in range(h):
                r = R + 4 * (send + t)
                a(f"ds_write_b128 v{vaddr_own}, v[{r}:{r+3}] offset:{offs[rnd] + t * 1024}")
            a("s_waitcnt lgkmcnt(0)")
            a("s_barrier")
            for t in range(h):
                r = R + 4 * (send + t)
                a(f"ds_read_b128 v[{r}:{r+3}], v{vtmp} offset:{offs[rnd] + t * 1024}")
            for t in range(h):
                a(f"s_waitcnt lgkmcnt({h - 1 - t})")
                for k in range(4):
                    a(f"v_add_f32 v{R + 4*t + k}, v{R + 4*(keep + t) + k}, v{R + 4*(send + t) + k}")
            if not hi: a(f"s_branch {lab}_j")
        a.label(f"{lab}_j")
        n = h

def phase_s(a, name):
    SC = G.SC
    vm = G.VM()
    ACC, AFR, BFR = 160, 64, (32, 48)
    Z1R, BSR = 140, 146
    a("s_load_dwordx4 s[12:15], s[0:1], 64")
    a("s_and_b32 s8, s2, 7")
    a("s_lshl_b32 s8, s8, 2")
    a("s_bfe_u32 s9, s2, 0x20003")
    a("s_add_u32 s33, s8, s9")
    a("s_lshr_b32 s34, s2, 5")
    a("s_mul_i32 s35, s34, 6")
    a("s_lshl_b32 s8, s34, 2")
    a("s_add_u32 s8, s8, 12")
    a("s_cmp_lt_u32 s34, 6")
    a("s_cselect_b32 s35, s35, s8")
    a("s_cmp_eq_u32 s34, 6")
    a("s_cselect_b32 s36, 40, 44")
    a("v_lshlrev_b32 v2, 4, v1")
    a("v_lshrrev_b32 v4, 2, v1")
    a("v_lshlrev_b32 v4, 12, v4")
    a("v_lshrrev_b32 v6, 4, v1")
    G.pi_of(a, 7, 6, 8)
    a("v_and_b32 v5, 3, v1")
    a("v_xor_b32 v5, v5, v7")
    a("v_lshl_add_u32 v10, v5, 4, v4")
    a("s_lshl_b32 s37, s33, 18")
    a("s_lshl_b32 s8, s3, 9")
    a("s_add_u32 s37, s37, s8")
    a("s_mul_i32 s38, s3, 20480")
    a("s_lshl_b32 s39, s35, 16")
    a("s_lshl_b32 s8, s3, 13")
    a("s_add_u32 s39, s39, s8")
    a(f"s_add_u32 s39, s39, {G.Z2N}")
    a("v_and_b32 v4, 15, v1")
    a("v_lshrrev_b32 v5, 4, v1")
    a("v_lshrrev_b32 v6, 2, v4")
    G.pi_of(a, 7, 6, 8)
    a("v_xor_b32 v6, v7, v5")
    a("v_lshlrev_b32 v6, 4, v6")
    a("v_lshl_add_u32 v6, v4, 6, v6")
    a("v_add_u32 v11, s38, v6")
    a("v_add_u32 v12, s38, v2")
    a("s_waitcnt lgkmcnt(0)")
    G.srd(a, 16, 12, 13, 2048 * 4096)
    G.srd(a, 20, 14, 15, 4096)
    def bdma(ks):
        for tt in range(4):
            a(f"s_add_u32 m0, s38, {(ks & 3) * 4096 + tt * 1024}")
            a(f"s_add_u32 s40, s37, {tt * 65536 + ks * 64}")
            a("buffer_load_dwordx4 v10, s[16:19], s40 offen lds")
            vm.issue(("b", ks))
    def aload(ks):
        for j in range(6):
            r = AFR + 24 * (ks % 3) + 4 * j
            a(f"s_add_u32 s40, s39, {j * 65536 + (ks >> 2) * 4096}")
            a(f"buffer_load_dwordx4 v[{r}:{r+3}], v2, s[4:7], s40 offen offset:{(ks & 3) * 1024}{SC}")
            vm.issue(("a", ks))
    def bread(ks):
        return [f"ds_read_b128 v[{BFR[ks & 1] + 4*tt}:{BFR[ks & 1] + 4*tt + 3}], v11 offset:{(ks & 3) * 4096 + tt * 1024}" for tt in range(4)]
    bdma(0); aload(0); bdma(1); aload(1); bdma(2); aload(2); bdma(3)
    a("s_lshr_b32 s8, s3, 2"); a("s_mul_i32 s41, s8, 12")
    a("s_bfe_u32 s8, s3, 0x10001"); a("s_mul_i32 s8, s8, 6"); a("s_add_u32 s41, s41, s8")
    a("s_and_b32 s8, s3, 1"); a("s_mul_i32 s8, s8, 3"); a("s_add_u32 s41, s41, s8")
    a("v_and_b32 v13, 15, v1")
    a("v_lshlrev_b32 v13, 1, v13")
    for e in range(3):
        a(f"s_add_u32 s8, s41, {e}")
        a("s_lshr_b32 s9, s8, 2")
        a(f"s_add_u32 s{42 + e}, s9, s35")
        a("s_and_b32 s8, s8, 3")
        a("s_lshl_b32 s9, s33, 2")
        a(f"s_add_u32 s{45 + e}, s9, s8")
        a(f"s_mul_i32 s8, s{45 + e}, 22")
        a(f"s_lshr_b32 s9, s{42 + e}, 1")
        a("s_add_u32 s8, s8, s9")
        a("s_lshl_b32 s8, s8, 10")
        a(f"s_and_b32 s9, s{42 + e}, 1")
        a("s_lshl_b32 s9, s9, 3")
        a("s_add_u32 s8, s8, s9")
        a(f"s_add_u32 s8, s8, {G.Z1F}")
        a(f"s_cmp_lt_u32 s{42 + e}, 43")
        a("s_cselect_b32 s8, s8, 0x20000000")
        a(f"buffer_load_dwordx2 v[{Z1R + 2*e}:{Z1R + 2*e + 1}], v2, s[4:7], s8 offen{SC}")
        vm.issue(("e",))
        a(f"s_lshl_b32 s8, s{45 + e}, 5")
        a(f"buffer_load_ushort v{BSR + e}, v13, s[20:23], s8 offen")
        vm.issue(("e",))
    for r in range(ACC, 256): a(f"v_mov_b32 v{r}, 0")
    a(f"s_waitcnt vmcnt({vm.count_after(('b', 0))})")
    G.stamp(a, 1)
    for s in bread(0): a(s)
    for ks in range(8):
        need = [("a", ks)] + ([("b", ks + 1)] if ks < 7 else [])
        a(f"s_waitcnt vmcnt({min(vm.count_after(t) for t in need)}) lgkmcnt(0)")
        if ks < 7:
            for s in bread(ks + 1): a(s)
        if ks + 4 < 8: bdma(ks + 4)
        for j in range(6):
            for tt in range(4):
                acc = ACC + 4 * (4 * j + tt)
                r = AFR + 24 * (ks % 3) + 4 * j; b = BFR[ks & 1] + 4 * tt
                a(f"v_mfma_f32_16x16x32_bf16 v[{acc}:{acc+3}], v[{r}:{r+3}], v[{b}:{b+3}], v[{acc}:{acc+3}]")
        if ks + 3 < 8: aload(ks + 3)
    G.stamp(a, 2)
    a.settle(8)
    reduce_rounds(a, name, "s", ACC, 24, (0, 12288, 0), 12, 14)
    G.stamp(a, 3)
    for e in range(3):
        r = ACC + 4 * e
        a(f"v_lshlrev_b32 v{BSR + e}, 16, v{BSR + e}")
        for k in range(4): a(f"v_add_f32 v{r + k}, v{r + k}, v{BSR + e}")
        for d in range(2):
            z = Z1R + 2 * e + d
            a(f"v_lshlrev_b32 v4, 16, v{z}")
            a(f"v_and_b32 v5, 0xffff0000, v{z}")
            a(f"v_mul_f32 v4, v4, v{r + 2*d}")
            a(f"v_mul_f32 v5, v5, v{r + 2*d + 1}")
            a(f"v_cvt_pk_bf16_f32 v{z}, v4, v5")
        lz = a.newlabel(f"{name}_s_nz")
        a(f"s_cmp_lt_u32 s{42 + e}, 43")
        a(f"s_cbranch_scc1 {lz}")
        a(f"v_mov_b32 v{Z1R + 2*e}, 0"); a(f"v_mov_b32 v{Z1R + 2*e + 1}, 0")
        a.label(lz)
        a(f"s_mul_i32 s8, s{45 + e}, {G.AF_KS}")
        a(f"s_lshr_b32 s9, s{42 + e}, 1")
        a("s_add_u32 s8, s8, s9")
        a("s_lshl_b32 s8, s8, 10")
        a(f"s_and_b32 s9, s{42 + e}, 1")
        a("s_lshl_b32 s9, s9, 3")
        a("s_add_u32 s8, s8, s9")
        a(f"s_add_u32 s8, s8, {G.AF + 128 * 1024}")
        a(f"s_cmp_lt_u32 s{42 + e}, s36")
        a("s_cselect_b32 s8, s8, 0x20000000")
        a(f"buffer_store_dwordx2 v[{Z1R + 2*e}:{Z1R + 2*e + 1}], v2, s[4:7], s8 offen{SC}")

def phase_o(a, name):
    SC = G.SC
    vm = G.VM()
    ACC, AFR, WFR, XR = 192, 64, (32, 48), 24
    NS = 19
    a("s_load_dwordx2 s[12:13], s[0:1], 40")
    a("s_load_dwordx4 s[24:27], s[0:1], 80")
    a("s_load_dwordx2 s[14:15], s[0:1], 0")
    a("s_and_b32 s8, s2, 7")
    a("s_lshl_b32 s8, s8, 2")
    a("s_bfe_u32 s9, s2, 0x20003")
    a("s_add_u32 s33, s8, s9")
    a("s_lshr_b32 s34, s2, 5")
    a("v_lshlrev_b32 v2, 4, v1")
    a("v_lshrrev_b32 v4, 3, v1")
    a("v_and_b32 v5, 7, v1")
    a("v_lshrrev_b32 v6, 1, v5")
    a("v_and_b32 v5, 1, v5")
    a("v_lshrrev_b32 v7, 4, v1")
    a("v_xor_b32 v6, v6, v7")
    a("v_lshlrev_b32 v6, 5, v6")
    a("v_lshl_add_u32 v6, v5, 4, v6")
    a("v_lshl_add_u32 v10, v4, 10, v6")
    a("s_lshl_b32 s37, s3, 15")
    a("s_lshl_b32 s8, s34, 7")
    a("s_add_u32 s37, s37, s8")
    a("s_mul_i32 s38, s3, 20480")
    a(f"s_mul_i32 s39, s33, {4 * G.AF_KS}")
    a("s_add_u32 s39, s39, s3")
    a("s_lshl_b32 s39, s39, 10")
    a(f"s_add_u32 s39, s39, {G.AF}")
    a("v_and_b32 v4, 15, v1")
    a("v_lshrrev_b32 v5, 4, v1")
    a("v_lshrrev_b32 v6, 2, v4")
    a("v_lshl_add_u32 v7, v5, 2, v6")
    a("v_bfe_u32 v8, v7, 1, 2")
    a("v_and_b32 v4, 3, v1")
    a("v_lshlrev_b32 v4, 3, v4")
    a("v_lshl_add_u32 v4, v7, 7, v4")
    a("v_add_u32 v4, s38, v4")
    for mt in range(4):
        a(f"v_xor_b32 v9, {mt}, v8")
        a(f"v_lshl_add_u32 v{16 + mt}, v9, 5, v4")
    a("v_add_u32 v12, s38, v2")
    a("s_waitcnt lgkmcnt(0)")
    G.srd(a, 16, 12, 13, 4096 * 1024)
    G.srd(a, 20, 24, 25, 688 * 1024)
    G.srd(a, 28, 14, 15, 2048 * 1024)
    G.srd(a, 44, 26, 27, 2048 * 1024)
    a("s_cmp_lt_u32 s3, 6")
    a("s_cselect_b32 s41, 0, 0x20000000")
    def wdma(i):
        sd = 16 if i < 16 else 20
        row = (i if i < 16 else i - 16) * 256
        for m in range(4):
            a(f"s_add_u32 m0, s38, {(i & 3) * 4096 + m * 1024}")
            a(f"s_add_u32 s40, s37, {(row + 8 * m) * 1024}")
            a(f"buffer_load_dwordx4 v10, s[{sd}:{sd+3}], s40 offen lds")
            vm.issue(("w", i))
    def aload(i):
        for tt in range(4):
            r = AFR + 16 * (i & 3) + 4 * tt
            a(f"s_add_u32 s40, s39, {(tt * G.AF_KS + 8 * i) * 1024}")
            if i == NS - 1: a("s_or_b32 s40, s40, s41")
            a(f"buffer_load_dwordx4 v[{r}:{r+3}], v2, s[4:7], s40 offen{SC}")
            vm.issue(("a", i))
    def wread(i):
        out = []
        for mt in range(4):
            b = WFR[i & 1] + 4 * mt
            out.append(f"ds_read_b64_tr_b16 v[{b}:{b+1}], v{16 + mt} offset:{(i & 3) * 4096}")
            out.append(f"ds_read_b64_tr_b16 v[{b+2}:{b+3}], v{16 + mt} offset:{(i & 3) * 4096 + 2048}")
        return out
    for i in range(4): wdma(i); aload(i)
    a("v_and_b32 v4, 15, v1")
    a("v_lshlrev_b32 v4, 10, v4")
    a("v_lshrrev_b32 v5, 4, v1")
    a("v_lshl_add_u32 v13, v5, 3, v4")
    a("s_lshl_b32 s8, s33, 2")
    a("s_lshr_b32 s9, s3, 1")
    a("s_add_u32 s8, s8, s9")
    a("s_lshl_b32 s42, s8, 14")
    a("s_lshl_b32 s8, s34, 7")
    a("s_add_u32 s42, s42, s8")
    a("s_and_b32 s8, s3, 1")
    a("s_lshl_b32 s8, s8, 6")
    a("s_add_u32 s42, s42, s8")
    for e in range(2):
        a(f"buffer_load_dwordx2 v[{XR + 2*e}:{XR + 2*e + 1}], v13, s[28:31], s42 offen offset:{32 * e}")
        vm.issue(("x",))
    for r in range(ACC, 256): a(f"v_mov_b32 v{r}, 0")
    a(f"s_waitcnt vmcnt({vm.count_after(('w', 0))})")
    G.stamp(a, 1)
    for s in wread(0): a(s)
    for i in range(NS):
        need = [("a", i)] + ([("w", i + 1)] if i < NS - 1 else [])
        a(f"s_waitcnt vmcnt({min(vm.count_after(t) for t in need)}) lgkmcnt(0)")
        if i < NS - 1:
            for s in wread(i + 1): a(s)
        if i + 4 < NS: wdma(i + 4)
        for tt in range(4):
            for mt in range(4):
                acc = ACC + 4 * (4 * tt + mt)
                w = WFR[i & 1] + 4 * mt; r = AFR + 16 * (i & 3) + 4 * tt
                a(f"v_mfma_f32_16x16x32_bf16 v[{acc}:{acc+3}], v[{w}:{w+3}], v[{r}:{r+3}], v[{acc}:{acc+3}]")
        if i + 4 < NS: aload(i + 4)
    G.stamp(a, 2)
    a.settle(8)
    reduce_rounds(a, name, "o", ACC, 16, (0, 8192, 12288), 12, 14)
    G.stamp(a, 3)
    for e in range(2):
        r = ACC + 4 * e
        for d in range(2):
            z = XR + 2 * e + d
            a(f"v_lshlrev_b32 v4, 16, v{z}")
            a(f"v_and_b32 v5, 0xffff0000, v{z}")
            a(f"v_add_f32 v4, v4, v{r + 2*d}")
            a(f"v_add_f32 v5, v5, v{r + 2*d + 1}")
            a(f"v_cvt_pk_bf16_f32 v{z}, v4, v5")
        a(f"buffer_store_dwordx2 v[{XR + 2*e}:{XR + 2*e + 1}], v13, s[44:47], s42 offen offset:{32 * e}")
```

```python
import sys, math, struct
from asmlib import *

NAME = "parallel_sum__compressed_kv_cla__mixer_gmlp__prompt"
XNF = 0x0000000
KF  = 0x0200000
VF  = 0x1200000
AF  = 0x2200000
AF_KS = 150
Z1F = 0x3600000
Z2F = 0x3A00000
Z2N = 0x3E00000
CNTO = 0x7000000
TSO = 0x8000000
WS_BYTES = 0x10000000
OOB = 0x20000000
C_XN, C_KV, C_Z, C_Z2N, C_CTX, C_U = 0, 16, 80, 88, 96, 104
NCNT = 192
STAMP = False
OPT = {}
SC = " sc1"
N = NAME + "_kernel"

sH, sI, sTILE, sR0, sZT, sN0, sNT, sU, sUC, sNI, sKSRC, sVSRC, sTHR = range(32, 45)
qWq, qWin, qL2k, qL1k, qXN = range(46, 51)
kX, kW, kL4k, kIsV, kST, kSA, kCKV, kRow = range(54, 62)

def f32(x): return "0x%08x" % struct.unpack("<I", struct.pack("<f", x))[0]
def stamp(a, i, force=False):
    if OPT.get("astamp") and 7 <= i <= 13 and not force: return
    if STAMP: a(f"{'s_memtime' if OPT.get('cyc') else 's_memrealtime'} s[{68 + 2*i}:{69 + 2*i}]")
def stampc(a, i):
    if STAMP: a(f"s_memtime s[{68 + 2*i}:{69 + 2*i}]")
def srd(a, d, lo, hi, nbytes):
    a(f"s_mov_b32 s{d}, s{lo}")
    a(f"s_and_b32 s{d+1}, s{hi}, 0xffff")
    a(f"s_mov_b32 s{d+2}, {nbytes:#x}")
    a(f"s_mov_b32 s{d+3}, 0x00020000")
def wave_allreduce(a, v, t, op="v_add_f32"):
    for mod in ("quad_perm:[1,0,3,2]", "quad_perm:[2,3,0,1]", "row_half_mirror", "row_mirror"):
        a(f"{op} v{v}, v{v}, v{v} {mod} row_mask:0xf bank_mask:0xf")
    for sw in ("v_permlane16_swap_b32", "v_permlane32_swap_b32"):
        a(f"v_mov_b32 v{t}, v{v}")
        a(f"{sw} v{v}, v{t}")
        a(f"{op} v{v}, v{v}, v{t}")
def pi_of(a, dst, src, tmp):
    a(f"v_lshrrev_b32 v{tmp}, 1, v{src}")
    a(f"v_mul_u32_u24 v{tmp}, 3, v{tmp}")
    a(f"v_lshlrev_b32 v{dst}, 1, v{src}")
    a(f"v_xor_b32 v{dst}, v{dst}, v{tmp}")
    a(f"v_and_b32 v{dst}, 3, v{dst}")

class VM:
    def __init__(self): self.q = []
    def issue(self, tag, n=1): self.q += [tag] * n
    def after(self, *tags):
        return min(63, min(len(self.q) - 1 - max(i for i, t in enumerate(self.q) if t == tag) for tag in tags))

def signal(a, sidx, wave):
    l = a.newlabel("sig")
    if wave is not None:
        a(f"s_cmp_lg_u32 s3, {wave}")
        a(f"s_cbranch_scc1 {l}")
    a(f"s_lshl_b32 s14, s{sidx}, 8")
    a(f"s_add_u32 s14, s14, {CNTO}")
    a("v_mov_b32 v8, 0")
    a("v_mov_b32 v9, 1")
    a("s_mov_b64 exec, 1")
    a("buffer_atomic_add v9, v8, s[4:7], s14 offen sc1")
    a("s_mov_b64 exec, -1")
    a.label(l)
def poll_issue(a, sidx, vdst, nshard=1):
    a(f"s_lshl_b32 s14, s{sidx}, 8")
    a(f"s_add_u32 s14, s14, {CNTO}")
    a(f"v_and_b32 v8, {nshard - 1}, v1")
    a("v_lshlrev_b32 v8, 8, v8")
    a(f"buffer_load_dword v{vdst}, v8, s[4:7], s14 offen sc1")
def poll_check(a, sidx, vdst, target, nshard=1):
    l = a.newlabel("poll"); d = a.newlabel("polld")
    a("s_mov_b32 s15, 0x20000")
    a.label(l)
    a(f"v_cmp_gt_u32 vcc, {target}, v{vdst}")
    a(f"s_cbranch_vccz {d}")
    a("s_sleep 8")
    poll_issue(a, sidx, vdst, nshard)
    a("s_waitcnt vmcnt(0)")
    a("s_sub_u32 s15, s15, 1")
    a("s_cmp_lg_u32 s15, 0")
    a(f"s_cbranch_scc1 {l}")
    a.label(d)

RING = 65536; STG = 24576
QACC, ZACC, XF, WQ, PK, QF = 192, 168, 96, 32, 128, 112

def front(a):
    vm = VM()
    kernel_header(a, N)
    a("s_cmp_ge_u32 s2, 256")
    a(f"s_cbranch_scc1 {N}_end")
    stamp(a, 0)
    a("s_load_dwordx4 s[8:11], s[0:1], 96")
    a("s_load_dwordx4 s[24:27], s[0:1], 0")
    a("s_load_dwordx4 s[28:31], s[0:1], 24")
    a("s_load_dwordx2 s[64:65], s[0:1], 16")
    a("s_load_dwordx2 s[66:67], s[0:1], 56")
    a("v_and_b32 v1, 63, v0")
    a("v_lshrrev_b32 v2, 6, v0")
    a("v_readfirstlane_b32 s3, v2")
    a("v_lshlrev_b32 v2, 4, v1")
    a("s_and_b32 s12, s2, 7")
    a("s_lshr_b32 s13, s2, 3")
    a("s_and_b32 s62, s13, 3")
    a(f"s_bfe_u32 s{kIsV}, s13, 0x10002")
    a("s_lshr_b32 s13, s13, 3")
    a("s_lshl_b32 s63, s12, 2")
    a("s_add_u32 s63, s63, s13")
    a(f"s_add_u32 s{kCKV}, s63, {C_KV}")
    a("v_lshrrev_b32 v4, 3, v1")
    a("v_lshlrev_b32 v4, 10, v4")
    a("v_and_b32 v5, 7, v1")
    a("v_lshrrev_b32 v6, 4, v1")
    a("v_xor_b32 v5, v5, v6")
    a("v_lshl_add_u32 v10, v5, 4, v4")
    a("v_xor_b32 v11, 64, v10")
    a("v_and_b32 v5, 15, v1")
    a("v_lshrrev_b32 v4, 1, v5")
    a("v_and_b32 v5, 1, v5")
    a("s_and_b32 s12, s3, 1")
    a("s_lshl_b32 s13, s12, 2")
    a("v_or_b32 v7, s13, v6")
    a("v_xor_b32 v4, v4, v7")
    a("v_lshlrev_b32 v4, 5, v4")
    a("v_lshl_add_u32 v4, v5, 4, v4")
    a("v_lshl_add_u32 v12, v6, 13, v4")
    a(f"s_lshl_b32 s{kX}, s62, 8")
    a("s_lshl_b32 s13, s3, 5")
    a(f"s_add_u32 s{kX}, s{kX}, s13")
    a(f"s_lshl_b32 s{kX}, s{kX}, 10")
    a(f"s_lshl_b32 s{kW}, s3, 16")
    a("s_lshl_b32 s13, s63, 8")
    a(f"s_add_u32 s{kW}, s{kW}, s13")
    a(f"s_lshl_b32 s{kL4k}, s3, 12")
    a(f"s_lshl_b32 s{qL2k}, s3, 11")
    a(f"s_lshl_b32 s{qL1k}, s3, 10")
    a(f"s_lshl_b32 s{kRow}, s2, 3")
    a(f"s_add_u32 s{kRow}, s{kRow}, s3")
    a("s_waitcnt lgkmcnt(0)")
    srd(a, 16, 26, 27, 2048 * 1024)
    a("s_mov_b64 s[52:53], s[26:27]")
    a(f"s_cmp_eq_u32 s{kIsV}, 0")
    a("s_cselect_b32 s28, s28, s30")
    a("s_cselect_b32 s29, s29, s31")
    srd(a, 20, 28, 29, 512 * 8192)
    srd(a, 4, 10, 11, WS_BYTES)
    srd(a, 28, 8, 9, 256)
    srd(a, 24, 24, 25, 2048 * 1024)
    def kdma(c):
        ps, kc, st = c >> 3, c & 7, (c % 3) * 49152
        out = []
        for m in range(4):
            out.append([f"s_add_u32 m0, s{kL4k}, {st + m * 1024}",
                        f"s_add_u32 s12, s{kX}, {ps * 1024 * 1024 + m * 8192 + kc * 128}",
                        f"buffer_load_dwordx4 v{10 + (m & 1)}, s[16:19], s12 offen lds"])
            if m < 2:
                out.append([f"s_add_u32 m0, s{qL2k}, {st + 32768 + m * 1024}",
                            f"s_add_u32 s12, s{kW}, {(kc * 64 + 4 * m) * 8192}",
                            f"buffer_load_dwordx4 v12, s[20:23], s12 offen lds"])
        return out
    def emit(groups, tag):
        for g in groups:
            for s in g:
                if isinstance(s, tuple): a.label(s[1]); continue
                a(s)
                if s.startswith("buffer_") and tag != "misc": vm.issue(tag)
    emit(kdma(0), ("k", 0))
    a(f"s_lshl_b32 s12, s{kRow}, 10")
    a("buffer_load_dwordx4 v[32:35], v2, s[24:27], s12 offen"); vm.issue("ln")
    a("s_or_b32 s12, s2, s3")
    a(f"s_cbranch_scc1 {N}_noinit")
    a("v_lshlrev_b32 v8, 8, v1")
    a("v_mov_b32 v9, 0")
    a(f"s_mov_b32 s12, {CNTO}")
    a("buffer_store_dword v9, v8, s[4:7], s12 offen sc1")
    a(f"s_mov_b32 s12, {CNTO + 64 * 256}")
    a("buffer_store_dword v9, v8, s[4:7], s12 offen sc1")
    a(f"s_mov_b32 s12, {CNTO + 128 * 256}")
    a("buffer_store_dword v9, v8, s[4:7], s12 offen sc1")
    a.label(f"{N}_noinit")
    emit(kdma(1), ("k", 1))
    a("v_and_b32 v4, 15, v1")
    a("v_lshrrev_b32 v5, 4, v1")
    a("v_lshrrev_b32 v6, 1, v4")
    a("v_xor_b32 v6, v6, v5")
    a("v_lshlrev_b32 v6, 4, v6")
    a("v_lshl_add_u32 v6, v4, 7, v6")
    a("s_and_b32 s12, s3, 3")
    a("s_lshl_b32 s12, s12, 13")
    a("v_add_u32 v14, s12, v6")
    a("v_xor_b32 v15, 64, v14")
    a("v_add_u32 v16, 98304, v14")
    a("v_add_u32 v17, 98304, v15")
    a("v_lshrrev_b32 v6, 2, v4")
    a("v_and_b32 v7, 1, v5")
    a("v_lshl_or_b32 v7, v7, 2, v6")
    a("v_lshl_add_u32 v6, v5, 3, v6")
    a("v_lshlrev_b32 v6, 8, v6")
    a("v_and_b32 v3, 3, v1")
    a("v_lshl_add_u32 v6, v3, 3, v6")
    a("v_add_u32 v6, 32768, v6")
    a("s_lshr_b32 s13, s3, 2")
    a("s_lshl_b32 s12, s13, 2")
    for nt in range(4):
        a(f"s_add_u32 s14, s12, {nt}")
        a("v_xor_b32 v3, s14, v7")
        a(f"v_lshl_add_u32 v{18 + nt}, v3, 5, v6")
        a(f"v_add_u32 v{22 + nt}, 98304, v{18 + nt}")
    a(f"s_lshl_b32 s{kST}, s63, 6")
    a("s_lshl_b32 s12, s62, 3")
    a(f"s_add_u32 s{kST}, s{kST}, s12")
    a("s_and_b32 s12, s3, 3")
    a("s_lshl_b32 s12, s12, 1")
    a(f"s_add_u32 s{kST}, s{kST}, s12")
    a(f"s_lshl_b32 s{kST}, s{kST}, 13")
    a(f"s_cmp_eq_u32 s{kIsV}, 0")
    a(f"s_movk_i32 s{kSA}, 1024")
    a(f"s_cselect_b32 s{kSA}, 2048, s{kSA}")
    a(f"s_mov_b32 s12, {VF}")
    a(f"s_cselect_b32 s12, {KF}, s12")
    a("s_cselect_b64 vcc, -1, 0")
    a(f"s_add_u32 s{kST}, s{kST}, s12")
    a(f"s_mul_i32 s12, s13, s{kSA}")
    a("s_lshl_b32 s12, s12, 1")
    a(f"s_add_u32 s{kST}, s{kST}, s12")
    a("v_and_b32 v6, 1, v5")
    a("v_lshrrev_b32 v7, 1, v5")
    a("v_lshl_add_u32 v3, v7, 5, v4")
    a("v_lshlrev_b32 v3, 4, v3")
    a("v_lshl_add_u32 v3, v6, 10, v3")
    a("v_lshl_add_u32 v27, v6, 5, v4")
    a("v_lshlrev_b32 v27, 4, v27")
    a("v_lshl_add_u32 v27, v7, 12, v27")
    a("v_cndmask_b32 v27, v27, v3, vcc")
    emit(kdma(2), ("k", 2))
    a("s_and_b32 s12, s2, 7")
    a("s_lshr_b32 s13, s2, 3")
    a("s_and_b32 s14, s13, 3")
    a("s_lshl_b32 s12, s12, 2")
    a(f"s_add_u32 s{sH}, s12, s14")
    a(f"s_lshr_b32 s{sI}, s13, 2")
    a(f"s_sub_u32 s12, 15, s{sI}")
    a("s_cmp_ge_u32 s3, 4")
    a(f"s_cselect_b32 s{sTILE}, s{sI}, s12")
    a("s_and_b32 s13, s3, 3")
    a(f"s_lshl_b32 s12, s{sTILE}, 2")
    a(f"s_add_u32 s{sU}, s12, s13")
    a(f"s_lshl_b32 s{sR0}, s{sU}, 1")
    a(f"s_lshl_b32 s12, s{sI}, 1")
    a(f"s_sub_u32 s{sNT}, 32, s12")
    a(f"s_mul_i32 s{sN0}, s{sH}, 3")
    a(f"s_sub_u32 s12, s{sN0}, 2")
    a(f"s_cmp_ge_u32 s{sH}, 15")
    a(f"s_cselect_b32 s{sZT}, 1, 0")
    a(f"s_cselect_b32 s{sN0}, s12, s{sN0}")
    a(f"s_min_u32 s{sN0}, s{sN0}, 86")
    a(f"s_lshl_b32 s{qWq}, s3, 16")
    a(f"s_lshl_b32 s12, s{sH}, 8")
    a(f"s_add_u32 s{qWq}, s{qWq}, s12")
    a(f"s_mul_i32 s{qWin}, s3, {8 * 2752}")
    a(f"s_lshl_b32 s12, s{sN0}, 5")
    a(f"s_add_u32 s{qWin}, s{qWin}, s12")
    a(f"s_lshl_b32 s{qXN}, s{sR0}, 14")
    a(f"s_lshl_b32 s12, s{sH}, 19")
    a(f"s_add_u32 s{sKSRC}, s12, {KF}")
    a(f"s_add_u32 s{sVSRC}, s12, {VF - 8192}")
    a("v_lshrrev_b32 v4, 3, v1")
    a("v_and_b32 v5, 7, v1")
    a("v_lshrrev_b32 v6, 1, v5")
    a("v_and_b32 v5, 1, v5")
    a("v_bfe_u32 v7, v1, 4, 1")
    a("s_and_b32 s12, s3, 1")
    a("s_lshl_b32 s12, s12, 1")
    a("v_or_b32 v7, s12, v7")
    a("v_xor_b32 v6, v6, v7")
    a("v_lshlrev_b32 v6, 5, v6")
    a("v_lshl_add_u32 v6, v5, 4, v6")
    a("v_mul_u32_u24 v4, 2752, v4")
    a("v_add_u32 v13, v4, v6")
    a(f"s_waitcnt vmcnt({vm.after('ln')}) lgkmcnt(0)")
    for i in range(4):
        a(f"v_lshlrev_b32 v{40 + 2*i}, 16, v{32 + i}")
        a(f"v_and_b32 v{41 + 2*i}, 0xffff0000, v{32 + i}")
    a("v_add_f32 v36, v40, v41")
    for i in range(2, 8): a(f"v_add_f32 v36, v36, v{40 + i}")
    wave_allreduce(a, 36, 37)
    a(f"v_mul_f32 v36, {f32(1.0/512)}, v36")
    for i in range(8): a(f"v_sub_f32 v{40 + i}, v{40 + i}, v36")
    a("v_mul_f32 v38, v40, v40")
    for i in range(1, 8): a(f"v_fmac_f32 v38, v{40 + i}, v{40 + i}")
    wave_allreduce(a, 38, 37)
    a(f"v_mov_b32 v37, {f32(1e-5)}")
    a(f"v_fmac_f32 v37, {f32(1.0/512)}, v38")
    a("v_rsq_f32 v37, v37")
    for i in range(8): a(f"v_mul_f32 v{40 + i}, v{40 + i}, v37")
    for i in range(4): a(f"v_cvt_pk_bf16_f32 v{96 + i}, v{40 + 2*i}, v{41 + 2*i}")
    a("v_lshrrev_b32 v4, 2, v1")
    a("v_lshlrev_b32 v4, 10, v4")
    a("v_and_b32 v5, 3, v1")
    a("v_lshl_add_u32 v4, v5, 8, v4")
    a(f"s_lshr_b32 s12, s{kRow}, 4")
    a("s_lshl_b32 s12, s12, 14")
    a(f"s_and_b32 s13, s{kRow}, 15")
    a("s_lshl_b32 s13, s13, 4")
    a("s_add_u32 s12, s12, s13")
    a(f"buffer_store_dwordx4 v[96:99], v4, s[4:7], s12 offen{SC}"); vm.issue("lnst")
    a("s_lshr_b32 s12, s2, 3")
    a("s_and_b32 s13, s2, 7")
    a("s_cmp_eq_u32 s3, 2")
    a("s_cselect_b64 s[8:9], s[66:67], s[64:65]")
    a(f"s_mov_b32 s10, {512 * 8192}")
    a(f"s_cselect_b32 s10, {512 * 2752}, s10")
    a("s_cmp_eq_u32 s3, 3")
    a("s_cselect_b64 s[8:9], s[52:53], s[8:9]")
    a(f"s_cselect_b32 s10, {2048 * 1024}, s10")
    a("s_and_b32 s9, s9, 0xffff")
    a("s_mov_b32 s11, 0x00020000")
    a("s_lshl_b32 s14, s3, 5")
    a("s_add_u32 s14, s14, s12")
    a("s_lshl_b32 s14, s14, 16")
    a("s_lshl_b32 s15, s13, 10")
    a("s_add_u32 s14, s14, s15")
    a("s_lshl_b32 s15, s13, 5")
    a("s_add_u32 s15, s15, s12")
    a("s_lshl_b32 s15, s15, 13")
    a("s_cmp_ge_u32 s3, 2")
    a("s_cselect_b32 s51, s15, s14")
    a("s_cselect_b64 vcc, -1, 0")
    a("s_lshr_b32 s15, s15, 1")
    a(f"s_or_b32 s15, s15, {1024 * 1024}")
    a("s_cmp_eq_u32 s3, 3")
    a("s_cselect_b32 s51, s15, s51")
    a("v_lshlrev_b32 v8, 7, v1")
    a("v_lshrrev_b32 v4, 3, v1")
    a("v_lshlrev_b32 v4, 13, v4")
    a("v_and_b32 v5, 7, v1")
    a("v_lshl_add_u32 v29, v5, 7, v4")
    a("v_cndmask_b32 v29, v29, v8, vcc")
    def qdma(st):
        base = RING + (st & 3) * STG
        out = []
        for m in range(2):
            out.append([f"s_add_u32 m0, s{qL2k}, {base + m * 1024}",
                        f"s_add_u32 s12, s{qWq}, {(st * 64 + 4 * m) * 8192}",
                        f"buffer_load_dwordx4 v12, s[16:19], s12 offen lds"])
        out.append([f"s_add_u32 m0, s{qL1k}, {base + 16384}",
                    f"s_add_u32 s12, s{qWin}, {st * 64 * 2752}",
                    f"buffer_load_dwordx4 v13, s[20:23], s12 offen lds"])
        return out
    def xload(ks):
        out = []
        for T in range(2):
            r = XF + 8 * (ks & 3) + 4 * T
            out.append([f"s_add_u32 s12, s{qXN}, {T * 16384 + (ks >> 2) * 4096}",
                        f"buffer_load_dwordx4 v[{r}:{r+3}], v2, s[4:7], s12 offen offset:{(ks & 3) * 1024}{SC}"])
        return out
    def kvstore(j, t, ps):
        out = [f"s_add_u32 s12, s{kST}, {ps * 32 * 8192 + (j >> 2) * 8192}"]
        if (j >> 1) & 1: out.append(f"s_add_u32 s12, s12, s{kSA}")
        if OPT.get("nost"): out.append(f"s_mov_b32 s12, {OOB}")
        out.append(f"buffer_store_dwordx4 v[{t}:{t+3}], v27, s[4:7], s12 offen offset:{(j & 1) * 256}{'' if OPT.get('plain') else SC}")
        return out
    def pack(j, t, acc, isV):
        kt, x, y = j >> 2, (j >> 1) & 1, j & 1
        tiles = [(2 * kt + e, 2 * x + y) for e in range(2)] if isV else [(2 * kt + y, 2 * x + e) for e in range(2)]
        out = []
        for i, (rt, nt) in enumerate(tiles):
            r = acc + 16 * rt + 4 * nt
            out.append(f"v_cvt_pk_bf16_f32 v{t + 2*i}, v{r}, v{r+1}")
            out.append(f"v_cvt_pk_bf16_f32 v{t + 2*i + 1}, v{r+2}, v{r+3}")
        return out
    F2 = (32, 64)
    def kreads(c, ks, F):
        st = c % 3; hi = st == 2; off = 0 if hi else st * 49152
        xs = [f"ds_read_b128 v[{F + 4*rt}:{F + 4*rt + 3}], v{14 + 2*hi + ks} offset:{off + rt * 2048}" for rt in range(4)]
        ws = []
        for nt in range(4):
            b = F + 16 + 4 * nt
            ws.append(f"ds_read_b64_tr_b16 v[{b}:{b+1}], v{18 + 4*hi + nt} offset:{off + ks * 8192}")
            ws.append(f"ds_read_b64_tr_b16 v[{b+2}:{b+3}], v{18 + 4*hi + nt} offset:{off + ks * 8192 + 1024}")
        return [xs[0]] + ws + xs[1:]
    def kmfma(F, acc0, isV, first, fill):
        j = 0
        for rt in range(4):
            for nt in range(4):
                acc = acc0 + 16 * rt + 4 * nt
                x = f"v[{F + 4*rt}:{F + 4*rt + 3}]"; w = f"v[{F + 16 + 4*nt}:{F + 16 + 4*nt + 3}]"
                A, B = (x, w) if isV else (w, x)
                a(f"v_mfma_f32_16x16x32_bf16 v[{acc}:{acc+3}], {A}, {B}, {'0' if first else f'v[{acc}:{acc+3}]'}")
                for grp, tag in fill.get(j, []): emit([grp], tag)
                j += 1
    a("s_barrier")
    stamp(a, 1)
    for s in kreads(0, 0, F2[0]): a(s)
    a(f"s_cmp_eq_u32 s{kIsV}, 0")
    a(f"s_cbranch_scc0 {N}_kv_v")
    snap = list(vm.q)
    for isV in (0, 1):
        vm.q = list(snap)
        if isV: a.label(f"{N}_kv_v")
        for c in range(16):
            acc0 = 128 + 64 * (c >> 3)
            if c == 8: stamp(a, 14)
            a("s_waitcnt lgkmcnt(0)")
            fill = {}
            def put(j, grp, tag=None): fill.setdefault(j, []).append((grp, tag))
            for j, s in enumerate(kreads(c, 1, F2[1])): put(j, [s])
            if c >= 8:
                put(4, pack(c - 8, 28, 128, isV))
                put(8, kvstore(c - 8, 28, 0), "st")
            if c == 1:
                l = a.newlabel("flag")
                put(13, ["s_or_b32 s12, s2, s3", f"s_cbranch_scc1 {l}", "v_mov_b32 v8, 0", "v_mov_b32 v9, 1",
                         "buffer_store_dword v9, v8, s[28:31], 0 offen sc1", ("label", l)], "misc")
            if c == 2 and not OPT.get("nowarm"):
                l = a.newlabel("warm")
                put(13, ["s_cmp_ge_u32 s3, 4", f"s_cbranch_scc1 {l}", "buffer_load_dword v28, v29, s[8:11], s51 offen", ("label", l)], "misc")
            if c == 3: put(13, ["v_mov_b32 v8, 0", "buffer_load_dword v26, v8, s[28:31], 0 offen sc1"], "flag")
            kmfma(F2[0], acc0, isV, (c & 7) == 0, fill)
            if c < 15:
                a(f"s_waitcnt vmcnt({vm.after(('k', c + 1))}) lgkmcnt(0)")
                a("s_barrier")
            else:
                a("s_waitcnt lgkmcnt(0)")
            fill = {}
            if c < 15:
                for j, s in enumerate(kreads(c + 1, 0, F2[0])): put(j, [s])
            if c + 3 < 16:
                for i, g in enumerate(kdma(c + 3)): put(1 + 2 * i, g, ("k", c + 3))
            if c == 6:
                lw = a.newlabel("initw"); ld = a.newlabel("initd")
                a("s_cmp_lg_u32 s3, 0")
                a(f"s_cbranch_scc1 {ld}")
                a("s_mov_b32 s15, 0x20000")
                a.label(lw)
                a("v_cmp_eq_u32 vcc, 0, v26")
                a(f"s_cbranch_vccz {ld}")
                a("s_sleep 8")
                a("v_mov_b32 v8, 0")
                a("buffer_load_dword v26, v8, s[28:31], 0 offen sc1")
                a("s_waitcnt vmcnt(0)")
                a("s_sub_u32 s15, s15, 1")
                a("s_cmp_lg_u32 s15, 0")
                a(f"s_cbranch_scc1 {lw}")
                a.label(ld)
                a("s_lshr_b32 s13, s2, 4")
                signal(a, 13, 0)
            if c == 12:
                a(f"s_add_u32 s13, s{sTILE}, {C_XN}")
                poll_issue(a, 13, 26); vm.issue("pxn")
            if c == 13:
                srd(a, 16, 64, 65, 512 * 8192)
                srd(a, 20, 66, 67, 512 * 2752)
                for i, g in enumerate(qdma(0)): put(1 + 2 * i, g, ("w", 0))
            if c == 14:
                a(f"s_add_u32 s13, s{sTILE}, {C_XN}")
                poll_check(a, 13, 26, 16)
                i = 0
                for ks in range(4):
                    for g in xload(ks): put(i, g, ("x", ks)); i += 1
                for st in (1, 2):
                    for g in qdma(st): put(i, g, ("w", st)); i += 1
            kmfma(F2[1], acc0, isV, False, fill)
        stamp(a, 2)
        for j in range(8):
            for s in pack(j, PK + 4 * j, 192, isV): a(s)
        if not isV: a(f"s_branch {N}_kv_done")
    a.label(f"{N}_kv_done")
    a("v_and_b32 v4, 15, v1")
    a("v_lshrrev_b32 v5, 4, v1")
    a("v_lshrrev_b32 v6, 2, v4")
    a("v_and_b32 v7, 1, v5")
    a("v_lshl_or_b32 v8, v7, 2, v6")
    a("v_lshl_add_u32 v9, v5, 3, v6")
    a("v_and_b32 v4, 3, v1")
    a("v_lshlrev_b32 v4, 3, v4")
    a("v_lshl_add_u32 v3, v9, 8, v4")
    a(f"v_add_u32 v3, {RING}, v3")
    for dt in range(8):
        a(f"v_xor_b32 v25, {dt}, v8")
        a(f"v_lshl_add_u32 v{14 + dt}, v25, 5, v3")
    a("v_lshrrev_b32 v6, 1, v6")
    a("v_lshl_or_b32 v8, v7, 1, v6")
    a("v_lshl_add_u32 v3, v9, 7, v4")
    a(f"v_add_u32 v3, {RING + 16384}, v3")
    for ft in range(3):
        a(f"v_xor_b32 v25, {ft}, v8")
        a(f"v_lshl_add_u32 v{22 + ft}, v25, 5, v3")
    def qread(ks, j):
        e = ks & 1; b = WQ + 4 * j
        o, d = (e * 8192, 1024) if j < 8 else (e * 4096, 512)
        return [f"ds_read_b64_tr_b16 v[{b}:{b+1}], v{14 + j} offset:{o}",
                f"ds_read_b64_tr_b16 v[{b+2}:{b+3}], v{14 + j} offset:{o + d}"]
    def kvpre(k):
        src, tile, lds = ((sKSRC, 0, 0), (sKSRC, 1, 16384), (sVSRC, 0, 65536), (sKSRC, 2, 32768), (sVSRC, 1, 81920))[k]
        return [f"s_add_u32 m0, s{qL2k}, {lds}",
                f"s_add_u32 s12, s{src}, s{qL2k}",
                f"s_add_u32 s12, s12, {tile * 16384}"] + (["s_cmp_lt_u32 s3, 4", f"s_cselect_b32 s12, {OOB}, s12"] if k == 2 else []) + [
                f"buffer_load_dwordx4 v2, s[4:7], s12 offen{SC} lds",
                f"buffer_load_dwordx4 v2, s[4:7], s12 offen offset:1024{SC} lds"]
    a(f"s_waitcnt vmcnt({vm.after(('w', 0))})")
    a("s_barrier")
    stamp(a, 3)
    for j in range(11):
        for s in qread(0, j): a(s)
    st_at = {2 * j: [j] for j in range(8)}
    for ks in range(16):
        st = ks >> 1
        need = [("x", ks)]
        if ks & 1 and ks < 15: need.append(("w", st + 1))
        if ks == 13: need.append("pkv")
        a(f"s_waitcnt vmcnt({vm.after(*need)})")
        if ks & 1 and ks < 15:
            a("s_barrier")
            d = STG if ((st + 1) & 3) else -3 * STG
            for r in range(14, 25):
                a(f"v_add_u32 v{r}, {d}, v{r}" if d > 0 else f"v_subrev_u32 v{r}, {-d}, v{r}")
        if ks == 5: signal(a, kCKV, 0)
        if ks == 13:
            a(f"s_add_u32 s13, s{sH}, {C_KV}")
            poll_check(a, 13, 26, 8)
        extra = []
        for j in st_at.get(ks, []): extra.append((kvstore(j, PK + 4 * j, 1), "st"))
        if ks & 1 and st + 3 < 8: extra += [(g, ("w", st + 3)) for g in qdma(st + 3)]
        if ks >= 13: extra += [(kvpre(k), "kv") for k in ((0, 1), (2, 3), (4,))[ks - 13]]
        X = [f"v[{XF + 8 * (ks & 3) + 4 * T}:{XF + 8 * (ks & 3) + 4 * T + 3}]" for T in range(2)]
        for dt in range(8):
            if dt % 3 == 0: a(f"s_waitcnt lgkmcnt({15 if ks < 15 else max(0, 16 - 2 * dt)})" if not (ks == 15 and dt == 0) else "s_waitcnt lgkmcnt(15)")
            for T in range(2):
                acc = QACC + 8 * dt + 4 * T
                a(f"v_mfma_f32_16x16x32_bf16 v[{acc}:{acc+3}], v[{WQ + 4*dt}:{WQ + 4*dt + 3}], {X[T]}, {'0' if ks == 0 else f'v[{acc}:{acc+3}]'}")
            if ks < 15:
                for s in qread(ks + 1, dt): a(s)
            if extra and dt >= 1:
                g, tag = extra.pop(0); emit([g], tag)
        a(f"s_waitcnt lgkmcnt({15 if ks < 15 else 0})")
        l2 = a.newlabel("z2"); l3 = a.newlabel("zd")
        a(f"s_cmp_eq_u32 s{sZT}, 0")
        a(f"s_cbranch_scc0 {l2}")
        for zt in range(2):
            if zt: a.label(l2)
            for ft in range(3):
                for T in range(2):
                    acc = ZACC + 8 * ft + 4 * T
                    w = f"v[{WQ + 32 + 4*ft}:{WQ + 32 + 4*ft + 3}]"
                    A, B = (X[T], w) if zt else (w, X[T])
                    a(f"v_mfma_f32_16x16x32_bf16 v[{acc}:{acc+3}], {A}, {B}, {'0' if ks == 0 else f'v[{acc}:{acc+3}]'}")
                if ks < 15:
                    for s in qread(ks + 1, 8 + ft): a(s)
            if not zt: a(f"s_branch {l3}")
        a.label(l3)
        if ks + 4 < 16: emit(xload(ks + 4), ("x", ks + 4))
        if ks == 11:
            a(f"s_add_u32 s13, s{sH}, {C_KV}")
            poll_issue(a, 13, 26); vm.issue("pkv")
    stamp(a, 4)
    a.settle(8)
    c0 = -2.0 * math.sqrt(2.0 / math.pi) * math.log2(math.e); c1 = c0 * 0.044715
    a(f"s_mov_b32 s9, {f32(c1)}")
    a(f"v_mov_b32 v3, {f32(c0)}")
    for grp in range(3):
        regs = list(range(ZACC + 8 * grp, ZACC + 8 * grp + 8)); T0 = 56
        for k, r in enumerate(regs): a(f"v_mul_f32 v{T0 + k}, v{r}, v{r}")
        for k, r in enumerate(regs): a(f"v_fma_f32 v{T0 + k}, v{T0 + k}, s9, v3")
        for k, r in enumerate(regs): a(f"v_mul_f32 v{T0 + k}, v{T0 + k}, v{r}")
        for k, r in enumerate(regs): a(f"v_exp_f32 v{T0 + k}, v{T0 + k}")
        for k, r in enumerate(regs): a(f"v_add_f32 v{T0 + k}, 1.0, v{T0 + k}")
        for k, r in enumerate(regs): a(f"v_rcp_f32 v{T0 + k}, v{T0 + k}")
        for k, r in enumerate(regs): a(f"v_mul_f32 v{r}, v{T0 + k}, v{r}")
        for T in range(2):
            r = ZACC + 8 * grp + 4 * T
            a(f"v_cvt_pk_bf16_f32 v{64 + 4*grp + 2*T}, v{r}, v{r+1}")
            a(f"v_cvt_pk_bf16_f32 v{65 + 4*grp + 2*T}, v{r+2}, v{r+3}")
    a("v_and_b32 v4, 15, v1")
    a("v_lshrrev_b32 v5, 5, v1")
    a("v_lshl_add_u32 v4, v5, 4, v4")
    a("v_lshlrev_b32 v4, 4, v4")
    a("v_bfe_u32 v5, v1, 4, 1")
    a("v_lshl_add_u32 v4, v5, 3, v4")
    a("s_movk_i32 s11, 512")
    a(f"s_cmp_eq_u32 s{sZT}, 0")
    a("s_cselect_b64 vcc, -1, 0")
    a("v_cndmask_b32 v4, v4, v2, vcc")
    a("s_cselect_b32 s10, 43, 86")
    a(f"s_cselect_b32 s11, {22 * 1024}, s11")
    for ft in range(3):
        a(f"s_add_u32 s12, s{sN0}, {ft}")
        a(f"s_mul_i32 s13, s{sR0}, 22")
        a("s_lshr_b32 s14, s12, 1")
        a("s_add_u32 s13, s13, s14")
        a("s_lshl_b32 s13, s13, 10")
        a("s_and_b32 s14, s12, 1")
        a("s_lshl_b32 s14, s14, 3")
        a("s_add_u32 s13, s13, s14")
        a(f"s_add_u32 s13, s13, {Z1F}")
        a("s_sub_u32 s14, s12, 43")
        a("s_lshl_b32 s14, s14, 6")
        a(f"s_lshr_b32 s15, s{sR0}, 1")
        a("s_add_u32 s14, s14, s15")
        a("s_lshl_b32 s14, s14, 10")
        a(f"s_add_u32 s14, s14, {Z2F}")
        a(f"s_cmp_eq_u32 s{sZT}, 0")
        a("s_cselect_b32 s13, s13, s14")
        a("s_cmp_lt_u32 s12, s10")
        a(f"s_cselect_b32 s13, s13, {OOB}")
        for T in range(2):
            a(f"buffer_store_dwordx2 v[{64 + 4*ft + 2*T}:{65 + 4*ft + 2*T}], v4, s[4:7], s13 offen{SC}"); vm.issue("z")
            if T == 0: a("s_add_u32 s13, s13, s11")
    a(f"s_mov_b32 s8, {f32(128 ** -0.5 * math.log2(math.e))}")
    for dt in range(8):
        D, e = dt >> 1, dt & 1
        for T in range(2):
            r = QACC + 8 * dt + 4 * T
            for k in range(4): a(f"v_mul_f32 v{r + k}, s8, v{r + k}")
            q = QF + (2 * D + T) * 4 + 2 * e
            a(f"v_cvt_pk_bf16_f32 v{q}, v{r}, v{r+1}")
            a(f"v_cvt_pk_bf16_f32 v{q+1}, v{r+2}, v{r+3}")
    for D in range(4):
        for k in range(4):
            a(f"v_permlane16_swap_b32 v{QF + 8*D + k}, v{QF + 8*D + 4 + k}")
    a(f"s_waitcnt vmcnt({vm.after('kv')})")
    stamp(a, 5)

def finish(a, nst):
    if STAMP:
        a("s_waitcnt vmcnt(0)")
        stamp(a, nst)
        a("s_waitcnt lgkmcnt(0)")
        a("s_lshl_b32 s100, s2, 3")
        a("s_add_u32 s100, s100, s3")
        a("s_lshl_b32 s100, s100, 6")
        a(f"s_add_u32 s100, s100, {TSO}")
        a("v_mov_b32 v3, 0")
        for i in range(nst + 1):
            a(f"v_mov_b32 v2, s{68 + 2*i}")
            a(f"buffer_store_dword v2, v3, s[4:7], s100 offen offset:{4*i}")
    a.label(f"{N}_end")
    a("s_endpgm")

def build():
    import mg_attn, mg_tail
    a = Asm()
    front(a); mg_attn.attention(a); mg_tail.phase_s(a); mg_tail.phase_o(a); finish(a, 15)
    hdr = open("cdna_kernels/" + NAME + ".s.ref").read().split("\n")
    top = [l for l in hdr if l.startswith(";") and "@launch" not in l]
    out = "\n".join(top) + "\n; @launch grid=(256,1,1) block=(512,1,1) lds=163840\n"
    out += '.amdgcn_target "amdgcn-amd-amdhsa--gfx950"\n.text\n' + a.text()
    out += '.section .rodata,"a"\n.p2align 6\n' + kernel_desc(N, 256)
    return out

def main():
    import mg as M
    if "--stamp" in sys.argv:
        M.STAMP = True; sys.argv.remove("--stamp")
    for x in list(sys.argv):
        if x.startswith("-D"):
            k, _, v = x[2:].partition("="); M.OPT[k] = int(v or 1); sys.argv.remove(x)
    txt = M.build()
    if not M.OPT.get("noalign"):
        import align
        txt, npro, nnop = align.align(txt)
        print("align: promoted", npro, "nops", nnop)
    open(sys.argv[1] if len(sys.argv) > 1 else "k.s", "w").write(txt)
```

```python
from asmlib import *
import mg as G
from mg import sH, sI, sTILE, sR0, sZT, sN0, sNT, sU, sUC, sNI, sKSRC, sVSRC, sTHR, QF
aW, aWV, aLim, aUnit, aK, aV, aHook, aKL, aVL, aT, aTL = 46, 47, 48, 49, 52, 53, 54, 56, 57, 58, 59
LOOK = G.OPT.get('look', 0)
O, S, NEGM, FR, P, E, T_, LS = 192, (160, 176), 144, 80, (64, 72), 56, (54, 55), 53
vK, vV, vD, vPL, vT = 20, 21, 22, 23, 24
ORDER = [0, 1, 2, 3, 8, 9, 10, 11, 4, 5, 6, 7, 12, 13, 14, 15]
HOOKS = (2, 3, 6, 8)

def attention(a):
    name = G.N; SC = G.SC
    def fr(m): return f"v[{FR + 4 * (m & 7)}:{FR + 4 * (m & 7) + 3}]"
    def rdK(m, half): return f"ds_read_b128 {fr(m)}, v{vK} offset:{half * 8192 + (m & 7) * 1024}"
    def rdV(m, half): return f"ds_read_b128 {fr(m)}, v{vV} offset:{half * 8192 + (m & 7) * 1024}"
    def qk(m, p, c=None):
        d = f"v[{S[p]}:{S[p]+15}]"
        if c is None: c = f"v[{NEGM}:{NEGM+15}]" if m == 0 else d
        return f"v_mfma_f32_32x32x16_bf16 {d}, {fr(m)}, v[{QF + 4*m}:{QF + 4*m + 3}], {c}"
    def pv(m, p):
        s, dt = (m & 7) >> 2, m & 3
        o = f"v[{O + 16*dt}:{O + 16*dt + 15}]"
        return f"v_mfma_f32_32x32x16_bf16 {o}, {fr(m)}, v[{P[p] + 4*s}:{P[p] + 4*s + 3}], {o}"
    def ex(p, e): return f"v_exp_f32 v{E + (e & 3)}, v{S[p] + ORDER[e]}"
    def ad(p, e):
        if e == 0: return None
        if e == 1: return f"v_add_f32 v{T_[p]}, v{E}, v{E + 1}"
        return f"v_add_f32 v{T_[p]}, v{T_[p]}, v{E + (e & 3)}"
    def cv(p, e):
        return f"v_cvt_pk_bf16_f32 v{P[p] + e // 2}, v{E + ((e - 1) & 3)}, v{E + (e & 3)}" if e & 1 else None
    def slot(p, e):
        out = []
        if e >= 1: out.append(ad(p, e - 1))
        if e < 16: out.append(ex(p, e))
        if e >= 1: out.append(cv(p, e - 1))
        return [x for x in out if x]
    cmp_ = lambda p: f"v_cmp_nge_f32 vcc, s{sTHR}, v{T_[p]}"
    lsadd = lambda p: f"v_add_f32 v{LS}, v{LS}, v{T_[p]}"
    sites = []; hooks = []; astamps = []; AST = (1, 3, 7, 11, 15, 17)
    def check(p):
        l = a.newlabel("rs"); back = a.newlabel("rb")
        a(f"s_cbranch_vccnz {l}")
        a.label(back)
        sites.append((l, back, p))
    addr_salu = [f"s_add_u32 s{aV}, s{sNI}, 1", f"s_and_b32 s{aV}, s{aV}, 3", f"s_lshl_b32 s{aV}, s{aV}, 14",
                 f"s_add_u32 s{aK}, s{aV}, 0x4000", f"s_and_b32 s{aK}, s{aK}, 0xc000", f"s_add_u32 s{aV}, s{aV}, 0x10000"]
    setV = f"v_add_u32 v{vV}, s{aV}, v2"; setK = f"v_add_u32 v{vK}, s{aK}, v2"
    def dma_groups():
        g = []
        for src, d, base, lim in ((sKSRC, 3, aW, aKL), (sVSRC, 2, aWV, aVL)):
            pre = [f"s_add_u32 s10, s{sNI}, {d}", "s_lshl_b32 s11, s10, 14", "s_and_b32 s10, s11, 0xc000",
                   f"s_add_u32 m0, s10, s{base}", f"s_add_u32 s11, s11, s{src}", f"s_min_u32 s11, s11, s{lim}"]
            for j in range(4):
                g.append((pre if j == 0 else []) + ([] if G.OPT.get("nodma") else [f"buffer_load_dwordx4 v2, s[4:7], s11 offen offset:{j * 1024}{SC} lds"]))
        return g
    def hook():
        l = a.newlabel("hk"); back = a.newlabel("hb")
        a(f"s_bitcmp1_b32 s{aHook}, s{sNI}")
        a(f"s_cbranch_scc1 {l}")
        a.label(back)
        hooks.append((l, back))
    def bar(isA):
        if isA: a("s_waitcnt vmcnt(8)")
        a("s_barrier")
        a(f"s_add_u32 s{sNI}, s{sNI}, 1")
        if G.OPT.get("astamp") and G.STAMP and not isA:
            l = a.newlabel("as"); back = a.newlabel("ab")
            a(f"s_bitcmp1_b32 s55, s{sNI}")
            a(f"s_cbranch_scc1 {l}")
            a.label(back)
            astamps.append((l, back))
    def begin_interval(isA):
        for s in addr_salu: a(s)
        bar(isA)
        a(setV); a(setK)
        if isA:
            hook()
            for g in dma_groups():
                for s in g: a(s)
    def mask(p):
        prs = ("s[8:9]", "s[10:11]", "s[12:13]", "s[14:15]")
        for r in range(16):
            a(f"v_cmp_le_i32 {prs[r & 3]}, {8 * (r >> 2) + (r & 3)}, v{vD}")
            if r & 3 == 3:
                for k in range(4): a(f"v_cndmask_b32 v{S[p] + r - 3 + k}, v3, v{S[p] + r - 3 + k}, {prs[k]}")
    def rowmax(p, dst, tmp):
        a(f"v_max3_f32 v{dst}, v{S[p]}, v{S[p]+1}, v{S[p]+2}")
        for k in range(3, 15, 2): a(f"v_max3_f32 v{dst}, v{dst}, v{S[p]+k}, v{S[p]+k+1}")
        a(f"v_max_f32 v{dst}, v{dst}, v{S[p]+15}")
        a(f"v_mov_b32 v{tmp}, v{dst}")
        a(f"v_permlane32_swap_b32 v{dst}, v{tmp}")
        a(f"v_max_f32 v{dst}, v{dst}, v{tmp}")
    def early(p, n=6):
        for e in range(n):
            for s in slot(p, e): a(s)
    def step(p, isA, do_early=True, do_pv=True, first=0, skip_mfma0=False, fused=True, ls=True, mid=None, tailcmp=None):
        dg = dma_groups() if (isA and fused and p == 0) else []
        for m in range(first, 16):
            mf = None if (m >= 8 and not do_pv) else (qk(m, p ^ 1) if m < 8 else pv(m, p ^ 1))
            if mf and not (m == first and skip_mfma0):
                if m % 2 == 0: a("s_waitcnt lgkmcnt(6)")
                a(mf)
            if m == 15: check(p)
            if mid and m == mid[0]:
                for s in mid[1]: a(s)
            if m == 0 and p == 0 and fused: bar(isA)
            if mf:
                if do_pv: rd = rdV(m, p) if m < 8 else (rdK(m, p) if do_early else None)
                else: rd = rdK(m, p) if do_early else None
                if rd: a(rd)
                elif do_pv and m % 2 == 1 and m < 15: a(f"s_waitcnt lgkmcnt({max(0, 13 - m)})")
                elif not do_pv and m % 2 == 1 and m < 7: a(f"s_waitcnt lgkmcnt({max(0, 5 - m)})")
            if fused and p == 0 and m == 0 and isA: hook()
            if dg and m % 2 == 1:
                for s in dg[m // 2]: a(s)
            if fused and p == 1 and m in (3, 5, 7):
                for s in addr_salu[m - 3:m - 1]: a(s)
            if mid and m == mid[0] - 1: a(mid[2])
            if tailcmp and m == 15: a(tailcmp)
            if m <= 10:
                for s in slot(p, m + 6): a(s)
            if m == 11: a(cmp_(p))
            if m >= 10 and do_early:
                for s in slot(p ^ 1, m - 10): a(s)
            if m == 1 and ls: a(lsadd(p ^ 1))
            if fused and p == 0 and m == 3: a(setK)
            if fused and p == 1 and m == 9: a(setV)
    def last_step(p, do_pv=True, ls=True):
        if do_pv:
            for m in range(8): a(rdV(m, p))
        if ls: a(lsadd(p ^ 1))
        mask(p)
        for e in range(17):
            if do_pv and 8 <= e < 16:
                a(f"s_waitcnt lgkmcnt({15 - e})")
                a(pv(e, p ^ 1))
            for s in slot(p, e): a(s)
        a(cmp_(p))
        check(p)
        a(lsadd(p))
    def final_pv(p):
        for m in range(8): a(rdV(m, p ^ 1))
        for m in range(8):
            a(f"s_waitcnt lgkmcnt({7 - m})")
            a(pv(m, p))
    def epilogue():
        a(f"v_mov_b32 v4, v{LS}")
        a(f"v_permlane32_swap_b32 v{LS}, v4")
        a(f"v_add_f32 v{LS}, v{LS}, v4")
        a(f"v_rcp_f32 v{LS}, v{LS}")
        a("v_bfe_u32 v4, v1, 4, 1")
        a(f"v_mul_u32_u24 v4, {G.AF_KS * 1024}, v4")
        a("v_and_b32 v5, 15, v1")
        a("v_lshrrev_b32 v6, 5, v1")
        a("v_lshl_add_u32 v5, v6, 4, v5")
        a("v_lshl_add_u32 v4, v5, 4, v4")
        a(f"s_mul_i32 s8, s{sR0}, {G.AF_KS}")
        a(f"s_lshl_b32 s9, s{sH}, 2")
        a("s_add_u32 s8, s8, s9")
        a("s_lshl_b32 s8, s8, 10")
        a(f"s_add_u32 s8, s8, {G.AF}")
        for dt in range(4):
            for k in range(16): a(f"v_mul_f32 v{O + 16*dt + k}, v{O + 16*dt + k}, v{LS}")
            for pc in range(2):
                t = FR + 4 * ((2 * dt + pc) & 7)
                for i, g in enumerate((pc, pc + 2)):
                    r = O + 16 * dt + 4 * g
                    a(f"v_cvt_pk_bf16_f32 v{t + 2*i}, v{r}, v{r+1}")
                    a(f"v_cvt_pk_bf16_f32 v{t + 2*i + 1}, v{r+2}, v{r+3}")
                a(f"buffer_store_dwordx4 v[{t}:{t+3}], v4, s[4:7], s8 offen offset:{dt * 1024 + pc * 512}{SC}")

    a("s_load_dwordx2 s[16:17], s[0:1], 64")
    a("s_load_dwordx2 s[20:21], s[0:1], 40")
    a("s_load_dwordx2 s[24:25], s[0:1], 80")
    a(f"s_mov_b32 s{sTHR}, {G.f32(2.0 ** 30)}")
    a(f"s_mov_b32 s{aHook}, {sum(1 << h for h in HOOKS)}")
    a(f"s_mov_b32 s55, {sum(1 << h for h in AST)}")
    a("v_mov_b32 v3, 0xff800000")
    a("v_and_b32 v4, 31, v1")
    a("v_lshrrev_b32 v5, 5, v1")
    a("v_lshlrev_b32 v5, 2, v5")
    a(f"v_sub_u32 v{vD}, v4, v5")
    for r in range(O, O + 64): a(f"v_mov_b32 v{r}, 0")
    a(f"v_mov_b32 v{LS}, 0")
    a(f"s_and_b32 s{aW}, s3, 3")
    a(f"s_lshl_b32 s{aW}, s{aW}, 12")
    a(f"s_add_u32 s{aWV}, s{aW}, 0x10000")
    a(f"s_add_u32 s{aKL}, s{sKSRC}, {524288 - 4096}")
    a(f"s_add_u32 s{aVL}, s{sVSRC}, {8192 + 524288 - 4096}")
    a(f"s_add_u32 s8, s{sVSRC}, 8192")
    a("s_bitcmp1_b32 s3, 1")
    a(f"s_cselect_b32 s{aT}, s8, s{sKSRC}")
    a("s_and_b32 s8, s3, 1")
    a("s_lshl_b32 s8, s8, 13")
    a(f"s_add_u32 s{aT}, s{aT}, s8")
    a(f"s_add_u32 s{aTL}, s{aT}, {31 * 16384}")
    a(f"s_add_u32 s{aT}, s{aT}, {LOOK * 16384}")
    a("v_lshlrev_b32 v25, 7, v1")
    a(f"s_add_u32 s{sKSRC}, s{sKSRC}, s{aW}")
    a(f"s_add_u32 s{sVSRC}, s{sVSRC}, s{aW}")
    a(f"s_mov_b32 s{sNI}, -1")
    a(f"v_mov_b32 v{vK}, v2")
    a("s_waitcnt lgkmcnt(0)")
    G.srd(a, 16, 16, 17, 2048 * 4096)
    G.srd(a, 20, 20, 21, 4096 * 1024)
    G.srd(a, 24, 24, 25, 688 * 1024)
    a("s_barrier")
    for m in range(8): a(rdK(m, 0))
    for m in range(8):
        a("s_waitcnt lgkmcnt(7)")
        a(qk(m, 0, "0" if m == 0 else None))
        a(rdK(m, 1))
    lm = a.newlabel("nomask")
    a(f"s_cmp_eq_u32 s{sU}, 0")
    a(f"s_cbranch_scc0 {lm}")
    a.settle(12)
    mask(0)
    a.label(lm)
    a.settle(12)
    rowmax(0, 4, 5)
    for r in range(16): a(f"v_sub_f32 v{NEGM + r}, 0, v4")
    for r in range(16): a(f"v_sub_f32 v{S[0] + r}, v{S[0] + r}, v4")
    early(0)
    a("s_cmp_ge_u32 s3, 4")
    a(f"s_cbranch_scc1 {name}_at_A")
    for isA in (0, 1):
        k = "AB"[1 - isA]
        if isA: a.label(f"{name}_at_A")
        if not isA:
            for s in addr_salu: a(s)
            a("s_barrier"); a(f"s_add_u32 s{sNI}, s{sNI}, 1"); a(setV); a(setK)
        else:
            begin_interval(isA)
            a(f"s_cmp_lt_u32 s{sU}, 2")
            a(f"s_cbranch_scc1 {name}_at_small")
        a(f"s_sub_u32 s{sUC}, s{sU}, 2")
        step(0, isA, do_pv=False, fused=False, ls=False, tailcmp=f"s_cmp_eq_u32 s{sUC}, 0")
        a("s_waitcnt lgkmcnt(6)")
        a(qk(0, 0))
        if not isA: a("s_waitcnt vmcnt(0)")
        a(f"s_cbranch_scc1 {name}_at_todd{k}")
        a.label(f"{name}_at_loop{k}")
        step(1, isA, skip_mfma0=True)
        step(0, isA, mid=(5, [f"s_cbranch_scc1 {name}_at_teven{k}", f"s_sub_u32 s{sUC}, s{sUC}, 2"], f"s_cmp_eq_u32 s{sUC}, 1"),
             tailcmp=f"s_cmp_lg_u32 s{sUC}, 0")
        a("s_waitcnt lgkmcnt(6)")
        a(qk(0, 0))
        a(f"s_cbranch_scc1 {name}_at_loop{k}")
        a.label(f"{name}_at_todd{k}")
        step(1, isA, do_early=False, skip_mfma0=True, fused=False)
        begin_interval(isA)
        last_step(0)
        final_pv(0)
        a(f"s_branch {name}_at_epi{k}")
        a.label(f"{name}_at_teven{k}")
        step(0, isA, do_early=False, first=5, skip_mfma0=True)
        if isA: a.label(f"{name}_at_u1b")
        last_step(1)
        begin_interval(isA)
        final_pv(1)
        a.label(f"{name}_at_epi{k}")
        a.settle(12)
        if G.OPT.get("astamp"): G.stamp(a, 13, True)
        epilogue()
        if not isA:
            a.label(f"{name}_at_restB")
            a(f"s_cmp_ge_u32 s{sNI}, s{sNT}")
            a(f"s_cbranch_scc1 {name}_at_done")
            a("s_barrier")
            a(f"s_add_u32 s{sNI}, s{sNI}, 1")
            a(f"s_branch {name}_at_restB")
        else:
            def ld_interval(nv):
                if not (G.OPT.get("novm") and nv == 0): a(f"s_waitcnt vmcnt({8 + nv})")
                a("s_barrier")
                a(f"s_add_u32 s{sNI}, s{sNI}, 1")
                hook()
                for g in dma_groups():
                    for s in g: a(s)
            a(f"s_sub_u32 s{aLim}, s{sNT}, 2")
            a.label(f"{name}_at_ld")
            a(f"s_cmp_lt_u32 s{sI}, 2")
            a("s_cselect_b32 s8, 6, -2")
            a(f"s_cmp_eq_u32 s{sNI}, s8")
            a(f"s_cbranch_scc1 {name}_at_lnz")
            a(f"s_cmp_ge_u32 s{sNI}, s{aLim}")
            a(f"s_cbranch_scc1 {name}_at_ld2")
            ld_interval(0)
            a(f"s_branch {name}_at_ld")
            a.label(f"{name}_at_ld2")
            a("s_waitcnt vmcnt(8)")
            a("s_barrier")
            a("s_waitcnt vmcnt(0)")
            a("s_barrier")
            a(f"s_branch {name}_at_done")
            from mg_tail import lnz_parts
            a.label(f"{name}_at_lnz")
            a(f"s_lshl_b32 s{aUnit}, s{sI}, 5")
            a(f"s_add_u32 s{aUnit}, s{aUnit}, s{sH}")
            a(f"s_lshl_b32 s{aUnit}, s{aUnit}, 2")
            a("s_and_b32 s8, s3, 3")
            a(f"s_add_u32 s{aUnit}, s{aUnit}, s8")
            def zidx():
                a(f"s_lshr_b32 s8, s{aUnit}, 4")
                a("s_sub_u32 s9, 15, s8")
                a("s_min_u32 s8, s8, s9")
                a(f"s_add_u32 s8, s8, {G.C_Z}")
            load, sums, stats, store = lnz_parts(a, aUnit, (50, 51))
            def p0(): zidx(); G.poll_issue(a, 8, 26)
            def p2(): zidx(); G.poll_check(a, 8, 26, 32); load()
            def pz():
                a(f"s_and_b32 s8, s{aUnit}, 7")
                a(f"s_add_u32 s8, s8, {G.C_Z2N}")
                G.signal(a, 8, None)
            nop = lambda: None
            parts = [(p0, 1), (nop, 0), (p2, 11), (nop, 0), (lambda: sums(0, 6), 0), (lambda: sums(6, 11), 0), (stats, 0),
                     (lambda: store(0, 6), 6), (lambda: store(6, 11), 5), (nop, 0), (pz, 1)]
            for part, nv in parts:
                part()
                ld_interval(nv)
            a(f"s_branch {name}_at_ld")
            a.label(f"{name}_at_small")
            a(f"s_cmp_eq_u32 s{sU}, 0")
            a(f"s_cbranch_scc1 {name}_at_u0")
            step(0, isA, do_early=False, do_pv=False, fused=False, ls=False)
            a(f"s_branch {name}_at_u1b")
            a.label(f"{name}_at_u0")
            a("s_waitcnt lgkmcnt(0)")
            last_step(0, do_pv=False, ls=False)
            final_pv(0)
            a(f"s_branch {name}_at_epiA")
    for l, back in astamps:
        a.label(l)
        for k, n in enumerate(AST):
            nx = a.newlabel("an")
            a(f"s_cmp_lg_u32 s{sNI}, {n}")
            a(f"s_cbranch_scc1 {nx}")
            G.stamp(a, 7 + k, True)
            a.label(nx)
        a(f"s_branch {back}")
    for l, back, p in sites:
        a.label(l)
        a(f"s_call_b64 s[62:63], {name}_rare{p}")
        a(f"s_branch {back}")
    for l, back in hooks:
        a.label(l)
        a(f"s_call_b64 s[62:63], {name}_hook")
        a(f"s_branch {back}")
    for p in range(2):
        a.label(f"{name}_rare{p}")
        a.settle(16)
        rowmax(p, 4, 5)
        a("v_max_f32 v4, 0, v4")
        a("v_sub_f32 v5, 0, v4")
        a("v_exp_f32 v5, v5")
        for r in range(16): a(f"v_sub_f32 v{NEGM + r}, v{NEGM + r}, v4")
        for r in range(16): a(f"v_sub_f32 v{S[p] + r}, v{S[p] + r}, v4")
        for r in range(16): a(f"v_sub_f32 v{S[p^1] + r}, v{S[p^1] + r}, v4")
        for r in range(64): a(f"v_mul_f32 v{O + r}, v{O + r}, v5")
        a(f"v_mul_f32 v{LS}, v{LS}, v5")
        for e in range(17):
            for s in slot(p, e): a(s)
        early(p ^ 1, 5)
        a.settle(4)
        a("s_setpc_b64 s[62:63]")
    a.label(f"{name}_hook")
    for h in HOOKS:
        nx = a.newlabel("hn")
        a(f"s_cmp_lg_u32 s{sNI}, {h}")
        a(f"s_cbranch_scc1 {nx}")
        if h == 2:
            a(f"s_add_u32 s8, s{sI}, {G.C_Z}")
            G.signal(a, 8, 4)
            a(f"s_add_u32 s8, s{G.kCKV}, 32")
            G.signal(a, 8, 4)
        elif h == 3:
            a("v_lshlrev_b32 v8, 7, v1")
            a("s_lshr_b32 s8, s2, 3")
            a("s_lshl_b32 s8, s8, 2")
            a("s_and_b32 s9, s3, 3")
            a("s_add_u32 s8, s8, s9")
            a("s_and_b32 s9, s2, 7")
            a("s_lshl_b32 s9, s9, 7")
            a("s_add_u32 s8, s8, s9")
            a("s_lshl_b32 s8, s8, 13")
            a(f"buffer_load_dword v{vT}, v8, s[16:19], s8 offen")
            a(f"buffer_load_dword v{vT}, v8, s[20:23], s8 offen")
            a(f"s_sub_u32 s8, s8, {512 * 8192}")
            a(f"buffer_load_dword v{vT}, v8, s[24:27], s8 offen")
        elif h == 6:
            a(f"s_add_u32 s8, s{sH}, {G.C_KV + 32}")
            G.poll_issue(a, 8, vPL)
        elif h == 8:
            a(f"s_add_u32 s8, s{sH}, {G.C_KV + 32}")
            G.poll_check(a, 8, vPL, 8)
        a("s_setpc_b64 s[62:63]")
        a.label(nx)
    a("s_setpc_b64 s[62:63]")
    a.label(f"{name}_at_done")
    a("s_waitcnt vmcnt(0)")
    a("s_barrier")
    a(f"s_add_u32 s8, s{sI}, {G.C_CTX}")
    G.signal(a, 8, 0)
    G.stamp(a, 6)
```

```python
from asmlib import *
import mg as G

def lnz_parts(a, sUnit, st):
    SC = G.SC
    PZ, SUM, SQ, TA, TB = 64, 108, 116, 124, 125
    s0, s1 = st[0], st[1]
    def load():
        a("v_lshrrev_b32 v4, 4, v1")
        a("v_lshlrev_b32 v4, 16, v4")
        a("v_and_b32 v5, 15, v1")
        a("v_lshl_add_u32 v6, v5, 4, v4")
        a("v_mov_b32 v4, 0x20000000")
        a("v_cmp_gt_u32 vcc, 48, v1")
        a("v_cndmask_b32 v7, v4, v6, vcc")
        a(f"s_lshl_b32 s{s0}, s{sUnit}, 8")
        for m in range(11):
            a(f"s_add_u32 s{s1}, s{s0}, {G.Z2F + m * 262144}")
            a(f"buffer_load_dwordx4 v[{PZ + 4*m}:{PZ + 4*m + 3}], v{7 if m == 10 else 6}, s[4:7], s{s1} offen{SC}")
    def sums(lo=0, hi=11):
        for m in range(lo, hi):
            for d in range(4):
                r = PZ + 4 * m + d
                a(f"v_lshlrev_b32 v{TA}, 16, v{r}")
                a(f"v_and_b32 v{TB}, 0xffff0000, v{r}")
                if m == 0:
                    a(f"v_mov_b32 v{SUM + 2*d}, v{TA}"); a(f"v_mov_b32 v{SUM + 2*d + 1}, v{TB}")
                    a(f"v_mul_f32 v{SQ + 2*d}, v{TA}, v{TA}"); a(f"v_mul_f32 v{SQ + 2*d + 1}, v{TB}, v{TB}")
                else:
                    a(f"v_add_f32 v{SUM + 2*d}, v{SUM + 2*d}, v{TA}"); a(f"v_add_f32 v{SUM + 2*d + 1}, v{SUM + 2*d + 1}, v{TB}")
                    a(f"v_fmac_f32 v{SQ + 2*d}, v{TA}, v{TA}"); a(f"v_fmac_f32 v{SQ + 2*d + 1}, v{TB}, v{TB}")
    def stats():
        for mod in ("quad_perm:[1,0,3,2]", "quad_perm:[2,3,0,1]", "row_half_mirror", "row_mirror"):
            for j in range(16):
                a(f"v_add_f32 v{SUM + j}, v{SUM + j}, v{SUM + j} {mod} row_mask:0xf bank_mask:0xf")
        for op in ("v_permlane16_swap_b32", "v_permlane32_swap_b32"):
            for j0 in range(0, 16, 4):
                for j in range(4): a(f"v_mov_b32 v{126 + j}, v{SUM + j0 + j}")
                for j in range(4): a(f"{op} v{SUM + j0 + j}, v{126 + j}")
                for j in range(4): a(f"v_add_f32 v{SUM + j0 + j}, v{SUM + j0 + j}, v{126 + j}")
        a(f"s_mov_b32 s{s1}, {G.f32(1.0 / 688)}")
        for j in range(8):
            a(f"v_mul_f32 v{SUM + j}, s{s1}, v{SUM + j}")
            a(f"v_mul_f32 v{SQ + j}, s{s1}, v{SQ + j}")
            a(f"v_fma_f32 v{SQ + j}, -v{SUM + j}, v{SUM + j}, v{SQ + j}")
            a(f"v_max_f32 v{SQ + j}, 0, v{SQ + j}")
            a(f"v_add_f32 v{SQ + j}, {G.f32(1e-5)}, v{SQ + j}")
            a(f"v_rsq_f32 v{SQ + j}, v{SQ + j}")
        for j in range(8):
            a(f"v_mul_f32 v{SUM + j}, v{SUM + j}, v{SQ + j}")
    def store(lo=0, hi=11):
        for m in range(lo, hi):
            for d in range(4):
                r = PZ + 4 * m + d
                a(f"v_lshlrev_b32 v{TA}, 16, v{r}")
                a(f"v_and_b32 v{TB}, 0xffff0000, v{r}")
                a(f"v_fma_f32 v{TA}, v{TA}, v{SQ + 2*d}, -v{SUM + 2*d}")
                a(f"v_fma_f32 v{TB}, v{TB}, v{SQ + 2*d + 1}, -v{SUM + 2*d + 1}")
                a(f"v_cvt_pk_bf16_f32 v{r}, v{TA}, v{TB}")
            a(f"s_add_u32 s{s1}, s{s0}, {G.Z2N + m * 262144}")
            a(f"buffer_store_dwordx4 v[{PZ + 4*m}:{PZ + 4*m + 3}], v{7 if m == 10 else 6}, s[4:7], s{s1} offen{SC}")
    return load, sums, stats, store

def reduce_rounds(a, name, tag, R, ntiles, offs, vaddr_own, vtmp):
    n = ntiles
    for rnd, bit in enumerate((4, 2, 1)):
        h = n // 2
        lab = f"{name}_{tag}_r{rnd}"
        a(f"s_xor_b32 s8, s3, {bit}")
        a("s_mul_i32 s8, s8, 20480")
        a(f"v_add_u32 v{vtmp}, s8, v2")
        a(f"s_and_b32 s9, s3, {bit}")
        a(f"s_cbranch_scc1 {lab}_hi")
        for hi in (0, 1):
            if hi: a.label(f"{lab}_hi")
            send = 0 if hi else h
            keep = h if hi else 0
            for t in range(h):
                r = R + 4 * (send + t)
                a(f"ds_write_b128 v{vaddr_own}, v[{r}:{r+3}] offset:{offs[rnd] + t * 1024}")
            a("s_waitcnt lgkmcnt(0)")
            a("s_barrier")
            for t in range(h):
                r = R + 4 * (send + t)
                a(f"ds_read_b128 v[{r}:{r+3}], v{vtmp} offset:{offs[rnd] + t * 1024}")
            for t in range(h):
                a(f"s_waitcnt lgkmcnt({h - 1 - t})")
                for k in range(4):
                    a(f"v_add_f32 v{R + 4*t + k}, v{R + 4*(keep + t) + k}, v{R + 4*(send + t) + k}")
            if not hi: a(f"s_branch {lab}_j")
        a.label(f"{lab}_j")
        n = h

def phase_s(a):
    name = G.N
    SC = G.SC
    vm = G.VM()
    ACC, AFR, BFR = 160, 64, (32, 48)
    Z1R, BSR = 140, 146
    a("s_load_dwordx4 s[12:15], s[0:1], 64")
    a("s_and_b32 s8, s2, 7")
    a("s_lshl_b32 s8, s8, 2")
    a("s_bfe_u32 s9, s2, 0x20003")
    a("s_add_u32 s33, s8, s9")
    a("s_lshr_b32 s34, s2, 5")
    a("s_mul_i32 s35, s34, 6")
    a("s_lshl_b32 s8, s34, 2")
    a("s_add_u32 s8, s8, 12")
    a("s_cmp_lt_u32 s34, 6")
    a("s_cselect_b32 s35, s35, s8")
    a("s_cmp_eq_u32 s34, 6")
    a("s_cselect_b32 s36, 40, 44")
    a("v_lshlrev_b32 v2, 4, v1")
    a("v_lshrrev_b32 v4, 2, v1")
    a("v_lshlrev_b32 v4, 12, v4")
    a("v_lshrrev_b32 v6, 4, v1")
    G.pi_of(a, 7, 6, 8)
    a("v_and_b32 v5, 3, v1")
    a("v_xor_b32 v5, v5, v7")
    a("v_lshl_add_u32 v10, v5, 4, v4")
    a("s_lshl_b32 s37, s33, 18")
    a("s_lshl_b32 s8, s3, 9")
    a("s_add_u32 s37, s37, s8")
    a("s_mul_i32 s38, s3, 20480")
    a("s_lshl_b32 s39, s35, 16")
    a("s_lshl_b32 s8, s3, 13")
    a("s_add_u32 s39, s39, s8")
    a(f"s_add_u32 s39, s39, {G.Z2N}")
    a("v_and_b32 v4, 15, v1")
    a("v_lshrrev_b32 v5, 4, v1")
    a("v_lshrrev_b32 v6, 2, v4")
    G.pi_of(a, 7, 6, 8)
    a("v_xor_b32 v6, v7, v5")
    a("v_lshlrev_b32 v6, 4, v6")
    a("v_lshl_add_u32 v6, v4, 6, v6")
    a("v_add_u32 v11, s38, v6")
    a("v_add_u32 v12, s38, v2")
    a("s_waitcnt lgkmcnt(0)")
    G.srd(a, 16, 12, 13, 2048 * 4096)
    G.srd(a, 20, 14, 15, 4096)
    def bdma(ks):
        for tt in range(4):
            a(f"s_add_u32 m0, s38, {(ks & 3) * 4096 + tt * 1024}")
            a(f"s_add_u32 s40, s37, {tt * 65536 + ks * 64}")
            a("buffer_load_dwordx4 v10, s[16:19], s40 offen lds")
            vm.issue(("b", ks))
    def aload(ks):
        for j in range(6):
            r = AFR + 24 * (ks % 3) + 4 * j
            a(f"s_add_u32 s40, s39, {j * 65536 + (ks >> 2) * 4096}")
            a(f"buffer_load_dwordx4 v[{r}:{r+3}], v2, s[4:7], s40 offen offset:{(ks & 3) * 1024}{SC}")
            vm.issue(("a", ks))
    def bread(ks):
        return [f"ds_read_b128 v[{BFR[ks & 1] + 4*tt}:{BFR[ks & 1] + 4*tt + 3}], v11 offset:{(ks & 3) * 4096 + tt * 1024}" for tt in range(4)]
    if True:
        a(f"s_mov_b32 s8, {G.C_Z2N}")
        G.poll_issue(a, 8, 9, 8); a("s_waitcnt vmcnt(0)"); G.poll_check(a, 8, 9, 32, 8)
    bdma(0); aload(0); bdma(1); aload(1); bdma(2); aload(2); bdma(3)
    a("s_lshr_b32 s8, s3, 2"); a("s_mul_i32 s41, s8, 12")
    a("s_bfe_u32 s8, s3, 0x10001"); a("s_mul_i32 s8, s8, 6"); a("s_add_u32 s41, s41, s8")
    a("s_and_b32 s8, s3, 1"); a("s_mul_i32 s8, s8, 3"); a("s_add_u32 s41, s41, s8")
    a("v_and_b32 v13, 15, v1")
    a("v_lshlrev_b32 v13, 1, v13")
    for e in range(3):
        a(f"s_add_u32 s8, s41, {e}")
        a("s_lshr_b32 s9, s8, 2")
        a(f"s_add_u32 s{42 + e}, s9, s35")
        a("s_and_b32 s8, s8, 3")
        a("s_lshl_b32 s9, s33, 2")
        a(f"s_add_u32 s{45 + e}, s9, s8")
        a(f"s_mul_i32 s8, s{45 + e}, 22")
        a(f"s_lshr_b32 s9, s{42 + e}, 1")
        a("s_add_u32 s8, s8, s9")
        a("s_lshl_b32 s8, s8, 10")
        a(f"s_and_b32 s9, s{42 + e}, 1")
        a("s_lshl_b32 s9, s9, 3")
        a("s_add_u32 s8, s8, s9")
        a(f"s_add_u32 s8, s8, {G.Z1F}")
        a(f"s_cmp_lt_u32 s{42 + e}, 43")
        a("s_cselect_b32 s8, s8, 0x20000000")
        a(f"buffer_load_dwordx2 v[{Z1R + 2*e}:{Z1R + 2*e + 1}], v2, s[4:7], s8 offen{SC}")
        vm.issue(("e",))
        a(f"s_lshl_b32 s8, s{45 + e}, 5")
        a(f"buffer_load_ushort v{BSR + e}, v13, s[20:23], s8 offen")
        vm.issue(("e",))
    for r in range(ACC, 256): a(f"v_mov_b32 v{r}, 0")
    a(f"s_waitcnt vmcnt({vm.after(('b', 0))})")
    G.stamp(a, 7)
    for s in bread(0): a(s)
    for ks in range(8):
        need = [("a", ks)] + ([("b", ks + 1)] if ks < 7 else [])
        a(f"s_waitcnt vmcnt({vm.after(*need)}) lgkmcnt(0)")
        if ks < 7:
            for s in bread(ks + 1): a(s)
        if ks + 4 < 8: bdma(ks + 4)
        for j in range(6):
            for tt in range(4):
                acc = ACC + 4 * (4 * j + tt)
                r = AFR + 24 * (ks % 3) + 4 * j; b = BFR[ks & 1] + 4 * tt
                a(f"v_mfma_f32_16x16x32_bf16 v[{acc}:{acc+3}], v[{r}:{r+3}], v[{b}:{b+3}], v[{acc}:{acc+3}]")
        if ks + 3 < 8: aload(ks + 3)
    G.stamp(a, 8)
    a.settle(8)
    reduce_rounds(a, name, "s", ACC, 24, (0, 12288, 0), 12, 14)
    G.stamp(a, 9)
    for e in range(3):
        r = ACC + 4 * e
        a(f"v_lshlrev_b32 v{BSR + e}, 16, v{BSR + e}")
        for k in range(4): a(f"v_add_f32 v{r + k}, v{r + k}, v{BSR + e}")
        for d in range(2):
            z = Z1R + 2 * e + d
            a(f"v_lshlrev_b32 v4, 16, v{z}")
            a(f"v_and_b32 v5, 0xffff0000, v{z}")
            a(f"v_mul_f32 v4, v4, v{r + 2*d}")
            a(f"v_mul_f32 v5, v5, v{r + 2*d + 1}")
            a(f"v_cvt_pk_bf16_f32 v{z}, v4, v5")
        lz = a.newlabel(f"{name}_s_nz")
        a(f"s_cmp_lt_u32 s{42 + e}, 43")
        a(f"s_cbranch_scc1 {lz}")
        a(f"v_mov_b32 v{Z1R + 2*e}, 0"); a(f"v_mov_b32 v{Z1R + 2*e + 1}, 0")
        a.label(lz)
        a(f"s_mul_i32 s8, s{45 + e}, {G.AF_KS}")
        a(f"s_lshr_b32 s9, s{42 + e}, 1")
        a("s_add_u32 s8, s8, s9")
        a("s_lshl_b32 s8, s8, 10")
        a(f"s_and_b32 s9, s{42 + e}, 1")
        a("s_lshl_b32 s9, s9, 3")
        a("s_add_u32 s8, s8, s9")
        a(f"s_add_u32 s8, s8, {G.AF + 128 * 1024}")
        a(f"s_cmp_lt_u32 s{42 + e}, s36")
        a("s_cselect_b32 s8, s8, 0x20000000")
        a(f"buffer_store_dwordx2 v[{Z1R + 2*e}:{Z1R + 2*e + 1}], v2, s[4:7], s8 offen{SC}")
    if True:
        a("s_waitcnt vmcnt(0)")
        a("s_barrier")
        a(f"s_add_u32 s8, s33, {G.C_U}")
        G.signal(a, 8, 0)
    G.stamp(a, 10)

def phase_o(a):
    name = G.N
    SC = G.SC
    vm = G.VM()
    ACC, AFR, WFR, XR = 192, 64, (32, 48), 24
    NS = 19
    a("s_load_dwordx2 s[12:13], s[0:1], 40")
    a("s_load_dwordx4 s[24:27], s[0:1], 80")
    a("s_load_dwordx2 s[14:15], s[0:1], 0")
    a("s_and_b32 s8, s2, 7")
    a("s_lshl_b32 s8, s8, 2")
    a("s_bfe_u32 s9, s2, 0x20003")
    a("s_add_u32 s33, s8, s9")
    a("s_lshr_b32 s34, s2, 5")
    a("v_lshlrev_b32 v2, 4, v1")
    a("v_lshrrev_b32 v4, 3, v1")
    a("v_and_b32 v5, 7, v1")
    a("v_lshrrev_b32 v6, 1, v5")
    a("v_and_b32 v5, 1, v5")
    a("v_lshrrev_b32 v7, 4, v1")
    a("v_xor_b32 v6, v6, v7")
    a("v_lshlrev_b32 v6, 5, v6")
    a("v_lshl_add_u32 v6, v5, 4, v6")
    a("v_lshl_add_u32 v10, v4, 10, v6")
    a("s_lshl_b32 s37, s3, 15")
    a("s_lshl_b32 s8, s34, 7")
    a("s_add_u32 s37, s37, s8")
    a("s_mul_i32 s38, s3, 20480")
    a(f"s_mul_i32 s39, s33, {4 * G.AF_KS}")
    a("s_add_u32 s39, s39, s3")
    a("s_lshl_b32 s39, s39, 10")
    a(f"s_add_u32 s39, s39, {G.AF}")
    a("v_and_b32 v4, 15, v1")
    a("v_lshrrev_b32 v5, 4, v1")
    a("v_lshrrev_b32 v6, 2, v4")
    a("v_lshl_add_u32 v7, v5, 2, v6")
    a("v_bfe_u32 v8, v7, 1, 2")
    a("v_and_b32 v4, 3, v1")
    a("v_lshlrev_b32 v4, 3, v4")
    a("v_lshl_add_u32 v4, v7, 7, v4")
    a("v_add_u32 v4, s38, v4")
    for mt in range(4):
        a(f"v_xor_b32 v9, {mt}, v8")
        a(f"v_lshl_add_u32 v{16 + mt}, v9, 5, v4")
    a("v_add_u32 v12, s38, v2")
    a("s_waitcnt lgkmcnt(0)")
    G.srd(a, 16, 12, 13, 4096 * 1024)
    G.srd(a, 20, 24, 25, 688 * 1024)
    G.srd(a, 28, 14, 15, 2048 * 1024)
    G.srd(a, 44, 26, 27, 2048 * 1024)
    a("s_cmp_lt_u32 s3, 6")
    a("s_cselect_b32 s41, 0, 0x20000000")
    def wdma(i):
        sd = 16 if i < 16 else 20
        row = (i if i < 16 else i - 16) * 256
        for m in range(4):
            a(f"s_add_u32 m0, s38, {(i & 3) * 4096 + m * 1024}")
            a(f"s_add_u32 s40, s37, {(row + 8 * m) * 1024}")
            a(f"buffer_load_dwordx4 v10, s[{sd}:{sd+3}], s40 offen lds")
            vm.issue(("w", i))
    def aload(i):
        for tt in range(4):
            r = AFR + 16 * (i & 3) + 4 * tt
            a(f"s_add_u32 s40, s39, {(tt * G.AF_KS + 8 * i) * 1024}")
            if i == NS - 1: a("s_or_b32 s40, s40, s41")
            a(f"buffer_load_dwordx4 v[{r}:{r+3}], v2, s[4:7], s40 offen{SC}")
            vm.issue(("a", i))
    def wread(i):
        out = []
        for mt in range(4):
            b = WFR[i & 1] + 4 * mt
            out.append(f"ds_read_b64_tr_b16 v[{b}:{b+1}], v{16 + mt} offset:{(i & 3) * 4096}")
            out.append(f"ds_read_b64_tr_b16 v[{b+2}:{b+3}], v{16 + mt} offset:{(i & 3) * 4096 + 2048}")
        return out
    if True:
        a("s_lshr_b32 s8, s33, 1")
        a("s_sub_u32 s9, 15, s8")
        a("s_min_u32 s8, s8, s9")
        a(f"s_add_u32 s8, s8, {G.C_CTX}")
        G.poll_issue(a, 8, 9); a("s_waitcnt vmcnt(0)"); G.poll_check(a, 8, 9, 32)
    for i in range(4): wdma(i); aload(i)
    a("v_and_b32 v4, 15, v1")
    a("v_lshlrev_b32 v4, 10, v4")
    a("v_lshrrev_b32 v5, 4, v1")
    a("v_lshl_add_u32 v13, v5, 3, v4")
    a("s_lshl_b32 s8, s33, 2")
    a("s_lshr_b32 s9, s3, 1")
    a("s_add_u32 s8, s8, s9")
    a("s_lshl_b32 s42, s8, 14")
    a("s_lshl_b32 s8, s34, 7")
    a("s_add_u32 s42, s42, s8")
    a("s_and_b32 s8, s3, 1")
    a("s_lshl_b32 s8, s8, 6")
    a("s_add_u32 s42, s42, s8")
    for e in range(2):
        a(f"buffer_load_dwordx2 v[{XR + 2*e}:{XR + 2*e + 1}], v13, s[28:31], s42 offen offset:{32 * e}")
        vm.issue(("x",))
    for r in range(ACC, 256): a(f"v_mov_b32 v{r}, 0")
    a(f"s_waitcnt vmcnt({vm.after(('w', 0))})")
    G.stamp(a, 11)
    for s in wread(0): a(s)
    for i in range(NS):
        need = [("a", i)] + ([("w", i + 1)] if i < NS - 1 else [])
        a(f"s_waitcnt vmcnt({vm.after(*need)}) lgkmcnt(0)")
        if i < NS - 1:
            for s in wread(i + 1): a(s)
        if i + 4 < NS: wdma(i + 4)
        for tt in range(4):
            for mt in range(4):
                acc = ACC + 4 * (4 * tt + mt)
                w = WFR[i & 1] + 4 * mt; r = AFR + 16 * (i & 3) + 4 * tt
                a(f"v_mfma_f32_16x16x32_bf16 v[{acc}:{acc+3}], v[{w}:{w+3}], v[{r}:{r+3}], v[{acc}:{acc+3}]")
        if i + 4 == 16:
            a(f"s_add_u32 s8, s33, {G.C_U}")
            G.poll_issue(a, 8, 9); a("s_waitcnt vmcnt(0)"); G.poll_check(a, 8, 9, 8)
        if i + 4 < NS: aload(i + 4)
    G.stamp(a, 12)
    a.settle(8)
    reduce_rounds(a, name, "o", ACC, 16, (0, 8192, 12288), 12, 14)
    G.stamp(a, 13)
    for e in range(2):
        r = ACC + 4 * e
        for d in range(2):
            z = XR + 2 * e + d
            a(f"v_lshlrev_b32 v4, 16, v{z}")
            a(f"v_and_b32 v5, 0xffff0000, v{z}")
            a(f"v_add_f32 v4, v4, v{r + 2*d}")
            a(f"v_add_f32 v5, v5, v{r + 2*d + 1}")
            a(f"v_cvt_pk_bf16_f32 v{z}, v4, v5")
        a(f"buffer_store_dwordx2 v[{XR + 2*e}:{XR + 2*e + 1}], v13, s[44:47], s42 offen offset:{32 * e}")
```

```python
import sys, math, struct
from asmlib import *

NAME = "parallel_sum__compressed_kv_cla__mixer_gmlp__prompt"
XNF = 0x0000000
KF  = 0x0200000
VF  = 0x1200000
AF  = 0x2200000
AF_KS = 150
Z1F = 0x3600000
Z2F = 0x3A00000
Z2N = 0x3E00000
CNTO = 0x7000000
TSO = 0x8000000
WS_BYTES = 0x10000000
OOB = 0x20000000
C_XN, C_KV, C_Z, C_Z2N, C_CTX, C_U, C_P, C_CTXS = 0, 16, 80, 88, 96, 160, 192, 224
PF = 0x4200000
STAMP = False
OPT = {}
SC = " sc1"
N = NAME + "_kernel"

sH, sI, sTILE, sR0, sZT, sN0, sNT, sU, sUC, sNI, sKSRC, sVSRC, sTHR = range(32, 45)
qWq, qWin, qL2k, qL1k, qXN = range(46, 51)
kX, kW, kL4k, kIsV, kST, kSA, kCKV, kRow = range(54, 62)

def f32(x): return "0x%08x" % struct.unpack("<I", struct.pack("<f", x))[0]
def stamp(a, i, force=False):
    if OPT.get("astamp") and 7 <= i <= 14 and not force: return
    if STAMP: a(f"{'s_memtime' if OPT.get('cyc') else 's_memrealtime'} s[{68 + 2*i}:{69 + 2*i}]")
def stampc(a, i):
    if STAMP: a(f"s_memtime s[{68 + 2*i}:{69 + 2*i}]")
def srd(a, d, lo, hi, nbytes):
    a(f"s_mov_b32 s{d}, s{lo}")
    a(f"s_and_b32 s{d+1}, s{hi}, 0xffff")
    a(f"s_mov_b32 s{d+2}, {nbytes:#x}")
    a(f"s_mov_b32 s{d+3}, 0x00020000")
def wave_allreduce(a, v, t, op="v_add_f32"):
    for mod in ("quad_perm:[1,0,3,2]", "quad_perm:[2,3,0,1]", "row_half_mirror", "row_mirror"):
        a(f"{op} v{v}, v{v}, v{v} {mod} row_mask:0xf bank_mask:0xf")
    for sw in ("v_permlane16_swap_b32", "v_permlane32_swap_b32"):
        a(f"v_mov_b32 v{t}, v{v}")
        a(f"{sw} v{v}, v{t}")
        a(f"{op} v{v}, v{v}, v{t}")
def pi_of(a, dst, src, tmp):
    a(f"v_lshrrev_b32 v{tmp}, 1, v{src}")
    a(f"v_mul_u32_u24 v{tmp}, 3, v{tmp}")
    a(f"v_lshlrev_b32 v{dst}, 1, v{src}")
    a(f"v_xor_b32 v{dst}, v{dst}, v{tmp}")
    a(f"v_and_b32 v{dst}, 3, v{dst}")

class VM:
    def __init__(self): self.q = []
    def issue(self, tag, n=1): self.q += [tag] * n
    def after(self, *tags):
        return min(63, min(len(self.q) - 1 - max(i for i, t in enumerate(self.q) if t == tag) for tag in tags))

def signal(a, sidx, wave, release=False):
    l = a.newlabel("sig")
    if wave is not None:
        a(f"s_cmp_lg_u32 s3, {wave}")
        a(f"s_cbranch_scc1 {l}")
    if release:
        a("buffer_wbl2 sc1")
        a("s_waitcnt vmcnt(0)")
    a(f"s_lshl_b32 s14, s{sidx}, 8")
    a(f"s_add_u32 s14, s14, {CNTO}")
    a("v_mov_b32 v8, 0")
    a("v_mov_b32 v9, 1")
    a("s_mov_b64 exec, 1")
    a("buffer_atomic_add v9, v8, s[4:7], s14 offen sc1")
    a("s_mov_b64 exec, -1")
    a.label(l)
def poll_issue(a, sidx, vdst, nshard=1):
    a(f"s_lshl_b32 s14, s{sidx}, 8")
    a(f"s_add_u32 s14, s14, {CNTO}")
    a(f"v_and_b32 v8, {nshard - 1}, v1")
    a("v_lshlrev_b32 v8, 8, v8")
    a(f"buffer_load_dword v{vdst}, v8, s[4:7], s14 offen sc1")
def poll_check(a, sidx, vdst, target, nshard=1):
    l = a.newlabel("poll"); d = a.newlabel("polld")
    a("s_mov_b32 s15, 0x20000")
    a.label(l)
    a(f"v_cmp_gt_u32 vcc, {target}, v{vdst}")
    a(f"s_cbranch_vccz {d}")
    a("s_sleep 2")
    poll_issue(a, sidx, vdst, nshard)
    a("s_waitcnt vmcnt(0)")
    a("s_sub_u32 s15, s15, 1")
    a("s_cmp_lg_u32 s15, 0")
    a(f"s_cbranch_scc1 {l}")
    a.label(d)

def kvstore(j):
    t = pk(j)
    out = [f"s_add_u32 s12, s{kST}, {(j >> 3) * 32 * 8192 + ((j >> 2) & 1) * 8192}"]
    if (j >> 1) & 1: out.append(f"s_add_u32 s12, s12, s{kSA}")
    out.append(f"buffer_store_dwordx4 v[{t}:{t+3}], v10, s[4:7], s12 offen offset:{(j & 1) * 256}{SC}")
    return out
RING = 65536; STG = 24576
QACC, ZACC, XF, WQ, QF = 192, 168, 64, 120, 112
PKE, PKL, QA = 88, 20, 52
def pk(j): return PKE + 4 * j if j < 8 else PKL + 4 * (j - 8)
XD = 3

def front(a):
    vm = VM()
    kernel_header(a, N)
    a("s_cmp_ge_u32 s2, 256")
    a(f"s_cbranch_scc1 {N}_end")
    stamp(a, 0)
    a("s_load_dwordx4 s[8:11], s[0:1], 96")
    a("s_load_dwordx4 s[24:27], s[0:1], 0")
    a("s_load_dwordx4 s[28:31], s[0:1], 24")
    a("s_load_dwordx2 s[64:65], s[0:1], 16")
    a("s_load_dwordx2 s[66:67], s[0:1], 56")
    a("v_and_b32 v1, 63, v0")
    a("v_lshrrev_b32 v2, 6, v0")
    a("v_readfirstlane_b32 s3, v2")
    a("v_lshlrev_b32 v2, 4, v1")
    a("s_and_b32 s12, s2, 7")
    a("s_lshr_b32 s13, s2, 3")
    a("s_and_b32 s62, s13, 7")
    a(f"s_bfe_u32 s{kIsV}, s13, 0x10003")
    a("s_lshr_b32 s13, s13, 4")
    a("s_lshl_b32 s63, s12, 1")
    a("s_add_u32 s63, s63, s13")
    a(f"s_add_u32 s{kCKV}, s63, {C_KV}")
    a("v_lshrrev_b32 v4, 3, v1")
    a("v_lshlrev_b32 v4, 10, v4")
    a("v_and_b32 v5, 7, v1")
    a("v_lshrrev_b32 v6, 4, v1")
    a("v_xor_b32 v5, v5, v6")
    a("v_lshl_add_u32 v10, v5, 4, v4")
    a("v_xor_b32 v11, 64, v10")
    a("v_and_b32 v5, 15, v1")
    a("v_lshrrev_b32 v4, 1, v5")
    a("v_and_b32 v5, 1, v5")
    a("s_and_b32 s12, s3, 1")
    a("s_lshl_b32 s13, s12, 2")
    a("v_or_b32 v7, s13, v6")
    a("v_xor_b32 v4, v4, v7")
    a("v_lshlrev_b32 v4, 5, v4")
    a("v_lshl_add_u32 v4, v5, 4, v4")
    a("v_lshl_add_u32 v12, v6, 13, v4")
    a("v_lshrrev_b32 v4, 5, v1")
    a("v_and_b32 v5, 31, v1")
    a("v_lshrrev_b32 v6, 1, v5")
    a("v_and_b32 v5, 1, v5")
    a("s_and_b32 s13, s3, 2")
    a("s_lshl_b32 s13, s13, 1")
    a("v_or_b32 v7, s13, v4")
    a("v_xor_b32 v6, v6, v7")
    a("v_lshlrev_b32 v6, 5, v6")
    a("v_lshl_add_u32 v6, v5, 4, v6")
    a("v_lshl_add_u32 v30, v4, 13, v6")
    a("v_xor_b32 v31, 64, v30")
    a(f"s_lshl_b32 s{kX}, s62, 7")
    a("s_and_b32 s13, s3, 3")
    a("s_lshl_b32 s13, s13, 5")
    a(f"s_add_u32 s{kX}, s{kX}, s13")
    a("s_lshr_b32 s13, s3, 2")
    a("s_lshl_b32 s13, s13, 10")
    a(f"s_add_u32 s{kX}, s{kX}, s13")
    a(f"s_lshl_b32 s{kX}, s{kX}, 10")
    a(f"s_lshl_b32 s{kW}, s3, 15")
    a("s_lshl_b32 s13, s63, 9")
    a(f"s_add_u32 s{kW}, s{kW}, s13")
    a(f"s_lshl_b32 s{kL4k}, s3, 12")
    a(f"s_lshl_b32 s{qL2k}, s3, 11")
    a(f"s_lshl_b32 s{qL1k}, s3, 10")
    a(f"s_lshl_b32 s{kRow}, s2, 3")
    a(f"s_add_u32 s{kRow}, s{kRow}, s3")
    a("s_waitcnt lgkmcnt(0)")
    srd(a, 16, 26, 27, 2048 * 1024)
    a("s_mov_b64 s[52:53], s[26:27]")
    a(f"s_cmp_eq_u32 s{kIsV}, 0")
    a("s_cselect_b32 s28, s28, s30")
    a("s_cselect_b32 s29, s29, s31")
    srd(a, 20, 28, 29, 512 * 8192)
    srd(a, 4, 10, 11, WS_BYTES)
    srd(a, 28, 8, 9, 256)
    srd(a, 24, 24, 25, 2048 * 1024)
    def xdma(c):
        return [[f"s_add_u32 m0, s{kL4k}, {(c % 3) * 32768 + m * 1024}", f"s_add_u32 s12, s{kX}, {m * 8192 + c * 128}",
                 f"buffer_load_dwordx4 v{10 + (m & 1)}, s[16:19], s12 offen lds"] for m in range(4)]
    def wdma(ks):
        return [[f"s_add_u32 m0, s{qL2k}, {98304 + (ks & 3) * 16384 + m * 1024}", f"s_add_u32 s12, s{kW}, {(ks * 32 + 2 * m) * 8192}",
                 f"buffer_load_dwordx4 v{30 + m}, s[20:23], s12 offen lds"] for m in range(2)]
    def emit(groups, tag):
        for g in groups:
            for s in g:
                if isinstance(s, tuple): a.label(s[1]); continue
                a(s)
                if s.startswith("buffer_") and tag != "misc": vm.issue(tag)
    emit(wdma(0), ("w0", 0)); emit(xdma(0), ("x0", 0))
    a(f"s_lshl_b32 s12, s{kRow}, 10")
    a("buffer_load_dwordx4 v[32:35], v2, s[24:27], s12 offen"); vm.issue("ln")
    a("s_or_b32 s12, s2, s3")
    a(f"s_cbranch_scc1 {N}_noinit")
    a("v_lshlrev_b32 v8, 8, v1")
    a("v_mov_b32 v9, 0")
    a(f"s_mov_b32 s12, {CNTO}")
    a("buffer_store_dword v9, v8, s[4:7], s12 offen sc1")
    a(f"s_mov_b32 s12, {CNTO + 64 * 256}")
    a("buffer_store_dword v9, v8, s[4:7], s12 offen sc1")
    a(f"s_mov_b32 s12, {CNTO + 128 * 256}")
    a("buffer_store_dword v9, v8, s[4:7], s12 offen sc1")
    a(f"s_mov_b32 s12, {CNTO + 192 * 256}")
    a("buffer_store_dword v9, v8, s[4:7], s12 offen sc1")
    a(f"s_mov_b32 s12, {CNTO + 256 * 256}")
    a("buffer_store_dword v9, v8, s[4:7], s12 offen sc1")
    a.label(f"{N}_noinit")
    emit(wdma(1), ("w0", 1)); emit(wdma(2), ("w0", 2)); emit(xdma(1), ("x0", 1))
    a("v_and_b32 v4, 15, v1")
    a("v_lshrrev_b32 v5, 4, v1")
    a("v_lshrrev_b32 v6, 1, v4")
    a("v_xor_b32 v6, v6, v5")
    a("v_lshlrev_b32 v6, 4, v6")
    a("v_lshl_add_u32 v6, v4, 7, v6")
    a("s_and_b32 s12, s3, 1")
    a("s_lshl_b32 s12, s12, 13")
    a("v_add_u32 v14, s12, v6")
    a("v_xor_b32 v15, 64, v14")
    a("v_add_u32 v16, 65536, v14")
    a("v_add_u32 v17, 65536, v15")
    a("v_lshrrev_b32 v6, 2, v4")
    a("v_and_b32 v7, 1, v5")
    a("v_lshl_or_b32 v7, v7, 2, v6")
    a("v_lshl_add_u32 v6, v5, 3, v6")
    a("v_lshlrev_b32 v6, 9, v6")
    a("v_and_b32 v3, 3, v1")
    a("v_lshl_add_u32 v6, v3, 3, v6")
    a("v_add_u32 v6, 98304, v6")
    a("s_lshr_b32 s13, s3, 1")
    a("s_lshl_b32 s12, s13, 2")
    for nt in range(4):
        a(f"s_add_u32 s14, s12, {nt}")
        a("v_xor_b32 v3, s14, v7")
        a(f"v_lshl_add_u32 v{18 + nt}, v3, 5, v6")
    a(f"s_lshl_b32 s{kST}, s63, 1")
    a("s_lshr_b32 s12, s13, 1")
    a(f"s_add_u32 s{kST}, s{kST}, s12")
    a(f"s_lshl_b32 s{kST}, s{kST}, 6")
    a("s_lshl_b32 s12, s62, 2")
    a(f"s_add_u32 s{kST}, s{kST}, s12")
    a("s_and_b32 s12, s3, 1")
    a("s_lshl_b32 s12, s12, 1")
    a(f"s_add_u32 s{kST}, s{kST}, s12")
    a(f"s_lshl_b32 s{kST}, s{kST}, 13")
    a("s_and_b32 s13, s13, 1")
    a(f"s_cmp_eq_u32 s{kIsV}, 0")
    a(f"s_movk_i32 s{kSA}, 1024")
    a(f"s_cselect_b32 s{kSA}, 2048, s{kSA}")
    a(f"s_mov_b32 s12, {VF}")
    a(f"s_cselect_b32 s12, {KF}, s12")
    a("s_cselect_b64 vcc, -1, 0")
    a(f"s_add_u32 s{kST}, s{kST}, s12")
    a(f"s_mul_i32 s12, s13, s{kSA}")
    a("s_lshl_b32 s12, s12, 1")
    a(f"s_add_u32 s{kST}, s{kST}, s12")
    a("v_and_b32 v6, 1, v5")
    a("v_lshrrev_b32 v7, 1, v5")
    a("v_lshl_add_u32 v3, v7, 5, v4")
    a("v_lshlrev_b32 v3, 4, v3")
    a("v_lshl_add_u32 v3, v6, 10, v3")
    a("v_lshl_add_u32 v27, v6, 5, v4")
    a("v_lshlrev_b32 v27, 4, v27")
    a("v_lshl_add_u32 v27, v7, 12, v27")
    a("v_cndmask_b32 v27, v27, v3, vcc")
    emit(wdma(3), ("w0", 3)); emit(xdma(2), ("x0", 2))
    a("s_and_b32 s12, s2, 7")
    a("s_lshr_b32 s13, s2, 3")
    a("s_and_b32 s14, s13, 3")
    a("s_lshl_b32 s12, s12, 2")
    a(f"s_add_u32 s{sH}, s12, s14")
    a(f"s_lshr_b32 s{sI}, s13, 2")
    a(f"s_sub_u32 s12, 15, s{sI}")
    a("s_cmp_ge_u32 s3, 4")
    a(f"s_cselect_b32 s{sTILE}, s{sI}, s12")
    a("s_and_b32 s13, s3, 3")
    a(f"s_lshl_b32 s12, s{sTILE}, 2")
    a(f"s_add_u32 s{sU}, s12, s13")
    a(f"s_lshl_b32 s{sR0}, s{sU}, 1")
    a(f"s_lshl_b32 s12, s{sI}, 1")
    a(f"s_sub_u32 s{sNT}, 32, s12")
    a(f"s_mul_i32 s{sN0}, s{sH}, 3")
    a(f"s_sub_u32 s12, s{sN0}, 2")
    a(f"s_cmp_ge_u32 s{sH}, 15")
    a(f"s_cselect_b32 s{sZT}, 1, 0")
    a(f"s_cselect_b32 s{sN0}, s12, s{sN0}")
    a(f"s_min_u32 s{sN0}, s{sN0}, 86")
    a(f"s_lshl_b32 s{qWq}, s3, 16")
    a(f"s_lshl_b32 s12, s{sH}, 8")
    a(f"s_add_u32 s{qWq}, s{qWq}, s12")
    a(f"s_mul_i32 s{qWin}, s3, {8 * 2752}")
    a(f"s_lshl_b32 s12, s{sN0}, 5")
    a(f"s_add_u32 s{qWin}, s{qWin}, s12")
    a(f"s_lshl_b32 s{qXN}, s{sR0}, 14")
    a(f"s_lshl_b32 s12, s{sH}, 19")
    a(f"s_add_u32 s{sKSRC}, s12, {KF}")
    a(f"s_add_u32 s{sVSRC}, s12, {VF - 8192}")
    a("v_lshrrev_b32 v4, 3, v1")
    a("v_and_b32 v5, 7, v1")
    a("v_lshrrev_b32 v6, 1, v5")
    a("v_and_b32 v5, 1, v5")
    a("v_bfe_u32 v7, v1, 4, 1")
    a("s_and_b32 s12, s3, 1")
    a("s_lshl_b32 s12, s12, 1")
    a("v_or_b32 v7, s12, v7")
    a("v_xor_b32 v6, v6, v7")
    a("v_lshlrev_b32 v6, 5, v6")
    a("v_lshl_add_u32 v6, v5, 4, v6")
    a("v_mul_u32_u24 v4, 2752, v4")
    a("v_add_u32 v13, v4, v6")
    a(f"s_waitcnt vmcnt({vm.after('ln')}) lgkmcnt(0)")
    for i in range(4):
        a(f"v_lshlrev_b32 v{40 + 2*i}, 16, v{32 + i}")
        a(f"v_and_b32 v{41 + 2*i}, 0xffff0000, v{32 + i}")
    a("v_add_f32 v36, v40, v41")
    for i in range(2, 8): a(f"v_add_f32 v36, v36, v{40 + i}")
    wave_allreduce(a, 36, 37)
    a(f"v_mul_f32 v36, {f32(1.0/512)}, v36")
    for i in range(8): a(f"v_sub_f32 v{40 + i}, v{40 + i}, v36")
    a("v_mul_f32 v38, v40, v40")
    for i in range(1, 8): a(f"v_fmac_f32 v38, v{40 + i}, v{40 + i}")
    wave_allreduce(a, 38, 37)
    a(f"v_mov_b32 v37, {f32(1e-5)}")
    a(f"v_fmac_f32 v37, {f32(1.0/512)}, v38")
    a("v_rsq_f32 v37, v37")
    for i in range(8): a(f"v_mul_f32 v{40 + i}, v{40 + i}, v37")
    for i in range(4): a(f"v_cvt_pk_bf16_f32 v{96 + i}, v{40 + 2*i}, v{41 + 2*i}")
    a("v_lshrrev_b32 v4, 2, v1")
    a("v_lshlrev_b32 v4, 10, v4")
    a("v_and_b32 v5, 3, v1")
    a("v_lshl_add_u32 v4, v5, 8, v4")
    a(f"s_lshr_b32 s12, s{kRow}, 4")
    a("s_lshl_b32 s12, s12, 14")
    a(f"s_and_b32 s13, s{kRow}, 15")
    a("s_lshl_b32 s13, s13, 4")
    a("s_add_u32 s12, s12, s13")
    a(f"buffer_store_dwordx4 v[96:99], v4, s[4:7], s12 offen{SC}"); vm.issue("lnst")
    a("s_lshr_b32 s12, s2, 3")
    a("s_and_b32 s13, s2, 7")
    a("s_cmp_eq_u32 s3, 2")
    a("s_cselect_b64 s[8:9], s[66:67], s[64:65]")
    a(f"s_mov_b32 s10, {512 * 8192}")
    a(f"s_cselect_b32 s10, {512 * 2752}, s10")
    a("s_cmp_eq_u32 s3, 3")
    a("s_cselect_b64 s[8:9], s[52:53], s[8:9]")
    a(f"s_cselect_b32 s10, {2048 * 1024}, s10")
    a("s_and_b32 s9, s9, 0xffff")
    a("s_mov_b32 s11, 0x00020000")
    a("s_lshl_b32 s14, s3, 5")
    a("s_add_u32 s14, s14, s12")
    a("s_lshl_b32 s14, s14, 16")
    a("s_lshl_b32 s15, s13, 10")
    a("s_add_u32 s14, s14, s15")
    a("s_lshl_b32 s15, s13, 5")
    a("s_add_u32 s15, s15, s12")
    a("s_lshl_b32 s15, s15, 13")
    a("s_cmp_ge_u32 s3, 2")
    a("s_cselect_b32 s51, s15, s14")
    a("s_cselect_b64 vcc, -1, 0")
    a("s_lshr_b32 s15, s15, 1")
    a(f"s_or_b32 s15, s15, {1024 * 1024}")
    a("s_cmp_eq_u32 s3, 3")
    a("s_cselect_b32 s51, s15, s51")
    a("v_lshlrev_b32 v8, 7, v1")
    a("v_lshrrev_b32 v4, 3, v1")
    a("v_lshlrev_b32 v4, 13, v4")
    a("v_and_b32 v5, 7, v1")
    a("v_lshl_add_u32 v29, v5, 7, v4")
    a("v_cndmask_b32 v29, v29, v8, vcc")
    def qdma(st):
        base = RING + (st & 3) * STG
        out = []
        for m in range(2):
            out.append([f"s_add_u32 m0, s{qL2k}, {base + m * 1024}",
                        f"s_add_u32 s12, s{qWq}, {(st * 64 + 4 * m) * 8192}",
                        f"buffer_load_dwordx4 v12, s[16:19], s12 offen lds"])
        out.append([f"s_add_u32 m0, s{qL1k}, {base + 16384}",
                    f"s_add_u32 s12, s{qWin}, {st * 64 * 2752}",
                    f"buffer_load_dwordx4 v13, s[20:23], s12 offen lds"])
        return out
    def xload(ks):
        out = []
        for T in range(2):
            r = XF + 8 * (ks % XD) + 4 * T
            out.append([f"s_add_u32 s12, s{qXN}, {T * 16384 + (ks >> 2) * 4096}",
                        f"buffer_load_dwordx4 v[{r}:{r+3}], v2, s[4:7], s12 offen offset:{(ks & 3) * 1024}{SC}"])
        return out
    def pack(j, t, acc, isV):
        kt, x, y = j >> 2, (j >> 1) & 1, j & 1
        tiles = [(2 * kt + e, 2 * x + y) for e in range(2)] if isV else [(2 * kt + y, 2 * x + e) for e in range(2)]
        out = []
        for i, (rt, nt) in enumerate(tiles):
            r = acc + 16 * rt + 4 * nt
            out.append(f"v_cvt_pk_bf16_f32 v{t + 2*i}, v{r}, v{r+1}")
            out.append(f"v_cvt_pk_bf16_f32 v{t + 2*i + 1}, v{r+2}, v{r+3}")
        return out
    F2 = (32, 80)
    def kreads(ks, F):
        sl = (ks >> 1) % 3; hi = sl == 2; off = 0 if hi else sl * 32768
        xs = [f"ds_read_b128 v[{F + 4*rt}:{F + 4*rt + 3}], v{14 + 2*hi + (ks & 1)} offset:{off + (rt >> 2) * 16384 + (rt & 3) * 2048}" for rt in range(8)]
        ws = []
        for nt in range(4):
            b = F + 32 + 4 * nt
            ws.append(f"ds_read_b64_tr_b16 v[{b}:{b+1}], v{18 + nt} offset:{(ks & 3) * 16384}")
            ws.append(f"ds_read_b64_tr_b16 v[{b+2}:{b+3}], v{18 + nt} offset:{(ks & 3) * 16384 + 2048}")
        return [xs[0]] + ws + xs[1:]
    def kmfma(F, isV, first, fill):
        j = 0
        for rt in range(8):
            for nt in range(4):
                acc = 128 + 16 * rt + 4 * nt
                x = f"v[{F + 4*rt}:{F + 4*rt + 3}]"; w = f"v[{F + 32 + 4*nt}:{F + 32 + 4*nt + 3}]"
                A, B = (x, w) if isV else (w, x)
                a(f"v_mfma_f32_16x16x32_bf16 v[{acc}:{acc+3}], {A}, {B}, {'0' if first else f'v[{acc}:{acc+3}]'}")
                for grp, tag in fill.get(j, []): emit([grp], tag)
                j += 1
    a("s_barrier")
    stamp(a, 1)
    for s in kreads(0, F2[0]): a(s)
    a(f"s_cmp_eq_u32 s{kIsV}, 0")
    a(f"s_cbranch_scc0 {N}_kv_v")
    snap = list(vm.q)
    for isV in (0, 1):
        vm.q = list(snap)
        if isV: a.label(f"{N}_kv_v")
        for ks in range(16):
            fill = {}
            def put(j, grp, tag=None): fill.setdefault(j, []).append((grp, tag))
            if ks < 15:
                a(f"s_waitcnt vmcnt({vm.after(('w0', ks + 1), ('x0', (ks + 1) >> 1))}) lgkmcnt(0)")
                a("s_barrier")
                for j, s in enumerate(kreads(ks + 1, F2[(ks + 1) & 1])): put(j, [s])
            else:
                a("s_waitcnt lgkmcnt(0)")
            pos = 16
            def late(groups, tag):
                nonlocal pos
                for g in groups: put(min(pos, 31), g, tag); pos += 2
            if ks + 4 < 16: late(wdma(ks + 4), ("w0", ks + 4))
            c = (ks + 5) >> 1
            if ks >= 1 and c < 8: late(xdma(c)[0:2] if ks & 1 else xdma(c)[2:4], ("x0", c))
            if ks == 2:
                l = a.newlabel("flag")
                late([["s_or_b32 s12, s2, s3", f"s_cbranch_scc1 {l}", "v_mov_b32 v8, 0", "v_mov_b32 v9, 1",
                       "buffer_store_dword v9, v8, s[28:31], 0 offen sc1", ("label", l)]], "misc")
            if ks == 3 and not OPT.get("nowarm"):
                l = a.newlabel("warm")
                late([["s_cmp_ge_u32 s3, 3", f"s_cbranch_scc1 {l}", "buffer_load_dword v28, v29, s[8:11], s51 offen", ("label", l)]], "misc")
            if ks == 4: late([["v_mov_b32 v8, 0", "buffer_load_dword v26, v8, s[28:31], 0 offen sc1"]], "flag")
            if ks == 8:
                lw = a.newlabel("initw"); ld = a.newlabel("initd")
                a("s_cmp_lg_u32 s3, 0")
                a(f"s_cbranch_scc1 {ld}")
                a("s_mov_b32 s15, 0x20000")
                a.label(lw)
                a("v_cmp_eq_u32 vcc, 0, v26")
                a(f"s_cbranch_vccz {ld}")
                a("s_sleep 8")
                a("v_mov_b32 v8, 0")
                a("buffer_load_dword v26, v8, s[28:31], 0 offen sc1")
                a("s_waitcnt vmcnt(0)")
                a("s_sub_u32 s15, s15, 1")
                a("s_cmp_lg_u32 s15, 0")
                a(f"s_cbranch_scc1 {lw}")
                a.label(ld)
                a("s_lshr_b32 s13, s2, 4")
                signal(a, 13, 0)
            if ks == 12:
                srd(a, 16, 64, 65, 512 * 8192)
                srd(a, 20, 66, 67, 512 * 2752)
                a(f"s_add_u32 s13, s{sTILE}, {C_XN}")
                poll_issue(a, 13, 26); vm.issue("pxn")
                late(qdma(0), ("w", 0)); late(qdma(1), ("w", 1))
            if ks == 14: late(qdma(2), ("w", 2))
            if ks == 15:
                a(f"s_waitcnt vmcnt({vm.after('pxn')})")
                a(f"s_add_u32 s13, s{sTILE}, {C_XN}")
                poll_check(a, 13, 26, 16)
                pos = 0
                for k in range(2): late(xload(k), ("x", k))
            kmfma(F2[ks & 1], isV, ks == 0, fill)
        stamp(a, 2)
        emit(xload(2), ("x", 2))
        a("v_mov_b32 v10, v27")
        for j in range(16):
            for s in pack(j, pk(j), 128, isV): a(s)
        if not isV: a(f"s_branch {N}_kv_done")
    a.label(f"{N}_kv_done")
    a("v_and_b32 v4, 15, v1")
    a("v_lshrrev_b32 v5, 4, v1")
    a("v_lshrrev_b32 v6, 2, v4")
    a("v_and_b32 v7, 1, v5")
    a("v_lshl_or_b32 v8, v7, 2, v6")
    a("v_lshl_add_u32 v9, v5, 3, v6")
    a("v_and_b32 v4, 3, v1")
    a("v_lshlrev_b32 v4, 3, v4")
    a("v_lshl_add_u32 v3, v9, 8, v4")
    a(f"v_add_u32 v3, {RING}, v3")
    for dt in range(8):
        a(f"v_xor_b32 v63, {dt}, v8")
        a(f"v_lshl_add_u32 v{QA + dt}, v63, 5, v3")
    a("v_lshrrev_b32 v6, 1, v6")
    a("v_lshl_or_b32 v8, v7, 1, v6")
    a("v_lshl_add_u32 v3, v9, 7, v4")
    a(f"v_add_u32 v3, {RING + 16384}, v3")
    for ft in range(3):
        a(f"v_xor_b32 v63, {ft}, v8")
        a(f"v_lshl_add_u32 v{QA + 8 + ft}, v63, 5, v3")
    def qread(ks, j):
        e = ks & 1; b = WQ + 4 * j
        o, d = (e * 8192, 1024) if j < 8 else (e * 4096, 512)
        return [f"ds_read_b64_tr_b16 v[{b}:{b+1}], v{QA + j} offset:{o}",
                f"ds_read_b64_tr_b16 v[{b+2}:{b+3}], v{QA + j} offset:{o + d}"]
    def kvpre(k):
        src, tile, lds = ((sKSRC, 0, 0), (sKSRC, 1, 16384), (sVSRC, 0, 65536), (sKSRC, 2, 32768), (sVSRC, 1, 81920))[k]
        return [f"s_add_u32 m0, s{qL2k}, {lds}",
                f"s_add_u32 s12, s{src}, s{qL2k}",
                f"s_add_u32 s12, s12, {tile * 16384}"] + (["s_cmp_lt_u32 s3, 4", f"s_cselect_b32 s12, {OOB}, s12"] if k == 2 else []) + [
                f"buffer_load_dwordx4 v2, s[4:7], s12 offen{SC} lds",
                f"buffer_load_dwordx4 v2, s[4:7], s12 offen offset:1024{SC} lds"]
    a(f"s_waitcnt vmcnt({vm.after(('w', 0))})")
    a("s_barrier")
    stamp(a, 3)
    for j in range(11):
        for s in qread(0, j): a(s)
    st_at = {j: [j] for j in range(16 if OPT.get('st16') else 8)}
    for ks in range(16):
        st = ks >> 1
        need = [("x", ks)]
        if ks & 1 and ks < 15: need.append(("w", st + 1))
        if ks == 15: need.append("pkv")
        a(f"s_waitcnt vmcnt({vm.after(*need)})")
        if ks & 1 and ks < 15:
            a("s_barrier")
            d = STG if ((st + 1) & 3) else -3 * STG
            for r in range(QA, QA + 11):
                a(f"v_add_u32 v{r}, {d}, v{r}" if d > 0 else f"v_subrev_u32 v{r}, {-d}, v{r}")
        if ks == 11: signal(a, kCKV, 0)
        if ks == 15:
            a(f"s_lshr_b32 s13, s{sH}, 1")
            a(f"s_add_u32 s13, s13, {C_KV}")
            poll_check(a, 13, 11, 16)
        extra = []
        for j in st_at.get(ks, []): extra.append((kvstore(j), "st"))
        if ks & 1 and st + 3 < 8: extra += [(g, ("w", st + 3)) for g in qdma(st + 3)]
        if ks == 15: extra += [(kvpre(k), "kv") for k in range(5)]
        X = [f"v[{XF + 8 * (ks % XD) + 4 * T}:{XF + 8 * (ks % XD) + 4 * T + 3}]" for T in range(2)]
        pend = []
        def mm(ins):
            a(ins)
            if pend: a(pend.pop(0))
        for dt in range(8):
            if dt % 2 == 0: a(f"s_waitcnt lgkmcnt({min(15, 18 - (2 * dt if ks == 15 else (2 if dt else 0)))})")
            for T in range(2):
                acc = QACC + 8 * dt + 4 * T
                mm(f"v_mfma_f32_16x16x32_bf16 v[{acc}:{acc+3}], v[{WQ + 4*dt}:{WQ + 4*dt + 3}], {X[T]}, {'0' if ks == 0 else f'v[{acc}:{acc+3}]'}")
            if ks < 15: pend += qread(ks + 1, dt)
            if extra and dt >= 1:
                g, tag = extra.pop(0); emit([g], tag)
        l2 = a.newlabel("z2"); l3 = a.newlabel("zd")
        a(f"s_cmp_eq_u32 s{sZT}, 0")
        a(f"s_waitcnt lgkmcnt({14 if ks < 15 else 0})")
        a(f"s_cbranch_scc0 {l2}")
        keep = list(pend)
        for zt in range(2):
            if zt: a.label(l2)
            pend[:] = keep
            for ft in range(3):
                for T in range(2):
                    acc = ZACC + 8 * ft + 4 * T
                    w = f"v[{WQ + 32 + 4*ft}:{WQ + 32 + 4*ft + 3}]"
                    A, B = (X[T], w) if zt else (w, X[T])
                    mm(f"v_mfma_f32_16x16x32_bf16 v[{acc}:{acc+3}], {A}, {B}, {'0' if ks == 0 else f'v[{acc}:{acc+3}]'}")
                if ks < 15: pend += qread(ks + 1, 8 + ft)
            for x in pend: a(x)
            if not zt: a(f"s_branch {l3}")
        a.label(l3)
        if ks + XD < 16: emit(xload(ks + XD), ("x", ks + XD))
        if ks == 13:
            a(f"s_lshr_b32 s13, s{sH}, 1")
            a(f"s_add_u32 s13, s13, {C_KV}")
            poll_issue(a, 13, 11); vm.issue("pkv")
    stamp(a, 4)
    a.settle(8)
    c0 = -2.0 * math.sqrt(2.0 / math.pi) * math.log2(math.e); c1 = c0 * 0.044715
    a(f"s_mov_b32 s9, {f32(c1)}")
    a(f"v_mov_b32 v3, {f32(c0)}")
    for grp in range(3):
        regs = list(range(ZACC + 8 * grp, ZACC + 8 * grp + 8)); T0 = 64
        for k, r in enumerate(regs): a(f"v_mul_f32 v{T0 + k}, v{r}, v{r}")
        for k, r in enumerate(regs): a(f"v_fma_f32 v{T0 + k}, v{T0 + k}, s9, v3")
        for k, r in enumerate(regs): a(f"v_mul_f32 v{T0 + k}, v{T0 + k}, v{r}")
        for k, r in enumerate(regs): a(f"v_exp_f32 v{T0 + k}, v{T0 + k}")
        for k, r in enumerate(regs): a(f"v_add_f32 v{T0 + k}, 1.0, v{T0 + k}")
        for k, r in enumerate(regs): a(f"v_rcp_f32 v{T0 + k}, v{T0 + k}")
        for k, r in enumerate(regs): a(f"v_mul_f32 v{r}, v{T0 + k}, v{r}")
        for T in range(2):
            r = ZACC + 8 * grp + 4 * T
            a(f"v_cvt_pk_bf16_f32 v{72 + 4*grp + 2*T}, v{r}, v{r+1}")
            a(f"v_cvt_pk_bf16_f32 v{73 + 4*grp + 2*T}, v{r+2}, v{r+3}")
    a("v_and_b32 v4, 15, v1")
    a("v_lshrrev_b32 v5, 5, v1")
    a("v_lshl_add_u32 v4, v5, 4, v4")
    a("v_lshlrev_b32 v4, 4, v4")
    a("v_bfe_u32 v5, v1, 4, 1")
    a("v_lshl_add_u32 v4, v5, 3, v4")
    a("s_movk_i32 s11, 512")
    a(f"s_cmp_eq_u32 s{sZT}, 0")
    a("s_cselect_b64 vcc, -1, 0")
    a("v_cndmask_b32 v4, v4, v2, vcc")
    a("s_cselect_b32 s10, 43, 86")
    a(f"s_cselect_b32 s11, {22 * 1024}, s11")
    for ft in range(3):
        a(f"s_add_u32 s12, s{sN0}, {ft}")
        a(f"s_mul_i32 s13, s{sR0}, 22")
        a("s_lshr_b32 s14, s12, 1")
        a("s_add_u32 s13, s13, s14")
        a("s_lshl_b32 s13, s13, 10")
        a("s_and_b32 s14, s12, 1")
        a("s_lshl_b32 s14, s14, 3")
        a("s_add_u32 s13, s13, s14")
        a(f"s_add_u32 s13, s13, {Z1F}")
        a("s_sub_u32 s14, s12, 43")
        a("s_lshl_b32 s14, s14, 6")
        a(f"s_lshr_b32 s15, s{sR0}, 1")
        a("s_add_u32 s14, s14, s15")
        a("s_lshl_b32 s14, s14, 10")
        a(f"s_add_u32 s14, s14, {Z2F}")
        a(f"s_cmp_eq_u32 s{sZT}, 0")
        a("s_cselect_b32 s13, s13, s14")
        a("s_cmp_lt_u32 s12, s10")
        a(f"s_cselect_b32 s13, s13, {OOB}")
        for T in range(2):
            a(f"buffer_store_dwordx2 v[{72 + 4*ft + 2*T}:{73 + 4*ft + 2*T}], v4, s[4:7], s13 offen{SC}"); vm.issue("z")
            if T == 0: a("s_add_u32 s13, s13, s11")
    a(f"s_mov_b32 s8, {f32(128 ** -0.5 * math.log2(math.e))}")
    for dt in range(8):
        D, e = dt >> 1, dt & 1
        for T in range(2):
            r = QACC + 8 * dt + 4 * T
            for k in range(4): a(f"v_mul_f32 v{r + k}, s8, v{r + k}")
            q = QF + (2 * D + T) * 4 + 2 * e
            a(f"v_cvt_pk_bf16_f32 v{q}, v{r}, v{r+1}")
            a(f"v_cvt_pk_bf16_f32 v{q+1}, v{r+2}, v{r+3}")
    for D in range(4):
        for k in range(4):
            a(f"v_permlane16_swap_b32 v{QF + 8*D + k}, v{QF + 8*D + 4 + k}")
    a(f"s_waitcnt vmcnt({vm.after('kv')})")
    stamp(a, 5)

def finish(a, nst):
    if STAMP:
        a("s_waitcnt vmcnt(0)")
        stamp(a, nst)
        a("s_waitcnt lgkmcnt(0)")
        a("s_lshl_b32 s100, s2, 3")
        a("s_add_u32 s100, s100, s3")
        a("s_lshl_b32 s100, s100, 6")
        a(f"s_add_u32 s100, s100, {TSO}")
        a("v_mov_b32 v3, 0")
        for i in range(nst + 1):
            a(f"v_mov_b32 v2, s{68 + 2*i}")
            a(f"buffer_store_dword v2, v3, s[4:7], s100 offen offset:{4*i}")
    a.label(f"{N}_end")
    a("s_endpgm")

def build():
    import mg_attn, mg_tail
    a = Asm()
    front(a); mg_attn.attention(a); mg_tail.tail(a); finish(a, 15)
    hdr = open("cdna_kernels/" + NAME + ".s.ref").read().split("\n")
    top = [l for l in hdr if l.startswith(";") and "@launch" not in l]
    out = "\n".join(top) + "\n; @launch grid=(256,1,1) block=(512,1,1) lds=163840\n"
    out += '.amdgcn_target "amdgcn-amd-amdhsa--gfx950"\n.text\n' + a.text()
    out += '.section .rodata,"a"\n.p2align 6\n' + kernel_desc(N, 256)
    return out

def main():
    import mg as M
    if "--stamp" in sys.argv:
        M.STAMP = True; sys.argv.remove("--stamp")
    for x in list(sys.argv):
        if x.startswith("-D"):
            k, _, v = x[2:].partition("="); M.OPT[k] = int(v or 1); sys.argv.remove(x)
    txt = M.build()
    if not M.OPT.get("noalign"):
        import align
        txt, npro, nnop = align.align(txt, use_nop=bool(M.OPT.get('nop')))
        print("align: promoted", npro, "nops", nnop)
    open(sys.argv[1] if len(sys.argv) > 1 else "k.s", "w").write(txt)
```

```python
from asmlib import *
import mg as G
from mg import sH, sI, sTILE, sR0, sZT, sN0, sNT, sU, sUC, sNI, sKSRC, sVSRC, sTHR, QF
aW, aWV, aLim, aUnit, aK, aV, aHook, aKL, aVL = 46, 47, 48, 49, 52, 53, 54, 56, 57
LOOK = G.OPT.get('look', 0)
O, S, NEGM, FR, P, E, T_, LS = 192, (160, 176), 144, 80, (64, 72), 56, (54, 55), 53
vK, vV, vD, vPL, vT = 14, 15, 16, 17, 18
ORDER = [0, 1, 2, 3, 8, 9, 10, 11, 4, 5, 6, 7, 12, 13, 14, 15]
HOOKS = (0, 1, 2, 3, 4, 5, 10, 12)
AHOOKS = (0, 1, 2, 3, 5, 10, 12)
BHOOKS = tuple(range(12))

def attention(a):
    name = G.N; SC = G.SC
    def fr(m): return f"v[{FR + 4 * (m & 7)}:{FR + 4 * (m & 7) + 3}]"
    def rdK(m, half): return f"ds_read_b128 {fr(m)}, v{vK} offset:{half * 8192 + (m & 7) * 1024}"
    def rdV(m, half): return f"ds_read_b128 {fr(m)}, v{vV} offset:{half * 8192 + (m & 7) * 1024}"
    def qk(m, p, c=None):
        d = f"v[{S[p]}:{S[p]+15}]"
        if c is None: c = f"v[{NEGM}:{NEGM+15}]" if m == 0 else d
        return f"v_mfma_f32_32x32x16_bf16 {d}, {fr(m)}, v[{QF + 4*m}:{QF + 4*m + 3}], {c}"
    def pv(m, p):
        s, dt = (m & 7) >> 2, m & 3
        o = f"v[{O + 16*dt}:{O + 16*dt + 15}]"
        return f"v_mfma_f32_32x32x16_bf16 {o}, {fr(m)}, v[{P[p] + 4*s}:{P[p] + 4*s + 3}], {o}"
    def ex(p, e): return f"v_exp_f32 v{E + (e & 3)}, v{S[p] + ORDER[e]}"
    def ad(p, e):
        if e == 0: return None
        if e == 1: return f"v_add_f32 v{T_[p]}, v{E}, v{E + 1}"
        return f"v_add_f32 v{T_[p]}, v{T_[p]}, v{E + (e & 3)}"
    def cv(p, e):
        return f"v_cvt_pk_bf16_f32 v{P[p] + e // 2}, v{E + ((e - 1) & 3)}, v{E + (e & 3)}" if e & 1 else None
    def slot(p, e):
        out = []
        if e >= 1: out.append(ad(p, e - 1))
        if e < 16: out.append(ex(p, e))
        if e >= 1: out.append(cv(p, e - 1))
        return [x for x in out if x]
    cmp_ = lambda p: f"v_cmp_nge_f32 vcc, s{sTHR}, v{T_[p]}"
    lsadd = lambda p: f"v_add_f32 v{LS}, v{LS}, v{T_[p]}"
    sites = []; hooks = []; astamps = []; AST = (1, 3, 7, 11, 15, 17)
    def check(p):
        l = a.newlabel("rs"); back = a.newlabel("rb")
        a(f"s_cbranch_vccnz {l}")
        a.label(back)
        sites.append((l, back, p))
    addr_salu = [f"s_add_u32 s{aV}, s{sNI}, 1", f"s_and_b32 s{aV}, s{aV}, 3", f"s_lshl_b32 s{aV}, s{aV}, 14",
                 f"s_add_u32 s{aK}, s{aV}, 0x4000", f"s_and_b32 s{aK}, s{aK}, 0xc000", f"s_add_u32 s{aV}, s{aV}, 0x10000"]
    setV = f"v_add_u32 v{vV}, s{aV}, v2"; setK = f"v_add_u32 v{vK}, s{aK}, v2"
    def dma_groups():
        g = []
        for src, d, base, lim in ((sKSRC, 3, aW, aKL), (sVSRC, 2, aWV, aVL)):
            pre = [f"s_add_u32 s10, s{sNI}, {d}", "s_lshl_b32 s11, s10, 14", "s_and_b32 s10, s11, 0xc000",
                   f"s_add_u32 m0, s10, s{base}", f"s_add_u32 s11, s11, s{src}", f"s_min_u32 s11, s11, s{lim}"]
            for j in range(4):
                g.append((pre if j == 0 else []) + ([] if G.OPT.get("nodma") else [f"buffer_load_dwordx4 v2, s[4:7], s11 offen offset:{j * 1024}{SC} lds"]))
        return g
    def hook():
        l = a.newlabel("hk"); back = a.newlabel("hb")
        a(f"s_bitcmp1_b32 s{aHook}, s{sNI}")
        a(f"s_cbranch_scc1 {l}")
        a.label(back)
        hooks.append((l, back))
    def bar(isA):
        if isA: a("s_waitcnt vmcnt(8)")
        a("s_barrier")
        a(f"s_add_u32 s{sNI}, s{sNI}, 1")
        if G.OPT.get("astamp") and G.STAMP and not isA:
            l = a.newlabel("as"); back = a.newlabel("ab")
            a(f"s_bitcmp1_b32 s55, s{sNI}")
            a(f"s_cbranch_scc1 {l}")
            a.label(back)
            astamps.append((l, back))
    def begin_interval(isA):
        for s in addr_salu: a(s)
        bar(isA)
        a(setV); a(setK)
        if isA:
            hook()
            for g in dma_groups():
                for s in g: a(s)
    def mask(p):
        prs = ("s[8:9]", "s[10:11]", "s[12:13]", "s[14:15]")
        for r in range(16):
            a(f"v_cmp_le_i32 {prs[r & 3]}, {8 * (r >> 2) + (r & 3)}, v{vD}")
            if r & 3 == 3:
                for k in range(4): a(f"v_cndmask_b32 v{S[p] + r - 3 + k}, v3, v{S[p] + r - 3 + k}, {prs[k]}")
    def rowmax(p, dst, tmp):
        a(f"v_max3_f32 v{dst}, v{S[p]}, v{S[p]+1}, v{S[p]+2}")
        for k in range(3, 15, 2): a(f"v_max3_f32 v{dst}, v{dst}, v{S[p]+k}, v{S[p]+k+1}")
        a(f"v_max_f32 v{dst}, v{dst}, v{S[p]+15}")
        a(f"v_mov_b32 v{tmp}, v{dst}")
        a(f"v_permlane32_swap_b32 v{dst}, v{tmp}")
        a(f"v_max_f32 v{dst}, v{dst}, v{tmp}")
    def early(p, n=6):
        for e in range(n):
            for s in slot(p, e): a(s)
    def step(p, isA, do_early=True, do_pv=True, first=0, skip_mfma0=False, fused=True, ls=True, mid=None, tailcmp=None, hk=True):
        dg = dma_groups() if (isA and fused and p == 0) else []
        for m in range(first, 16):
            mf = None if (m >= 8 and not do_pv) else (qk(m, p ^ 1) if m < 8 else pv(m, p ^ 1))
            if mf and not (m == first and skip_mfma0):
                if m % 2 == 0: a("s_waitcnt lgkmcnt(6)")
                a(mf)
            if m == 15: check(p)
            if mid and m == mid[0]:
                for s in mid[1]: a(s)
            if m == 0 and p == 0 and fused: bar(isA)
            if mf:
                if do_pv: rd = rdV(m, p) if m < 8 else (rdK(m, p) if do_early else None)
                else: rd = rdK(m, p) if do_early else None
                if rd: a(rd)
                elif do_pv and m % 2 == 1 and m < 15: a(f"s_waitcnt lgkmcnt({max(0, 13 - m)})")
                elif not do_pv and m % 2 == 1 and m < 7: a(f"s_waitcnt lgkmcnt({max(0, 5 - m)})")
            if fused and p == 0 and m == 0 and hk: hook()
            if dg and m % 2 == 1:
                for s in dg[m // 2]: a(s)
            if fused and p == 1 and m in (3, 5, 7):
                for s in addr_salu[m - 3:m - 1]: a(s)
            if mid and m == mid[0] - 1: a(mid[2])
            if tailcmp and m == 15: a(tailcmp)
            if m <= 10:
                for s in slot(p, m + 6): a(s)
            if m == 11: a(cmp_(p))
            if m >= 10 and do_early:
                for s in slot(p ^ 1, m - 10): a(s)
            if m == 1 and ls: a(lsadd(p ^ 1))
            if fused and p == 0 and m == 3: a(setK)
            if fused and p == 1 and m == 9: a(setV)
    def last_step(p, do_pv=True, ls=True):
        if do_pv:
            for m in range(8): a(rdV(m, p))
        if ls: a(lsadd(p ^ 1))
        mask(p)
        for e in range(17):
            if do_pv and 8 <= e < 16:
                a(f"s_waitcnt lgkmcnt({15 - e})")
                a(pv(e, p ^ 1))
            for s in slot(p, e): a(s)
        a(cmp_(p))
        check(p)
        a(lsadd(p))
    def final_pv(p):
        for m in range(8): a(rdV(m, p ^ 1))
        for m in range(8):
            a(f"s_waitcnt lgkmcnt({7 - m})")
            a(pv(m, p))
    def epilogue():
        a(f"v_mov_b32 v4, v{LS}")
        a(f"v_permlane32_swap_b32 v{LS}, v4")
        a(f"v_add_f32 v{LS}, v{LS}, v4")
        a(f"v_rcp_f32 v{LS}, v{LS}")
        a("v_bfe_u32 v4, v1, 4, 1")
        a(f"v_mul_u32_u24 v4, {G.AF_KS * 1024}, v4")
        a("v_and_b32 v5, 15, v1")
        a("v_lshrrev_b32 v6, 5, v1")
        a("v_lshl_add_u32 v5, v6, 4, v5")
        a("v_lshl_add_u32 v4, v5, 4, v4")
        a(f"s_mul_i32 s8, s{sR0}, {G.AF_KS}")
        a(f"s_lshl_b32 s9, s{sH}, 2")
        a("s_add_u32 s8, s8, s9")
        a("s_lshl_b32 s8, s8, 10")
        a(f"s_add_u32 s8, s8, {G.AF}")
        for dt in range(4):
            for k in range(16): a(f"v_mul_f32 v{O + 16*dt + k}, v{O + 16*dt + k}, v{LS}")
            for pc in range(2):
                t = FR + 4 * ((2 * dt + pc) & 7)
                for i, g in enumerate((pc, pc + 2)):
                    r = O + 16 * dt + 4 * g
                    a(f"v_cvt_pk_bf16_f32 v{t + 2*i}, v{r}, v{r+1}")
                    a(f"v_cvt_pk_bf16_f32 v{t + 2*i + 1}, v{r+2}, v{r+3}")
                a(f"buffer_store_dwordx4 v[{t}:{t+3}], v4, s[4:7], s8 offen offset:{dt * 1024 + pc * 512}{SC}")

    a("s_load_dwordx2 s[16:17], s[0:1], 64")
    a("s_load_dwordx2 s[20:21], s[0:1], 40")
    a("s_load_dwordx2 s[24:25], s[0:1], 80")
    a(f"s_mov_b32 s{sTHR}, {G.f32(2.0 ** 30)}")
    a(f"s_mov_b32 s{aHook}, {sum(1 << h for h in AHOOKS)}")
    a("s_cmp_ge_u32 s3, 4")
    a("s_lshl_b32 s8, 0x220, s3")
    a("s_and_b32 s8, s8, 0xfe0")
    a("s_or_b32 s8, s8, 31")
    a("s_cmp_ge_u32 s3, 4")
    a(f"s_cselect_b32 s{aHook}, s{aHook}, s8")
    a("s_lshr_b32 s8, s2, 3")
    a("s_lshl_b32 s8, s8, 2")
    a("s_and_b32 s9, s2, 7")
    a("s_lshl_b32 s9, s9, 7")
    a("s_add_u32 s8, s8, s9")
    a("s_add_u32 s8, s8, s3")
    a("s_lshl_b32 s50, s8, 13")
    a("s_and_b32 s8, s3, 1")
    a("s_lshl_b32 s8, s8, 8")
    a("s_add_u32 s8, s8, s2")
    a("s_lshl_b32 s51, s8, 13")
    a(f"s_mov_b32 s55, {sum(1 << h for h in AST)}")
    a("v_mov_b32 v3, 0xff800000")
    a("v_and_b32 v4, 31, v1")
    a("v_lshrrev_b32 v5, 5, v1")
    a("v_lshlrev_b32 v5, 2, v5")
    a(f"v_sub_u32 v{vD}, v4, v5")
    for r in range(O, O + 64): a(f"v_mov_b32 v{r}, 0")
    a(f"v_mov_b32 v{LS}, 0")
    a(f"s_and_b32 s{aW}, s3, 3")
    a(f"s_lshl_b32 s{aW}, s{aW}, 12")
    a(f"s_add_u32 s{aWV}, s{aW}, 0x10000")
    a(f"s_add_u32 s{aKL}, s{sKSRC}, {524288 - 4096}")
    a(f"s_add_u32 s{aVL}, s{sVSRC}, {8192 + 524288 - 4096}")
    a("v_lshlrev_b32 v19, 7, v1")
    a(f"s_add_u32 s{sKSRC}, s{sKSRC}, s{aW}")
    a(f"s_add_u32 s{sVSRC}, s{sVSRC}, s{aW}")
    a(f"s_mov_b32 s{sNI}, -1")
    a(f"v_mov_b32 v{vK}, v2")
    a("s_waitcnt lgkmcnt(0)")
    G.srd(a, 16, 16, 17, 2048 * 4096)
    G.srd(a, 20, 20, 21, 4096 * 1024)
    G.srd(a, 24, 24, 25, 688 * 1024)
    a("s_cmp_lt_u32 s3, 2")
    a("s_cselect_b64 s[28:29], s[20:21], s[24:25]")
    a("s_cselect_b32 s30, s22, s26")
    a("s_mov_b32 s31, 0x00020000")
    a("s_barrier")
    for m in range(8): a(rdK(m, 0))
    for m in range(8):
        a("s_waitcnt lgkmcnt(7)")
        a(qk(m, 0, "0" if m == 0 else None))
        a(rdK(m, 1))
    lm = a.newlabel("nomask")
    a(f"s_cmp_eq_u32 s{sU}, 0")
    a(f"s_cbranch_scc0 {lm}")
    a.settle(12)
    mask(0)
    a.label(lm)
    a.settle(12)
    rowmax(0, 4, 5)
    for r in range(16): a(f"v_sub_f32 v{NEGM + r}, 0, v4")
    for r in range(16): a(f"v_sub_f32 v{S[0] + r}, v{S[0] + r}, v4")
    early(0)
    a("s_cmp_ge_u32 s3, 4")
    a(f"s_cbranch_scc1 {name}_at_A")
    for isA in (0, 1):
        k = "AB"[1 - isA]
        if isA: a.label(f"{name}_at_A")
        if not isA:
            for s in addr_salu: a(s)
            a("s_barrier"); a(f"s_add_u32 s{sNI}, s{sNI}, 1"); a(setV); a(setK); hook()
        else:
            begin_interval(isA)
            a(f"s_cmp_lt_u32 s{sU}, 2")
            a(f"s_cbranch_scc1 {name}_at_small")
        a(f"s_sub_u32 s{sUC}, s{sU}, 2")
        step(0, isA, do_pv=False, fused=False, ls=False, tailcmp=f"s_cmp_eq_u32 s{sUC}, 0")
        a("s_waitcnt lgkmcnt(6)")
        a(qk(0, 0))
        a(f"s_cbranch_scc1 {name}_at_todd{k}")
        if not isA:
            a.label(f"{name}_at_loopB1")
            step(1, isA, skip_mfma0=True)
            step(0, isA, mid=(5, [f"s_sub_u32 s{sUC}, s{sUC}, 2"], "s_nop 0"), tailcmp=f"s_cmp_lt_u32 s{sNI}, 11")
            a("s_waitcnt lgkmcnt(6)")
            a(qk(0, 0))
            a(f"s_cbranch_scc1 {name}_at_loopB1")
        a.label(f"{name}_at_loop{k}")
        step(1, isA, skip_mfma0=True)
        step(0, isA, mid=(5, [f"s_cbranch_scc1 {name}_at_teven{k}", f"s_sub_u32 s{sUC}, s{sUC}, 2"], f"s_cmp_eq_u32 s{sUC}, 1"),
             tailcmp=f"s_cmp_lg_u32 s{sUC}, 0", hk=isA)
        a("s_waitcnt lgkmcnt(6)")
        a(qk(0, 0))
        a(f"s_cbranch_scc1 {name}_at_loop{k}")
        a.label(f"{name}_at_todd{k}")
        step(1, isA, do_early=False, skip_mfma0=True, fused=False)
        begin_interval(isA)
        last_step(0)
        final_pv(0)
        a(f"s_branch {name}_at_epi{k}")
        a.label(f"{name}_at_teven{k}")
        step(0, isA, do_early=False, first=5, skip_mfma0=True)
        if isA: a.label(f"{name}_at_u1b")
        last_step(1)
        begin_interval(isA)
        final_pv(1)
        a.label(f"{name}_at_epi{k}")
        a.settle(12)
        if G.OPT.get("astamp"): G.stamp(a, 13, True)
        epilogue()
        if not isA:
            a.label(f"{name}_at_restB")
            a(f"s_cmp_ge_u32 s{sNI}, s{sNT}")
            a(f"s_cbranch_scc1 {name}_at_done")
            a("s_barrier")
            a(f"s_add_u32 s{sNI}, s{sNI}, 1")
            a(f"s_branch {name}_at_restB")
        else:
            def ld_interval(nv):
                if not (G.OPT.get("novm") and nv == 0): a(f"s_waitcnt vmcnt({8 + nv})")
                a("s_barrier")
                a(f"s_add_u32 s{sNI}, s{sNI}, 1")
                hook()
                for g in dma_groups():
                    for s in g: a(s)
            a(f"s_sub_u32 s{aLim}, s{sNT}, 2")
            a.label(f"{name}_at_ld")
            a(f"s_cmp_lt_u32 s{sI}, 2")
            a("s_cselect_b32 s8, 5, -2")
            a(f"s_cmp_eq_u32 s{sNI}, s8")
            a(f"s_cbranch_scc1 {name}_at_lnz")
            if G.OPT.get("pre"):
                a(f"s_add_u32 s8, s{sNI}, 8")
                a(f"s_cmp_eq_u32 s8, s{sNT}")
                a(f"s_cbranch_scc1 {name}_at_pre")
            a(f"s_cmp_ge_u32 s{sNI}, s{aLim}")
            a(f"s_cbranch_scc1 {name}_at_ld2")
            ld_interval(0)
            a(f"s_branch {name}_at_ld")
            a.label(f"{name}_at_ld2")
            a("s_waitcnt vmcnt(8)")
            a("s_barrier")
            a("s_waitcnt vmcnt(0)")
            a("s_barrier")
            a(f"s_branch {name}_at_done")
            a.label(f"{name}_at_pre")
            a(f"s_lshr_b32 s{aUnit}, s2, 3")
            a(f"s_lshl_b32 s{aUnit}, s{aUnit}, 2")
            a("s_and_b32 s8, s3, 3")
            a(f"s_add_u32 s{aUnit}, s{aUnit}, s8")
            a(f"s_lshl_b32 s{aUnit}, s{aUnit}, 13")
            a("s_and_b32 s50, s2, 7")
            a("s_lshl_b32 s50, s50, 20")
            a(f"s_add_u32 s50, s50, s{aUnit}")
            for t in range(6):
                nv = 1
                if t == 0:
                    a(f"s_mov_b32 s8, {G.C_Z2N}")
                    G.poll_issue(a, 8, 11, 8); nv = 2
                    a(f"buffer_load_dword v{vT}, v19, s[16:19], s50 offen")
                elif t == 1:
                    a(f"s_add_u32 s8, s50, {96 * 8192}")
                    a(f"s_cmp_lt_u32 s{aUnit}, {32 * 8192}")
                    a(f"s_cselect_b32 s8, s8, {G.OOB}")
                    a(f"buffer_load_dword v{vT}, v19, s[16:19], s8 offen")
                else:
                    if t == 2:
                        a(f"s_mov_b32 s8, {G.C_Z2N}")
                        G.poll_check(a, 8, 11, 32, 8)
                    a(f"s_add_u32 s8, s{aUnit}, {G.Z2N + (t - 2) * 96 * 8192}")
                    if t == 5:
                        a(f"s_cmp_lt_u32 s{aUnit}, {(344 - 288) * 8192}")
                        a(f"s_cselect_b32 s8, s8, {G.OOB}")
                    a(f"buffer_load_dword v{vT}, v19, s[4:7], s8 offen{SC}")
                ld_interval(nv)
            a(f"s_branch {name}_at_ld2")
            from mg_tail import lnz_parts
            a.label(f"{name}_at_lnz")
            a(f"s_lshl_b32 s{aUnit}, s{sI}, 5")
            a(f"s_add_u32 s{aUnit}, s{aUnit}, s{sH}")
            a(f"s_lshl_b32 s{aUnit}, s{aUnit}, 2")
            a("s_and_b32 s8, s3, 3")
            a(f"s_add_u32 s{aUnit}, s{aUnit}, s8")
            def zidx():
                a(f"s_lshr_b32 s8, s{aUnit}, 4")
                a("s_sub_u32 s9, 15, s8")
                a("s_min_u32 s8, s8, s9")
                a(f"s_add_u32 s8, s8, {G.C_Z}")
            load, sums, stats, store = lnz_parts(a, aUnit, (50, 51))
            def p0(): zidx(); G.poll_issue(a, 8, 11)
            def p2(): zidx(); G.poll_check(a, 8, 11, 32); load()
            def pz():
                a(f"s_and_b32 s8, s{aUnit}, 7")
                a(f"s_add_u32 s8, s8, {G.C_Z2N}")
                G.signal(a, 8, None)
            nop = lambda: None
            parts = [(p0, 1), (nop, 0), (p2, 11), (nop, 0)]
            parts += [((lambda lo=lo: sums(lo, min(11, lo + 3))), 0) for lo in (0, 3, 6, 9)]
            parts += [((lambda k=k: stats(k)), 0) for k in range(3)]
            parts += [((lambda lo=lo: store(lo, min(11, lo + 3))), min(11, lo + 3) - lo) for lo in (0, 3, 6, 9)]
            parts += [(nop, 0), (pz, 1)]
            for part, nv in parts:
                part()
                ld_interval(nv)
            a(f"s_branch {name}_at_ld")
            a.label(f"{name}_at_small")
            a(f"s_cmp_eq_u32 s{sU}, 0")
            a(f"s_cbranch_scc1 {name}_at_u0")
            step(0, isA, do_early=False, do_pv=False, fused=False, ls=False)
            a(f"s_branch {name}_at_u1b")
            a.label(f"{name}_at_u0")
            a("s_waitcnt lgkmcnt(0)")
            last_step(0, do_pv=False, ls=False)
            final_pv(0)
            a(f"s_branch {name}_at_epiA")
    for l, back in astamps:
        a.label(l)
        for k, n in enumerate(AST):
            nx = a.newlabel("an")
            a(f"s_cmp_lg_u32 s{sNI}, {n}")
            a(f"s_cbranch_scc1 {nx}")
            G.stamp(a, 7 + k, True)
            a.label(nx)
        a(f"s_branch {back}")
    for l, back, p in sites:
        a.label(l)
        a(f"s_call_b64 s[62:63], {name}_rare{p}")
        a(f"s_branch {back}")
    for l, back in hooks:
        a.label(l)
        a(f"s_call_b64 s[62:63], {name}_hook")
        a(f"s_branch {back}")
    for p in range(2):
        a.label(f"{name}_rare{p}")
        a.settle(16)
        rowmax(p, 4, 5)
        a("v_max_f32 v4, 0, v4")
        a("v_sub_f32 v5, 0, v4")
        a("v_exp_f32 v5, v5")
        for r in range(16): a(f"v_sub_f32 v{NEGM + r}, v{NEGM + r}, v4")
        for r in range(16): a(f"v_sub_f32 v{S[p] + r}, v{S[p] + r}, v4")
        for r in range(16): a(f"v_sub_f32 v{S[p^1] + r}, v{S[p^1] + r}, v4")
        for r in range(64): a(f"v_mul_f32 v{O + r}, v{O + r}, v5")
        a(f"v_mul_f32 v{LS}, v{LS}, v5")
        for e in range(17):
            for s in slot(p, e): a(s)
        early(p ^ 1, 5)
        a.settle(4)
        a("s_setpc_b64 s[62:63]")
    a.label(f"{name}_hook")
    a("s_cmp_ge_u32 s3, 4")
    a(f"s_cbranch_scc1 {name}_hook2")
    a(f"s_cmp_lt_u32 s{sNI}, 5")
    a(f"s_cbranch_scc1 {name}_hook2")
    a(f"s_cmp_lt_u32 s{sNI}, 9")
    a(f"s_cbranch_scc1 {name}_hook1")
    a(f"buffer_load_dword v{vT}, v19, s[28:31], s51 offen")
    a("s_setpc_b64 s[62:63]")
    a.label(f"{name}_hook1")
    a(f"buffer_load_dword v{vT}, v19, s[16:19], s50 offen")
    a("s_setpc_b64 s[62:63]")
    a.label(f"{name}_hook2")
    for h in HOOKS:
        nx = a.newlabel("hn")
        a(f"s_cmp_lg_u32 s{sNI}, {h}")
        a(f"s_cbranch_scc1 {nx}")
        if h == 1:
            lw = a.newlabel("nw")
            a("s_cmp_ge_u32 s3, 4")
            a(f"s_cbranch_scc1 {lw}")
            a(f"s_waitcnt vmcnt({0 if G.OPT.get('st16') else 2})")
            a.label(lw)
        if h == 2:
            a(f"s_add_u32 s8, s{sI}, {G.C_Z}")
            G.signal(a, 8, 4)
        if h < 4:
            for j in (() if G.OPT.get('st16') else (8 + 2 * h, 9 + 2 * h)):
                for x in G.kvstore(j): a(x)
        if h == 4:
            a("s_waitcnt vmcnt(0)")
        if h == 5:
            a(f"s_add_u32 s8, s{G.kCKV}, 32")
            G.signal(a, 8, 4)
        if h == 10:
            a(f"s_lshr_b32 s8, s{sH}, 1")
            a(f"s_add_u32 s8, s8, {G.C_KV + 32}")
            G.poll_issue(a, 8, vPL)
        if h == 12:
            a(f"s_lshr_b32 s8, s{sH}, 1")
            a(f"s_add_u32 s8, s8, {G.C_KV + 32}")
            G.poll_check(a, 8, vPL, 16)
        a("s_setpc_b64 s[62:63]")
        a.label(nx)
    a.label(f"{name}_hookret")
    a("s_setpc_b64 s[62:63]")
    a.label(f"{name}_at_done")
    if G.OPT.get("astamp"): G.stamp(a, 14, True)
```

```python
from asmlib import *
import mg as G

def lnz_parts(a, sUnit, st):
    SC = G.SC
    PZ, SUM, SQ, TA, TB = 64, 108, 116, 124, 125
    s0, s1 = st[0], st[1]
    def load():
        a("v_lshrrev_b32 v4, 4, v1")
        a("v_lshlrev_b32 v4, 16, v4")
        a("v_and_b32 v5, 15, v1")
        a("v_lshl_add_u32 v6, v5, 4, v4")
        a("v_mov_b32 v4, 0x20000000")
        a("v_cmp_gt_u32 vcc, 48, v1")
        a("v_cndmask_b32 v7, v4, v6, vcc")
        a(f"s_lshl_b32 s{s0}, s{sUnit}, 8")
        for m in range(11):
            a(f"s_add_u32 s{s1}, s{s0}, {G.Z2F + m * 262144}")
            a(f"buffer_load_dwordx4 v[{PZ + 4*m}:{PZ + 4*m + 3}], v{7 if m == 10 else 6}, s[4:7], s{s1} offen{SC}")
    def sums(lo=0, hi=11):
        for m in range(lo, hi):
            for d in range(4):
                r = PZ + 4 * m + d
                a(f"v_lshlrev_b32 v{TA}, 16, v{r}")
                a(f"v_and_b32 v{TB}, 0xffff0000, v{r}")
                if m == 0:
                    a(f"v_mov_b32 v{SUM + 2*d}, v{TA}"); a(f"v_mov_b32 v{SUM + 2*d + 1}, v{TB}")
                    a(f"v_mul_f32 v{SQ + 2*d}, v{TA}, v{TA}"); a(f"v_mul_f32 v{SQ + 2*d + 1}, v{TB}, v{TB}")
                else:
                    a(f"v_add_f32 v{SUM + 2*d}, v{SUM + 2*d}, v{TA}"); a(f"v_add_f32 v{SUM + 2*d + 1}, v{SUM + 2*d + 1}, v{TB}")
                    a(f"v_fmac_f32 v{SQ + 2*d}, v{TA}, v{TA}"); a(f"v_fmac_f32 v{SQ + 2*d + 1}, v{TB}, v{TB}")
    def stats(part):
        if part == 0:
            for mod in ("quad_perm:[1,0,3,2]", "quad_perm:[2,3,0,1]", "row_half_mirror", "row_mirror"):
                for j in range(16):
                    a(f"v_add_f32 v{SUM + j}, v{SUM + j}, v{SUM + j} {mod} row_mask:0xf bank_mask:0xf")
        if part == 1:
            for op in ("v_permlane16_swap_b32", "v_permlane32_swap_b32"):
                for j0 in range(0, 16, 4):
                    for j in range(4): a(f"v_mov_b32 v{126 + j}, v{SUM + j0 + j}")
                    for j in range(4): a(f"{op} v{SUM + j0 + j}, v{126 + j}")
                    for j in range(4): a(f"v_add_f32 v{SUM + j0 + j}, v{SUM + j0 + j}, v{126 + j}")
        if part == 2:
            a(f"s_mov_b32 s{s1}, {G.f32(1.0 / 688)}")
            for j in range(8):
                a(f"v_mul_f32 v{SUM + j}, s{s1}, v{SUM + j}")
                a(f"v_mul_f32 v{SQ + j}, s{s1}, v{SQ + j}")
                a(f"v_fma_f32 v{SQ + j}, -v{SUM + j}, v{SUM + j}, v{SQ + j}")
                a(f"v_max_f32 v{SQ + j}, 0, v{SQ + j}")
                a(f"v_add_f32 v{SQ + j}, {G.f32(1e-5)}, v{SQ + j}")
                a(f"v_rsq_f32 v{SQ + j}, v{SQ + j}")
            for j in range(8):
                a(f"v_mul_f32 v{SUM + j}, v{SUM + j}, v{SQ + j}")
    def store(lo=0, hi=11):
        for m in range(lo, hi):
            for d in range(4):
                r = PZ + 4 * m + d
                a(f"v_lshlrev_b32 v{TA}, 16, v{r}")
                a(f"v_and_b32 v{TB}, 0xffff0000, v{r}")
                a(f"v_fma_f32 v{TA}, v{TA}, v{SQ + 2*d}, -v{SUM + 2*d}")
                a(f"v_fma_f32 v{TB}, v{TB}, v{SQ + 2*d + 1}, -v{SUM + 2*d + 1}")
                a(f"v_cvt_pk_bf16_f32 v{r}, v{TA}, v{TB}")
            a(f"s_add_u32 s{s1}, s{s0}, {G.Z2N + m * 262144}")
            a(f"buffer_store_dwordx4 v[{PZ + 4*m}:{PZ + 4*m + 3}], v{7 if m == 10 else 6}, s[4:7], s{s1} offen{SC}")
    return load, sums, stats, store

def tail(a):
    name = G.N; SC = G.SC
    sTG, oX, oC, oI, oCNT, oRT, oOUT = 33, 34, 35, 36, 37, 38, 39
    def emit(vm, g, tag):
        for x in g:
            a(x)
            if x.startswith("buffer_"): vm.issue(tag)
    a("s_load_dwordx2 s[10:11], s[0:1], 72")
    a("s_load_dwordx2 s[12:13], s[0:1], 88")
    a("s_load_dwordx2 s[64:65], s[0:1], 0")
    a(f"s_mov_b32 s8, {G.C_Z2N}")
    G.poll_issue(a, 8, 26, 8)
    a(f"s_and_b32 s{oX}, s2, 7")
    a(f"s_bfe_u32 s{oC}, s2, 0x20003")
    a(f"s_lshr_b32 s{oI}, s2, 5")
    a(f"s_lshl_b32 s{sTG}, s{oX}, 2")
    a(f"s_add_u32 s{sTG}, s{sTG}, s{oC}")
    a(f"s_lshl_b32 s8, s{oX}, 2")
    a(f"s_lshr_b32 s9, s{oI}, 1")
    a("s_add_u32 s8, s8, s9")
    a(f"s_add_u32 s{oCNT}, s8, {G.C_CTX}")
    a("v_lshrrev_b32 v6, 4, v1")
    a("v_lshrrev_b32 v4, 3, v1")
    a("v_and_b32 v5, 7, v1")
    a("v_lshrrev_b32 v7, 1, v5")
    a("v_and_b32 v5, 1, v5")
    a("v_xor_b32 v7, v7, v6")
    a("v_lshlrev_b32 v7, 5, v7")
    a("v_lshl_add_u32 v7, v5, 4, v7")
    a("v_lshl_add_u32 v27, v4, 10, v7")
    a(f"s_bitcmp1_b32 s{oI}, 0")
    a(f"s_cbranch_scc1 {name}_t_s")
    vm = G.VM()
    OACC, OA, WR = 128, 64, 32
    a("v_and_b32 v5, 15, v1")
    a("v_lshrrev_b32 v4, 1, v5")
    a("v_and_b32 v5, 1, v5")
    a("v_xor_b32 v4, v4, v6")
    a("v_lshlrev_b32 v4, 5, v4")
    a("v_lshl_add_u32 v4, v5, 4, v4")
    a("v_lshl_add_u32 v24, v6, 10, v4")
    a("v_xor_b32 v25, 128, v24")
    a(f"s_lshl_b32 s40, s{oX}, 19")
    a("s_lshl_b32 s8, s3, 14")
    a("s_add_u32 s40, s40, s8")
    a(f"s_lshl_b32 s8, s{oC}, 8")
    a("s_add_u32 s40, s40, s8")
    a("s_lshl_b32 s41, s3, 12")
    a("s_bfe_u32 s8, s3, 0x10001")
    a(f"s_add_u32 s8, s8, s{oI}")
    a("s_sub_u32 s9, 15, s8")
    a("s_cmp_ge_u32 s3, 4")
    a("s_cselect_b32 s8, s9, s8")
    a("s_lshl_b32 s8, s8, 3")
    a("s_and_b32 s9, s3, 1")
    a("s_lshl_b32 s9, s9, 2")
    a("s_add_u32 s44, s8, s9")
    a(f"s_mul_i32 s42, s44, {G.AF_KS}")
    a(f"s_lshl_b32 s8, s{oX}, 4")
    a("s_add_u32 s42, s42, s8")
    a("s_lshl_b32 s42, s42, 10")
    a(f"s_add_u32 s42, s42, {G.AF}")
    a("v_and_b32 v4, 15, v1")
    a("v_lshrrev_b32 v4, 2, v4")
    a("v_lshl_add_u32 v7, v6, 2, v4")
    a("v_and_b32 v5, 7, v7")
    a("v_and_b32 v4, 3, v1")
    a("v_lshlrev_b32 v4, 3, v4")
    a("v_lshl_add_u32 v4, v7, 8, v4")
    for mt in range(8):
        a(f"v_xor_b32 v3, {mt}, v5")
        a(f"v_lshl_add_u32 v{16 + mt}, v3, 5, v4")
    def wdma(g):
        return [[f"s_add_u32 m0, s41, {g * 32768 + m * 1024}", f"s_add_u32 s12, s40, {(g * 128 + 4 * m) * 1024}",
                 f"buffer_load_dwordx4 v{24 + (m & 1)}, s[20:23], s12 offen lds"] for m in range(4)]
    def cload(ks):
        out = []
        for T in range(4):
            r = OA + 16 * (ks & 3) + 4 * T
            out.append([f"s_add_u32 s12, s42, {T * G.AF_KS * 1024 + (ks >> 2) * 4096}",
                        f"buffer_load_dwordx4 v[{r}:{r+3}], v2, s[4:7], s12 offen offset:{(ks & 3) * 1024}{SC}"])
        return out
    def srds():
        G.srd(a, 28, 10, 11, 4096)
        G.srd(a, 60, 12, 13, 2048 * 1024)
        G.srd(a, 64, 64, 65, 2048 * 1024)
    a("s_waitcnt vmcnt(0) lgkmcnt(0)")
    srds()
    a("s_barrier")
    G.signal(a, oCNT, 0)
    G.stamp(a, 6)
    for g in range(4):
        for x in wdma(g): emit(vm, x, ("w", g))
    G.poll_issue(a, oCNT, 26); vm.issue("pc")
    a("s_waitcnt vmcnt(0)")
    G.poll_check(a, oCNT, 26, 8)
    for ks in range(4):
        for g in cload(ks): emit(vm, g, ("c", ks))
    a("s_barrier")
    def wread(ks, mt):
        b = WR + 4 * mt; o = (ks & 7) * 8192
        return [f"ds_read_b64_tr_b16 v[{b}:{b+1}], v{16 + mt} offset:{o}", f"ds_read_b64_tr_b16 v[{b+2}:{b+3}], v{16 + mt} offset:{o + 4096}"]
    for mt in range(8):
        for x in wread(0, mt): a(x)
    G.stamp(a, 7)
    for ks in range(16):
        a(f"s_waitcnt vmcnt({vm.after(('c', ks))})")
        if ks == 7:
            for mt in range(8): a(f"v_add_u32 v{16 + mt}, 0x10000, v{16 + mt}")
        for mt in range(8):
            if mt % 2 == 0: a(f"s_waitcnt lgkmcnt({12 if ks < 15 else 12 - 2 * mt})")
            for T in range(4):
                acc = OACC + 16 * mt + 4 * T; r = OA + 16 * (ks & 3) + 4 * T
                a(f"v_mfma_f32_16x16x32_bf16 v[{acc}:{acc+3}], v[{WR + 4*mt}:{WR + 4*mt + 3}], v[{r}:{r+3}], {'0' if ks == 0 else f'v[{acc}:{acc+3}]'}")
            if ks < 15:
                for x in wread(ks + 1, mt): a(x)
        if ks + 4 < 16:
            for g in cload(ks + 4): emit(vm, g, ("c", ks + 4))
    G.stamp(a, 8)
    a(f"s_lshl_b32 s8, s{oX}, 7")
    a("s_add_u32 s8, s8, s44")
    a("s_lshl_b32 s8, s8, 14")
    a(f"s_lshl_b32 s9, s{oC}, 12")
    a("s_add_u32 s8, s8, s9")
    a(f"s_add_u32 s8, s8, {G.PF}")
    for T in range(4):
        for D in range(4):
            t = 32 + 4 * (4 * (T & 1) + D)
            for e in range(2):
                r = OACC + 16 * (2 * D + e) + 4 * T
                a(f"v_cvt_pk_bf16_f32 v{t + 2*e}, v{r}, v{r+1}")
                a(f"v_cvt_pk_bf16_f32 v{t + 2*e + 1}, v{r+2}, v{r+3}")
            a(f"buffer_store_dwordx4 v[{t}:{t+3}], v2, s[4:7], s8 offen offset:{D * 1024}{SC}")
        a("s_add_u32 s8, s8, 16384")
    a("s_waitcnt vmcnt(0)")
    a("s_barrier")
    a(f"s_lshr_b32 s8, s{oI}, 1")
    a("s_lshl_b32 s8, s8, 2")
    a(f"s_add_u32 s8, s8, s{oC}")
    a(f"s_add_u32 s8, s8, {G.C_P}")
    G.signal(a, 8, 0)
    G.stamp(a, 9)
    a(f"s_branch {name}_t_f")
    a.label(f"{name}_t_s")
    vm = G.VM()
    bT, bFG, bFT0, bLIM, bWSP, bREG, bZN, bIDX = 42, 43, 44, 45, 46, 47, 48, 49
    ACC, ZF, BF = 160, 64, (96, 128)
    ZF = 32; ZD = 5
    a(f"s_lshl_b32 s{bT}, s{oX}, 1")
    a(f"s_and_b32 s8, s{oC}, 1")
    a(f"s_add_u32 s{bT}, s{bT}, s8")
    a(f"s_lshr_b32 s8, s{oC}, 1")
    a("s_lshl_b32 s8, s8, 2")
    a(f"s_lshr_b32 s9, s{oI}, 1")
    a(f"s_add_u32 s{bFG}, s8, s9")
    a(f"s_mul_i32 s{bFT0}, s{bFG}, 6")
    a(f"s_lshl_b32 s8, s{bFG}, 2")
    a("s_add_u32 s8, s8, 12")
    a(f"s_cmp_lt_u32 s{bFG}, 6")
    a(f"s_cselect_b32 s{bFT0}, s{bFT0}, s8")
    a(f"s_cmp_eq_u32 s{bFG}, 6")
    a(f"s_cselect_b32 s{bLIM}, 40, 44")
    a("s_and_b32 s8, s3, 1")
    a("s_mul_i32 s8, s8, 3")
    a(f"s_add_u32 s{bFT0}, s{bFT0}, s8")
    a("v_lshrrev_b32 v4, 3, v1")
    a("v_lshlrev_b32 v4, 12, v4")
    a("v_and_b32 v5, 7, v1")
    a("v_xor_b32 v5, v5, v6")
    a("v_lshl_add_u32 v14, v5, 4, v4")
    a("v_xor_b32 v15, 64, v14")
    a("s_lshr_b32 s50, s3, 1")
    a(f"s_lshl_b32 s{bWSP}, s{bT}, 19")
    a("s_lshl_b32 s8, s50, 10")
    a(f"s_add_u32 s{bWSP}, s{bWSP}, s8")
    a("s_and_b32 s8, s3, 1")
    a("s_lshl_b32 s8, s8, 18")
    a(f"s_add_u32 s{bWSP}, s{bWSP}, s8")
    a("s_lshl_b32 s51, s50, 15")
    a("s_and_b32 s8, s3, 1")
    a("s_lshl_b32 s8, s8, 13")
    a(f"s_add_u32 s{bREG}, s51, s8")
    for j in range(3):
        a(f"s_add_u32 s9, s{bFT0}, {j}")
        a("s_min_u32 s9, s9, 42")
        a("s_lshl_b32 s9, s9, 16")
        a("s_lshl_b32 s8, s50, 14")
        a("s_add_u32 s9, s9, s8")
        a(f"s_add_u32 s{52 + j}, s9, {G.Z2N}")
    a("v_and_b32 v4, 15, v1")
    a("v_lshrrev_b32 v5, 1, v4")
    a("v_xor_b32 v5, v5, v6")
    a("v_lshlrev_b32 v5, 4, v5")
    a("v_lshl_add_u32 v5, v4, 7, v5")
    a("v_add_u32 v16, s51, v5")
    a("v_xor_b32 v17, 64, v16")
    def bdma(c):
        return [[f"s_add_u32 m0, s{bREG}, {(c & 1) * 16384 + m * 1024}", f"s_add_u32 s12, s{bWSP}, {m * 32768 + c * 128}",
                 f"buffer_load_dwordx4 v{14 + (m & 1)}, s[16:19], s12 offen lds"] for m in range(8)]
    def zload(ks):
        out = []
        for j in range(3):
            r = ZF + 12 * (ks % ZD) + 4 * j
            out.append([f"s_add_u32 s12, s{52 + j}, {(ks >> 2) * 4096}",
                        f"buffer_load_dwordx4 v[{r}:{r+3}], v2, s[4:7], s12 offen offset:{(ks & 3) * 1024}{SC}"])
        return out
    def bread(ks):
        return [f"ds_read_b128 v[{BF[ks & 1] + 4*tt}:{BF[ks & 1] + 4*tt + 3}], v{16 + (ks & 1)} offset:{((ks >> 1) & 1) * 16384 + tt * 2048}" for tt in range(8)]
    a("s_waitcnt vmcnt(0) lgkmcnt(0)")
    srds()
    a(f"s_mov_b32 s8, {G.C_Z2N}")
    G.poll_check(a, 8, 26, 32, 8)
    for ks in range(2):
        for g in zload(ks): emit(vm, g, ("z", ks))
    a("s_barrier")
    G.signal(a, oCNT, 0)
    G.stamp(a, 6)
    for g in bdma(0): emit(vm, g, ("b", 0))
    for g in bdma(1): emit(vm, g, ("b", 1))
    a(f"s_waitcnt vmcnt({vm.after(('b', 0))})")
    a("s_barrier")
    G.stamp(a, 7)
    for x in bread(0): a(x)
    for ks in range(2, ZD):
        for g in zload(ks): emit(vm, g, ("z", ks))
    Z1R, BSR = 44, 56
    def eload(e):
        if e == 0:
            a(f"s_mul_i32 s{bIDX}, s50, 6")
            a("v_and_b32 v10, 15, v1")
            a("v_lshlrev_b32 v10, 1, v10")
        tile_ids(e); frag_off(22, G.Z1F)
        a("s_cmp_lt_u32 s10, 43")
        a(f"s_cselect_b32 s8, s8, {G.OOB}")
        a(f"buffer_load_dwordx2 v[{Z1R + 2*e}:{Z1R + 2*e + 1}], v2, s[4:7], s8 offen{SC}"); vm.issue("e")
        a("s_lshl_b32 s8, s11, 5")
        a(f"buffer_load_ushort v{BSR + e}, v10, s[28:31], s8 offen"); vm.issue("e")
        frag_off(G.AF_KS, G.AF + 128 * 1024)
        a(f"s_cmp_lt_u32 s10, s{bLIM}")
        a(f"s_cselect_b32 s{(55, 56, 57, 58, 59, 48)[e]}, s8, {G.OOB}")
    def tile_ids(e):
        a(f"s_add_u32 s8, s{bIDX}, {e}")
        a("s_lshr_b32 s9, s8, 3")
        a(f"s_add_u32 s10, s9, s{bFT0}")
        a("s_and_b32 s8, s8, 7")
        a(f"s_lshl_b32 s9, s{bT}, 3")
        a("s_add_u32 s11, s9, s8")
    def frag_off(stride, base):
        a(f"s_mul_i32 s8, s11, {stride}")
        a("s_lshr_b32 s9, s10, 1")
        a("s_add_u32 s8, s8, s9")
        a("s_lshl_b32 s8, s8, 10")
        a("s_and_b32 s9, s10, 1")
        a("s_lshl_b32 s9, s9, 3")
        a("s_add_u32 s8, s8, s9")
        a(f"s_add_u32 s8, s8, {base}")
    for ks in range(16):
        c = ks >> 1
        need = [("z", ks)]
        if ks & 1 and ks < 15: need.append(("b", c + 1))
        a(f"s_waitcnt vmcnt({vm.after(*need)}) lgkmcnt(0)")
        extra = []
        if ks & 1 and ks < 15:
            a("s_barrier")
            if c + 2 < 8: extra = [(g, ("b", c + 2)) for g in bdma(c + 2)]
        rd = bread(ks + 1) if ks < 15 else []
        for j in range(3):
            for tt in range(8):
                acc = ACC + 4 * (8 * j + tt); r = ZF + 12 * (ks % ZD) + 4 * j; b = BF[ks & 1] + 4 * tt
                a(f"v_mfma_f32_16x16x32_bf16 v[{acc}:{acc+3}], v[{r}:{r+3}], v[{b}:{b+3}], {'0' if ks == 0 else f'v[{acc}:{acc+3}]'}")
                if rd: a(rd.pop(0))
                elif extra:
                    g, tag = extra.pop(0); emit(vm, g, tag)
            if ks + ZD < 16: emit(vm, zload(ks + ZD)[j], ("z", ks + ZD))
            if ks in (13, 14): eload(3 * (ks - 13) + j)
    G.stamp(a, 8)
    a("s_mul_i32 s8, s3, 20480")
    a("v_add_u32 v12, s8, v2")
    a("s_barrier")
    n = 24
    for rnd, bit in enumerate((4, 2)):
        h = n // 2; off = (0, 12288)[rnd]
        lab = f"{name}_sr{rnd}"
        a(f"s_xor_b32 s8, s3, {bit}")
        a("s_mul_i32 s8, s8, 20480")
        a("v_add_u32 v13, s8, v2")
        a(f"s_and_b32 s9, s3, {bit}")
        a(f"s_cbranch_scc1 {lab}_hi")
        for hi in (0, 1):
            if hi: a.label(f"{lab}_hi")
            send = 0 if hi else h; keep = h if hi else 0
            for t in range(h): a(f"ds_write_b128 v12, v[{ACC + 4*(send + t)}:{ACC + 4*(send + t) + 3}] offset:{off + t * 1024}")
            a("s_waitcnt lgkmcnt(0)")
            a("s_barrier")
            for t in range(h): a(f"ds_read_b128 v[{ACC + 4*(send + t)}:{ACC + 4*(send + t) + 3}], v13 offset:{off + t * 1024}")
            for t in range(h):
                a(f"s_waitcnt lgkmcnt({h - 1 - t})")
                for q in range(4): a(f"v_add_f32 v{ACC + 4*t + q}, v{ACC + 4*(keep + t) + q}, v{ACC + 4*(send + t) + q}")
            if not hi: a(f"s_branch {lab}_j")
        a.label(f"{lab}_j")
        n = h
    a("s_waitcnt vmcnt(0)")
    for e in range(6):
        r = ACC + 4 * e
        a(f"v_lshlrev_b32 v{BSR + e}, 16, v{BSR + e}")
        for q in range(4): a(f"v_add_f32 v{r + q}, v{r + q}, v{BSR + e}")
        for d in range(2):
            z = Z1R + 2 * e + d
            a(f"v_lshlrev_b32 v4, 16, v{z}")
            a(f"v_and_b32 v5, 0xffff0000, v{z}")
            a(f"v_mul_f32 v4, v4, v{r + 2*d}")
            a(f"v_mul_f32 v5, v5, v{r + 2*d + 1}")
            a(f"v_cvt_pk_bf16_f32 v{z}, v4, v5")
        a(f"buffer_store_dwordx2 v[{Z1R + 2*e}:{Z1R + 2*e + 1}], v2, s[4:7], s{(55, 56, 57, 58, 59, 48)[e]} offen{SC}")
    a("s_waitcnt vmcnt(0)")
    a("s_barrier")
    a(f"s_add_u32 s8, s{bT}, {G.C_U}")
    G.signal(a, 8, 0)
    G.stamp(a, 9)
    a.label(f"{name}_t_f")
    vm = G.VM()
    G.stamp(a, 10)
    a("s_lshl_b32 s43, s3, 13")
    a(f"s_lshl_b32 s8, s{oI}, 7")
    a("s_add_u32 s43, s43, s8")
    a("s_lshl_b32 s44, s3, 10")
    for n in range(11):
        a(f"s_add_u32 m0, s44, {n * 8192}")
        a(f"s_add_u32 s12, s43, {n * 65536}")
        a("buffer_load_dwordx4 v27, s[24:27], s12 offen lds"); vm.issue("wo")
    a(f"s_lshr_b32 s8, s{sTG}, 1")
    a(f"s_add_u32 s45, s8, {G.C_U}")
    a("s_sub_u32 s9, 15, s8")
    a("s_min_u32 s8, s8, s9")
    a("s_lshr_b32 s8, s8, 1")
    a("s_lshl_b32 s8, s8, 2")
    a(f"s_lshr_b32 s9, s{oI}, 1")
    a("s_add_u32 s8, s8, s9")
    a(f"s_add_u32 s42, s8, {G.C_P}")
    G.poll_issue(a, 42, 26); vm.issue("pp")
    a(f"s_lshl_b32 s{oRT}, s{sTG}, 2")
    a("s_lshr_b32 s8, s3, 1")
    a(f"s_add_u32 s{oRT}, s{oRT}, s8")
    a(f"s_mul_i32 s41, s{oRT}, {G.AF_KS}")
    a("s_lshl_b32 s41, s41, 10")
    a(f"s_add_u32 s41, s41, {G.AF + 128 * 1024}")
    a("v_and_b32 v4, 15, v1")
    a("v_lshlrev_b32 v4, 10, v4")
    a("v_lshrrev_b32 v5, 4, v1")
    a("v_lshl_add_u32 v13, v5, 3, v4")
    a(f"s_lshl_b32 s{oOUT}, s{oRT}, 14")
    a(f"s_lshl_b32 s8, s{oI}, 7")
    a(f"s_add_u32 s{oOUT}, s{oOUT}, s8")
    a("s_and_b32 s8, s3, 1")
    a("s_lshl_b32 s8, s8, 6")
    a(f"s_add_u32 s{oOUT}, s{oOUT}, s8")
    for e in range(2):
        a(f"buffer_load_dwordx2 v[{28 + 2*e}:{29 + 2*e}], v13, s[64:67], s{oOUT} offen offset:{32 * e}"); vm.issue("x")
    a("v_and_b32 v4, 15, v1")
    a("v_lshrrev_b32 v6, 2, v4")
    a("v_lshl_add_u32 v7, v5, 2, v6")
    a("v_bfe_u32 v6, v7, 1, 2")
    a("v_and_b32 v4, 3, v1")
    a("v_lshlrev_b32 v4, 3, v4")
    a("v_lshl_add_u32 v4, v7, 7, v4")
    a("s_and_b32 s8, s3, 1")
    a("s_lshl_b32 s8, s8, 1")
    for e in range(2):
        a(f"s_add_u32 s9, s8, {e}")
        a("v_xor_b32 v3, s9, v6")
        a(f"v_lshl_add_u32 v{14 + e}, v3, 5, v4")
        a(f"v_add_u32 v{16 + e}, 0x10000, v{14 + e}")
    a(f"s_lshl_b32 s46, s{oRT}, 14")
    a(f"s_lshl_b32 s9, s{oI}, 1")
    a("s_and_b32 s10, s3, 1")
    a("s_add_u32 s9, s9, s10")
    a("s_lshl_b32 s9, s9, 10")
    a("s_add_u32 s46, s46, s9")
    a("s_waitcnt vmcnt(0)")
    a("s_barrier")
    G.stamp(a, 11)
    WU, FA, UF = 160, 192, 64
    def uread(ks):
        out = []
        for e in range(2):
            b = WU + 8 * (ks & 3) + 4 * e; o = (ks & 15) * 4096; v = 14 + 2 * (ks >> 4) + e
            out += [f"ds_read_b64_tr_b16 v[{b}:{b+1}], v{v} offset:{o}", f"ds_read_b64_tr_b16 v[{b+2}:{b+3}], v{v} offset:{o + 2048}"]
        return out
    for ks in range(3):
        for x in uread(ks): a(x)
    G.poll_check(a, 42, 26, 8)
    for x in range(8):
        a(f"s_add_u32 s12, s46, {G.PF + x * 128 * 16384}")
        a(f"buffer_load_dwordx4 v[{200 + 4*x}:{203 + 4*x}], v2, s[4:7], s12 offen{SC}")
    G.poll_issue(a, 45, 26)
    G.stamp(a, 12)
    for k in range(4):
        a(f"v_lshlrev_b32 v{FA + 2*k}, 16, v{28 + k}")
        a(f"v_and_b32 v{FA + 2*k + 1}, 0xffff0000, v{28 + k}")
    for x in range(8):
        a(f"s_waitcnt vmcnt({8 - x})")
        for k in range(4):
            z = 200 + 4 * x + k; r = FA + 2 * k
            a(f"v_lshlrev_b32 v4, 16, v{z}")
            a(f"v_and_b32 v5, 0xffff0000, v{z}")
            a(f"v_add_f32 v{r}, v{r}, v4")
            a(f"v_add_f32 v{r+1}, v{r+1}, v5")
    a("s_waitcnt vmcnt(0)")
    G.poll_check(a, 45, 26, 8)
    G.stamp(a, 13)
    for ks in range(22):
        if ks % 4 == 0: a(f"s_add_u32 s12, s41, {ks * 1024}")
        a(f"buffer_load_dwordx4 v[{UF + 4*ks}:{UF + 4*ks + 3}], v2, s[4:7], s12 offen offset:{(ks & 3) * 1024}{SC}")
    for ks in range(22):
        a(f"s_waitcnt vmcnt({21 - ks}) lgkmcnt({4 * min(2, 21 - ks)})")
        for e in range(2):
            b = WU + 8 * (ks & 3) + 4 * e
            a(f"v_mfma_f32_16x16x32_bf16 v[{FA + 4*e}:{FA + 4*e + 3}], v[{b}:{b+3}], v[{UF + 4*ks}:{UF + 4*ks + 3}], v[{FA + 4*e}:{FA + 4*e + 3}]")
        if ks + 3 < 22:
            for x in uread(ks + 3): a(x)
    G.stamp(a, 14)
    for e in range(2):
        r = FA + 4 * e
        a(f"v_cvt_pk_bf16_f32 v{28 + 2*e}, v{r}, v{r+1}")
        a(f"v_cvt_pk_bf16_f32 v{29 + 2*e}, v{r+2}, v{r+3}")
        a(f"buffer_store_dwordx2 v[{28 + 2*e}:{29 + 2*e}], v13, s[60:63], s{oOUT} offen offset:{32 * e}")
```

```python
import sys, math, struct
from asmlib import *

NAME = "parallel_sum__compressed_kv_cla__mixer_gmlp__prompt"
XNF = 0x0000000
KF  = 0x0200000
VF  = 0x1200000
AF  = 0x2200000
AF_KS = 150
Z1F = 0x3600000
Z2F = 0x3A00000
Z2N = 0x3E00000
CNTO = 0x7000000
TSO = 0x8000000
WS_BYTES = 0x10000000
OOB = 0x20000000
C_XN, C_KV, C_Z, C_Z2N, C_CTX, C_U, C_P, C_CTXS = 0, 16, 80, 88, 96, 160, 192, 224
PF = 0x4200000
STAMP = False
OPT = {}
SC = " sc1"
N = NAME + "_kernel"

sH, sI, sTILE, sR0, sZT, sN0, sNT, sU, sUC, sNI, sKSRC, sVSRC, sTHR = range(32, 45)
qWq, qWin, qL2k, qL1k, qXN = range(46, 51)
kX, kW, kL4k, kIsV, kST, kSA, kCKV, kRow = range(54, 62)

def f32(x): return "0x%08x" % struct.unpack("<I", struct.pack("<f", x))[0]
def stamp(a, i, force=False):
    if (OPT.get("astamp") or OPT.get("fstamp")) and 7 <= i <= 14 and not force: return
    if STAMP: a(f"{'s_memtime' if OPT.get('cyc') else 's_memrealtime'} s[{68 + 2*i}:{69 + 2*i}]")
def stampc(a, i):
    if STAMP: a(f"s_memtime s[{68 + 2*i}:{69 + 2*i}]")
def srd(a, d, lo, hi, nbytes):
    a(f"s_mov_b32 s{d}, s{lo}")
    a(f"s_and_b32 s{d+1}, s{hi}, 0xffff")
    a(f"s_mov_b32 s{d+2}, {nbytes:#x}")
    a(f"s_mov_b32 s{d+3}, 0x00020000")
def wave_allreduce(a, v, t, op="v_add_f32"):
    for mod in ("quad_perm:[1,0,3,2]", "quad_perm:[2,3,0,1]", "row_half_mirror", "row_mirror"):
        a(f"{op} v{v}, v{v}, v{v} {mod} row_mask:0xf bank_mask:0xf")
    for sw in ("v_permlane16_swap_b32", "v_permlane32_swap_b32"):
        a(f"v_mov_b32 v{t}, v{v}")
        a(f"{sw} v{v}, v{t}")
        a(f"{op} v{v}, v{v}, v{t}")
def pi_of(a, dst, src, tmp):
    a(f"v_lshrrev_b32 v{tmp}, 1, v{src}")
    a(f"v_mul_u32_u24 v{tmp}, 3, v{tmp}")
    a(f"v_lshlrev_b32 v{dst}, 1, v{src}")
    a(f"v_xor_b32 v{dst}, v{dst}, v{tmp}")
    a(f"v_and_b32 v{dst}, 3, v{dst}")

class VM:
    def __init__(self): self.q = []
    def issue(self, tag, n=1): self.q += [tag] * n
    def after(self, *tags):
        return min(63, min(len(self.q) - 1 - max(i for i, t in enumerate(self.q) if t == tag) for tag in tags))

def signal(a, sidx, wave, release=False):
    l = a.newlabel("sig")
    if wave is not None:
        a(f"s_cmp_lg_u32 s3, {wave}")
        a(f"s_cbranch_scc1 {l}")
    if release:
        a("buffer_wbl2 sc1")
        a("s_waitcnt vmcnt(0)")
    a(f"s_lshl_b32 s14, s{sidx}, 8")
    a(f"s_add_u32 s14, s14, {CNTO}")
    a("v_mov_b32 v8, 0")
    a("v_mov_b32 v9, 1")
    a("s_mov_b64 exec, 1")
    a("buffer_atomic_add v9, v8, s[4:7], s14 offen sc1")
    a("s_mov_b64 exec, -1")
    a.label(l)
def poll_issue(a, sidx, vdst, nshard=1):
    a(f"s_lshl_b32 s14, s{sidx}, 8")
    a(f"s_add_u32 s14, s14, {CNTO}")
    a(f"v_and_b32 v8, {nshard - 1}, v1")
    a("v_lshlrev_b32 v8, 8, v8")
    a(f"buffer_load_dword v{vdst}, v8, s[4:7], s14 offen sc1")
def poll_check(a, sidx, vdst, target, nshard=1):
    l = a.newlabel("poll"); d = a.newlabel("polld")
    a("s_mov_b32 s15, 0x20000")
    a.label(l)
    a(f"v_cmp_gt_u32 vcc, {target}, v{vdst}")
    a(f"s_cbranch_vccz {d}")
    a("s_sleep 2")
    poll_issue(a, sidx, vdst, nshard)
    a("s_waitcnt vmcnt(0)")
    a("s_sub_u32 s15, s15, 1")
    a("s_cmp_lg_u32 s15, 0")
    a(f"s_cbranch_scc1 {l}")
    a.label(d)

def kvstore(j):
    t = pk(j)
    out = [f"s_add_u32 s12, s{kST}, {(j >> 3) * 32 * 8192 + ((j >> 2) & 1) * 8192}"]
    if (j >> 1) & 1: out.append(f"s_add_u32 s12, s12, s{kSA}")
    out.append(f"buffer_store_dwordx4 v[{t}:{t+3}], v10, s[4:7], s12 offen offset:{(j & 1) * 256}{SC}")
    return out
RING = 65536; STG = 24576
QACC, ZACC, XF, WQ, QF = 192, 168, 64, 120, 112
PKE, PKL, QA = 88, 20, 52
def pk(j): return PKE + 4 * j if j < 8 else PKL + 4 * (j - 8)
XD = 3

def front(a):
    vm = VM()
    kernel_header(a, N)
    a("s_cmp_ge_u32 s2, 256")
    a(f"s_cbranch_scc1 {N}_end")
    stamp(a, 0)
    a("s_load_dwordx4 s[8:11], s[0:1], 96")
    a("s_load_dwordx4 s[24:27], s[0:1], 0")
    a("s_load_dwordx4 s[28:31], s[0:1], 24")
    a("s_load_dwordx2 s[64:65], s[0:1], 16")
    a("s_load_dwordx2 s[66:67], s[0:1], 56")
    a("v_and_b32 v1, 63, v0")
    a("v_lshrrev_b32 v2, 6, v0")
    a("v_readfirstlane_b32 s3, v2")
    a("v_lshlrev_b32 v2, 4, v1")
    a("s_and_b32 s12, s2, 7")
    a("s_lshr_b32 s13, s2, 3")
    a("s_and_b32 s62, s13, 7")
    a(f"s_bfe_u32 s{kIsV}, s13, 0x10003")
    a("s_lshr_b32 s13, s13, 4")
    a("s_lshl_b32 s63, s12, 1")
    a("s_add_u32 s63, s63, s13")
    a(f"s_add_u32 s{kCKV}, s63, {C_KV}")
    a("v_lshrrev_b32 v4, 3, v1")
    a("v_lshlrev_b32 v4, 10, v4")
    a("v_and_b32 v5, 7, v1")
    a("v_lshrrev_b32 v6, 4, v1")
    a("v_xor_b32 v5, v5, v6")
    a("v_lshl_add_u32 v10, v5, 4, v4")
    a("v_xor_b32 v11, 64, v10")
    a("v_and_b32 v5, 15, v1")
    a("v_lshrrev_b32 v4, 1, v5")
    a("v_and_b32 v5, 1, v5")
    a("s_and_b32 s12, s3, 1")
    a("s_lshl_b32 s13, s12, 2")
    a("v_or_b32 v7, s13, v6")
    a("v_xor_b32 v4, v4, v7")
    a("v_lshlrev_b32 v4, 5, v4")
    a("v_lshl_add_u32 v4, v5, 4, v4")
    a("v_lshl_add_u32 v12, v6, 13, v4")
    a("v_lshrrev_b32 v4, 5, v1")
    a("v_and_b32 v5, 31, v1")
    a("v_lshrrev_b32 v6, 1, v5")
    a("v_and_b32 v5, 1, v5")
    a("s_and_b32 s13, s3, 2")
    a("s_lshl_b32 s13, s13, 1")
    a("v_or_b32 v7, s13, v4")
    a("v_xor_b32 v6, v6, v7")
    a("v_lshlrev_b32 v6, 5, v6")
    a("v_lshl_add_u32 v6, v5, 4, v6")
    a("v_lshl_add_u32 v30, v4, 13, v6")
    a("v_xor_b32 v31, 64, v30")
    a(f"s_lshl_b32 s{kX}, s62, 7")
    a("s_and_b32 s13, s3, 3")
    a("s_lshl_b32 s13, s13, 5")
    a(f"s_add_u32 s{kX}, s{kX}, s13")
    a("s_lshr_b32 s13, s3, 2")
    a("s_lshl_b32 s13, s13, 10")
    a(f"s_add_u32 s{kX}, s{kX}, s13")
    a(f"s_lshl_b32 s{kX}, s{kX}, 10")
    a(f"s_lshl_b32 s{kW}, s3, 15")
    a("s_lshl_b32 s13, s63, 9")
    a(f"s_add_u32 s{kW}, s{kW}, s13")
    a(f"s_lshl_b32 s{kL4k}, s3, 12")
    a(f"s_lshl_b32 s{qL2k}, s3, 11")
    a(f"s_lshl_b32 s{qL1k}, s3, 10")
    a(f"s_lshl_b32 s{kRow}, s2, 3")
    a(f"s_add_u32 s{kRow}, s{kRow}, s3")
    a("s_waitcnt lgkmcnt(0)")
    if OPT.get("fstamp"): stamp(a, 7, True)
    srd(a, 16, 26, 27, 2048 * 1024)
    a("s_mov_b64 s[52:53], s[26:27]")
    a(f"s_cmp_eq_u32 s{kIsV}, 0")
    a("s_cselect_b32 s28, s28, s30")
    a("s_cselect_b32 s29, s29, s31")
    srd(a, 20, 28, 29, 512 * 8192)
    srd(a, 4, 10, 11, WS_BYTES)
    srd(a, 28, 8, 9, 256)
    srd(a, 24, 24, 25, 2048 * 1024)
    def xdma(c):
        return [[f"s_add_u32 m0, s{kL4k}, {(c % 3) * 32768 + m * 1024}", f"s_add_u32 s12, s{kX}, {m * 8192 + c * 128}",
                 f"buffer_load_dwordx4 v{10 + (m & 1)}, s[16:19], s12 offen lds"] for m in range(4)]
    def wdma(ks):
        return [[f"s_add_u32 m0, s{qL2k}, {98304 + (ks & 3) * 16384 + m * 1024}", f"s_add_u32 s12, s{kW}, {(ks * 32 + 2 * m) * 8192}",
                 f"buffer_load_dwordx4 v{30 + m}, s[20:23], s12 offen lds"] for m in range(2)]
    def emit(groups, tag):
        for g in groups:
            for s in g:
                if isinstance(s, tuple): a.label(s[1]); continue
                a(s)
                if s.startswith("buffer_") and tag != "misc": vm.issue(tag)
    emit(wdma(0), ("w0", 0)); emit(xdma(0), ("x0", 0))
    if OPT.get("fstamp"): stamp(a, 8, True)
    a(f"s_lshl_b32 s12, s{kRow}, 10")
    a("buffer_load_dwordx4 v[32:35], v2, s[24:27], s12 offen"); vm.issue("ln")
    a("s_or_b32 s12, s2, s3")
    a(f"s_cbranch_scc1 {N}_noinit")
    a("v_lshlrev_b32 v8, 8, v1")
    a("v_mov_b32 v9, 0")
    a(f"s_mov_b32 s12, {CNTO}")
    a("buffer_store_dword v9, v8, s[4:7], s12 offen sc1")
    a(f"s_mov_b32 s12, {CNTO + 64 * 256}")
    a("buffer_store_dword v9, v8, s[4:7], s12 offen sc1")
    a(f"s_mov_b32 s12, {CNTO + 128 * 256}")
    a("buffer_store_dword v9, v8, s[4:7], s12 offen sc1")
    a(f"s_mov_b32 s12, {CNTO + 192 * 256}")
    a("buffer_store_dword v9, v8, s[4:7], s12 offen sc1")
    a(f"s_mov_b32 s12, {CNTO + 256 * 256}")
    a("buffer_store_dword v9, v8, s[4:7], s12 offen sc1")
    a.label(f"{N}_noinit")
    a("s_barrier")
    emit(wdma(1), ("w0", 1))
    if not OPT.get("nocode"):
        a("s_cmp_lg_u32 s3, 7")
        a(f"s_cbranch_scc1 {N}_nocode")
        a("s_getpc_b64 s[14:15]")
        a.label(f"{N}_pc")
        a("s_lshr_b32 s12, s2, 3")
        a("s_lshl_b32 s12, s12, 13")
        a("v_lshlrev_b32 v8, 7, v1")
        a("v_add_u32 v8, s12, v8")
        a(f"v_min_u32 v8, {N}_end - {N}_pc, v8")
        a("global_load_dword v28, v8, s[14:15]")
        a.label(f"{N}_nocode")
    a("v_and_b32 v4, 15, v1")
    a("v_lshrrev_b32 v5, 4, v1")
    a("v_lshrrev_b32 v6, 1, v4")
    a("v_xor_b32 v6, v6, v5")
    a("v_lshlrev_b32 v6, 4, v6")
    a("v_lshl_add_u32 v6, v4, 7, v6")
    a("s_and_b32 s12, s3, 1")
    a("s_lshl_b32 s12, s12, 13")
    a("v_add_u32 v14, s12, v6")
    a("v_xor_b32 v15, 64, v14")
    a("v_add_u32 v16, 65536, v14")
    a("v_add_u32 v17, 65536, v15")
    a("v_lshrrev_b32 v6, 2, v4")
    a("v_and_b32 v7, 1, v5")
    a("v_lshl_or_b32 v7, v7, 2, v6")
    a("v_lshl_add_u32 v6, v5, 3, v6")
    a("v_lshlrev_b32 v6, 9, v6")
    a("v_and_b32 v3, 3, v1")
    a("v_lshl_add_u32 v6, v3, 3, v6")
    a("v_add_u32 v6, 98304, v6")
    a("s_lshr_b32 s13, s3, 1")
    a("s_lshl_b32 s12, s13, 2")
    for nt in range(4):
        a(f"s_add_u32 s14, s12, {nt}")
        a("v_xor_b32 v3, s14, v7")
        a(f"v_lshl_add_u32 v{18 + nt}, v3, 5, v6")
    a(f"s_lshl_b32 s{kST}, s63, 1")
    a("s_lshr_b32 s12, s13, 1")
    a(f"s_add_u32 s{kST}, s{kST}, s12")
    a(f"s_lshl_b32 s{kST}, s{kST}, 6")
    a("s_lshl_b32 s12, s62, 2")
    a(f"s_add_u32 s{kST}, s{kST}, s12")
    a("s_and_b32 s12, s3, 1")
    a("s_lshl_b32 s12, s12, 1")
    a(f"s_add_u32 s{kST}, s{kST}, s12")
    a(f"s_lshl_b32 s{kST}, s{kST}, 13")
    a("s_and_b32 s13, s13, 1")
    a(f"s_cmp_eq_u32 s{kIsV}, 0")
    a(f"s_movk_i32 s{kSA}, 1024")
    a(f"s_cselect_b32 s{kSA}, 2048, s{kSA}")
    a(f"s_mov_b32 s12, {VF}")
    a(f"s_cselect_b32 s12, {KF}, s12")
    a("s_cselect_b64 vcc, -1, 0")
    a(f"s_add_u32 s{kST}, s{kST}, s12")
    a(f"s_mul_i32 s12, s13, s{kSA}")
    a("s_lshl_b32 s12, s12, 1")
    a(f"s_add_u32 s{kST}, s{kST}, s12")
    a("v_and_b32 v6, 1, v5")
    a("v_lshrrev_b32 v7, 1, v5")
    a("v_lshl_add_u32 v3, v7, 5, v4")
    a("v_lshlrev_b32 v3, 4, v3")
    a("v_lshl_add_u32 v3, v6, 10, v3")
    a("v_lshl_add_u32 v27, v6, 5, v4")
    a("v_lshlrev_b32 v27, 4, v27")
    a("v_lshl_add_u32 v27, v7, 12, v27")
    a("v_cndmask_b32 v27, v27, v3, vcc")
    emit(wdma(2), ("w0", 2)); emit(xdma(1), ("x0", 1))
    a("s_and_b32 s12, s2, 7")
    a("s_lshr_b32 s13, s2, 3")
    a("s_and_b32 s14, s13, 3")
    a("s_lshl_b32 s12, s12, 2")
    a(f"s_add_u32 s{sH}, s12, s14")
    a(f"s_lshr_b32 s{sI}, s13, 2")
    a(f"s_sub_u32 s12, 15, s{sI}")
    a("s_cmp_ge_u32 s3, 4")
    a(f"s_cselect_b32 s{sTILE}, s{sI}, s12")
    a("s_and_b32 s13, s3, 3")
    a(f"s_lshl_b32 s12, s{sTILE}, 2")
    a(f"s_add_u32 s{sU}, s12, s13")
    a(f"s_lshl_b32 s{sR0}, s{sU}, 1")
    a(f"s_lshl_b32 s12, s{sI}, 1")
    a(f"s_sub_u32 s{sNT}, 32, s12")
    a(f"s_mul_i32 s{sN0}, s{sH}, 3")
    a(f"s_sub_u32 s12, s{sN0}, 2")
    a(f"s_cmp_ge_u32 s{sH}, 15")
    a(f"s_cselect_b32 s{sZT}, 1, 0")
    a(f"s_cselect_b32 s{sN0}, s12, s{sN0}")
    a(f"s_min_u32 s{sN0}, s{sN0}, 86")
    a(f"s_lshl_b32 s{qWq}, s3, 16")
    a(f"s_lshl_b32 s12, s{sH}, 8")
    a(f"s_add_u32 s{qWq}, s{qWq}, s12")
    a(f"s_mul_i32 s{qWin}, s3, {8 * 2752}")
    a(f"s_lshl_b32 s12, s{sN0}, 5")
    a(f"s_add_u32 s{qWin}, s{qWin}, s12")
    a(f"s_lshl_b32 s{qXN}, s{sR0}, 14")
    a(f"s_lshl_b32 s12, s{sH}, 19")
    a(f"s_add_u32 s{sKSRC}, s12, {KF}")
    a(f"s_add_u32 s{sVSRC}, s12, {VF - 8192}")
    a("v_lshrrev_b32 v4, 3, v1")
    a("v_and_b32 v5, 7, v1")
    a("v_lshrrev_b32 v6, 1, v5")
    a("v_and_b32 v5, 1, v5")
    a("v_bfe_u32 v7, v1, 4, 1")
    a("s_and_b32 s12, s3, 1")
    a("s_lshl_b32 s12, s12, 1")
    a("v_or_b32 v7, s12, v7")
    a("v_xor_b32 v6, v6, v7")
    a("v_lshlrev_b32 v6, 5, v6")
    a("v_lshl_add_u32 v6, v5, 4, v6")
    a("v_mul_u32_u24 v4, 2752, v4")
    a("v_add_u32 v13, v4, v6")
    if OPT.get("fstamp"): stamp(a, 9, True)
    a(f"s_waitcnt vmcnt({vm.after('ln')}) lgkmcnt(0)")
    if OPT.get("fstamp"): stamp(a, 10, True)
    for i in range(4):
        a(f"v_lshlrev_b32 v{40 + 2*i}, 16, v{32 + i}")
        a(f"v_and_b32 v{41 + 2*i}, 0xffff0000, v{32 + i}")
    a("v_add_f32 v36, v40, v41")
    for i in range(2, 8): a(f"v_add_f32 v36, v36, v{40 + i}")
    wave_allreduce(a, 36, 37)
    a(f"v_mul_f32 v36, {f32(1.0/512)}, v36")
    for i in range(8): a(f"v_sub_f32 v{40 + i}, v{40 + i}, v36")
    a("v_mul_f32 v38, v40, v40")
    for i in range(1, 8): a(f"v_fmac_f32 v38, v{40 + i}, v{40 + i}")
    wave_allreduce(a, 38, 37)
    a(f"v_mov_b32 v37, {f32(1e-5)}")
    a(f"v_fmac_f32 v37, {f32(1.0/512)}, v38")
    a("v_rsq_f32 v37, v37")
    for i in range(8): a(f"v_mul_f32 v{40 + i}, v{40 + i}, v37")
    for i in range(4): a(f"v_cvt_pk_bf16_f32 v{96 + i}, v{40 + 2*i}, v{41 + 2*i}")
    a("v_lshrrev_b32 v4, 2, v1")
    a("v_lshlrev_b32 v4, 10, v4")
    a("v_and_b32 v5, 3, v1")
    a("v_lshl_add_u32 v4, v5, 8, v4")
    a(f"s_lshr_b32 s12, s{kRow}, 4")
    a("s_lshl_b32 s12, s12, 14")
    a(f"s_and_b32 s13, s{kRow}, 15")
    a("s_lshl_b32 s13, s13, 4")
    a("s_add_u32 s12, s12, s13")
    a(f"buffer_store_dwordx4 v[96:99], v4, s[4:7], s12 offen{SC}"); vm.issue("lnst")
    a("s_lshr_b32 s12, s2, 3")
    a("s_and_b32 s13, s2, 7")
    a("s_cmp_eq_u32 s3, 2")
    a("s_cselect_b64 s[8:9], s[66:67], s[64:65]")
    a(f"s_mov_b32 s10, {512 * 8192}")
    a(f"s_cselect_b32 s10, {512 * 2752}, s10")
    a("s_cmp_eq_u32 s3, 3")
    a("s_cselect_b64 s[8:9], s[52:53], s[8:9]")
    a(f"s_cselect_b32 s10, {2048 * 1024}, s10")
    a("s_and_b32 s9, s9, 0xffff")
    a("s_mov_b32 s11, 0x00020000")
    a("s_lshl_b32 s14, s3, 5")
    a("s_add_u32 s14, s14, s12")
    a("s_lshl_b32 s14, s14, 16")
    a("s_lshl_b32 s15, s13, 10")
    a("s_add_u32 s14, s14, s15")
    a("s_lshl_b32 s15, s13, 5")
    a("s_add_u32 s15, s15, s12")
    a("s_lshl_b32 s15, s15, 13")
    a("s_cmp_ge_u32 s3, 2")
    a("s_cselect_b32 s51, s15, s14")
    a("s_cselect_b64 vcc, -1, 0")
    a("s_lshr_b32 s15, s15, 1")
    a(f"s_or_b32 s15, s15, {1024 * 1024}")
    a("s_cmp_eq_u32 s3, 3")
    a("s_cselect_b32 s51, s15, s51")
    a("v_lshlrev_b32 v8, 7, v1")
    a("v_lshrrev_b32 v4, 3, v1")
    a("v_lshlrev_b32 v4, 13, v4")
    a("v_and_b32 v5, 7, v1")
    a("v_lshl_add_u32 v29, v5, 7, v4")
    a("v_cndmask_b32 v29, v29, v8, vcc")
    def qdma(st):
        base = RING + (st & 3) * STG
        out = []
        for m in range(2):
            out.append([f"s_add_u32 m0, s{qL2k}, {base + m * 1024}",
                        f"s_add_u32 s12, s{qWq}, {(st * 64 + 4 * m) * 8192}",
                        f"buffer_load_dwordx4 v12, s[16:19], s12 offen lds"])
        out.append([f"s_add_u32 m0, s{qL1k}, {base + 16384}",
                    f"s_add_u32 s12, s{qWin}, {st * 64 * 2752}",
                    f"buffer_load_dwordx4 v13, s[20:23], s12 offen lds"])
        return out
    def xload(ks):
        out = []
        for T in range(2):
            r = XF + 8 * (ks % XD) + 4 * T
            out.append([f"s_add_u32 s12, s{qXN}, {T * 16384 + (ks >> 2) * 4096}",
                        f"buffer_load_dwordx4 v[{r}:{r+3}], v2, s[4:7], s12 offen offset:{(ks & 3) * 1024}{SC}"])
        return out
    def pack(j, t, acc, isV):
        kt, x, y = j >> 2, (j >> 1) & 1, j & 1
        tiles = [(2 * kt + e, 2 * x + y) for e in range(2)] if isV else [(2 * kt + y, 2 * x + e) for e in range(2)]
        out = []
        for i, (rt, nt) in enumerate(tiles):
            r = acc + 16 * rt + 4 * nt
            out.append(f"v_cvt_pk_bf16_f32 v{t + 2*i}, v{r}, v{r+1}")
            out.append(f"v_cvt_pk_bf16_f32 v{t + 2*i + 1}, v{r+2}, v{r+3}")
        return out
    F2 = (32, 80)
    def kreads(ks, F):
        sl = (ks >> 1) % 3; hi = sl == 2; off = 0 if hi else sl * 32768
        xs = [f"ds_read_b128 v[{F + 4*rt}:{F + 4*rt + 3}], v{14 + 2*hi + (ks & 1)} offset:{off + (rt >> 2) * 16384 + (rt & 3) * 2048}" for rt in range(8)]
        ws = []
        for nt in range(4):
            b = F + 32 + 4 * nt
            ws.append(f"ds_read_b64_tr_b16 v[{b}:{b+1}], v{18 + nt} offset:{(ks & 3) * 16384}")
            ws.append(f"ds_read_b64_tr_b16 v[{b+2}:{b+3}], v{18 + nt} offset:{(ks & 3) * 16384 + 2048}")
        return [xs[0]] + ws + xs[1:]
    def kmfma(F, isV, first, fill):
        j = 0
        for rt in range(8):
            for nt in range(4):
                acc = 128 + 16 * rt + 4 * nt
                x = f"v[{F + 4*rt}:{F + 4*rt + 3}]"; w = f"v[{F + 32 + 4*nt}:{F + 32 + 4*nt + 3}]"
                A, B = (x, w) if isV else (w, x)
                a(f"v_mfma_f32_16x16x32_bf16 v[{acc}:{acc+3}], {A}, {B}, {'0' if first else f'v[{acc}:{acc+3}]'}")
                for grp, tag in fill.get(j, []): emit([grp], tag)
                j += 1
    if OPT.get("fstamp"): stamp(a, 11, True)
    a("s_barrier")
    stamp(a, 1)
    for s in kreads(0, F2[0]): a(s)
    a(f"s_cmp_eq_u32 s{kIsV}, 0")
    a(f"s_cbranch_scc0 {N}_kv_v")
    snap = list(vm.q)
    for isV in (0, 1):
        vm.q = list(snap)
        if isV: a.label(f"{N}_kv_v")
        for ks in range(16):
            fill = {}
            def put(j, grp, tag=None): fill.setdefault(j, []).append((grp, tag))
            if ks < 15:
                a(f"s_waitcnt vmcnt({vm.after(('w0', ks + 1), ('x0', (ks + 1) >> 1))}) lgkmcnt(0)")
                a("s_barrier")
                for j, s in enumerate(kreads(ks + 1, F2[(ks + 1) & 1])): put(j, [s])
            else:
                a("s_waitcnt lgkmcnt(0)")
            pos = 16
            def late(groups, tag):
                nonlocal pos
                for g in groups: put(min(pos, 31), g, tag); pos += 2
            if ks == 0:
                pos = 8; late(wdma(3), ("w0", 3)); late(xdma(2), ("x0", 2))
            if ks + 4 < 16: late(wdma(ks + 4), ("w0", ks + 4))
            c = (ks + 5) >> 1
            if ks >= 1 and c < 8: late(xdma(c)[0:2] if ks & 1 else xdma(c)[2:4], ("x0", c))
            if ks == 2:
                l = a.newlabel("flag")
                late([["s_or_b32 s12, s2, s3", f"s_cbranch_scc1 {l}", "v_mov_b32 v8, 0", "v_mov_b32 v9, 1",
                       "buffer_store_dword v9, v8, s[28:31], 0 offen sc1", ("label", l)]], "misc")
            if ks == 3 and not OPT.get("nowarm"):
                l = a.newlabel("warm")
                late([["s_cmp_ge_u32 s3, 3", f"s_cbranch_scc1 {l}", "buffer_load_dword v28, v29, s[8:11], s51 offen", ("label", l)]], "misc")
            if ks == 4: late([["v_mov_b32 v8, 0", "buffer_load_dword v26, v8, s[28:31], 0 offen sc1"]], "flag")
            if ks == 8:
                lw = a.newlabel("initw"); ld = a.newlabel("initd")
                a("s_cmp_lg_u32 s3, 0")
                a(f"s_cbranch_scc1 {ld}")
                a("s_mov_b32 s15, 0x20000")
                a.label(lw)
                a("v_cmp_eq_u32 vcc, 0, v26")
                a(f"s_cbranch_vccz {ld}")
                a("s_sleep 8")
                a("v_mov_b32 v8, 0")
                a("buffer_load_dword v26, v8, s[28:31], 0 offen sc1")
                a("s_waitcnt vmcnt(0)")
                a("s_sub_u32 s15, s15, 1")
                a("s_cmp_lg_u32 s15, 0")
                a(f"s_cbranch_scc1 {lw}")
                a.label(ld)
                a("s_lshr_b32 s13, s2, 4")
                signal(a, 13, 0)
            if ks == 12:
                srd(a, 16, 64, 65, 512 * 8192)
                srd(a, 20, 66, 67, 512 * 2752)
                a(f"s_add_u32 s13, s{sTILE}, {C_XN}")
                poll_issue(a, 13, 26); vm.issue("pxn")
                late(qdma(0), ("w", 0)); late(qdma(1), ("w", 1))
            if ks == 14: late(qdma(2), ("w", 2))
            if ks == 15:
                a(f"s_waitcnt vmcnt({vm.after('pxn')})")
                a(f"s_add_u32 s13, s{sTILE}, {C_XN}")
                poll_check(a, 13, 26, 16)
                pos = 0
                for k in range(2): late(xload(k), ("x", k))
            kmfma(F2[ks & 1], isV, ks == 0, fill)
        stamp(a, 2)
        emit(xload(2), ("x", 2))
        a("v_mov_b32 v10, v27")
        for j in range(16):
            for s in pack(j, pk(j), 128, isV): a(s)
        if not isV: a(f"s_branch {N}_kv_done")
    a.label(f"{N}_kv_done")
    a("v_and_b32 v4, 15, v1")
    a("v_lshrrev_b32 v5, 4, v1")
    a("v_lshrrev_b32 v6, 2, v4")
    a("v_and_b32 v7, 1, v5")
    a("v_lshl_or_b32 v8, v7, 2, v6")
    a("v_lshl_add_u32 v9, v5, 3, v6")
    a("v_and_b32 v4, 3, v1")
    a("v_lshlrev_b32 v4, 3, v4")
    a("v_lshl_add_u32 v3, v9, 8, v4")
    a(f"v_add_u32 v3, {RING}, v3")
    for dt in range(8):
        a(f"v_xor_b32 v63, {dt}, v8")
        a(f"v_lshl_add_u32 v{QA + dt}, v63, 5, v3")
    a("v_lshrrev_b32 v6, 1, v6")
    a("v_lshl_or_b32 v8, v7, 1, v6")
    a("v_lshl_add_u32 v3, v9, 7, v4")
    a(f"v_add_u32 v3, {RING + 16384}, v3")
    for ft in range(3):
        a(f"v_xor_b32 v63, {ft}, v8")
        a(f"v_lshl_add_u32 v{QA + 8 + ft}, v63, 5, v3")
    def qread(ks, j):
        e = ks & 1; b = WQ + 4 * j
        o, d = (e * 8192, 1024) if j < 8 else (e * 4096, 512)
        return [f"ds_read_b64_tr_b16 v[{b}:{b+1}], v{QA + j} offset:{o}",
                f"ds_read_b64_tr_b16 v[{b+2}:{b+3}], v{QA + j} offset:{o + d}"]
    def kvpre(k):
        src, tile, lds = ((sKSRC, 0, 0), (sKSRC, 1, 16384), (sVSRC, 0, 65536), (sKSRC, 2, 32768), (sVSRC, 1, 81920))[k]
        return [f"s_add_u32 m0, s{qL2k}, {lds}",
                f"s_add_u32 s12, s{src}, s{qL2k}",
                f"s_add_u32 s12, s12, {tile * 16384}"] + (["s_cmp_lt_u32 s3, 4", f"s_cselect_b32 s12, {OOB}, s12"] if k == 2 else []) + [
                f"buffer_load_dwordx4 v2, s[4:7], s12 offen{SC} lds",
                f"buffer_load_dwordx4 v2, s[4:7], s12 offen offset:1024{SC} lds"]
    a(f"s_waitcnt vmcnt({vm.after(('w', 0))})")
    a("s_barrier")
    stamp(a, 3)
    for j in range(11):
        for s in qread(0, j): a(s)
    st_at = {j: [2 * j, 2 * j + 1] for j in range(4)}
    for ks in range(16):
        st = ks >> 1
        need = [("x", ks)]
        if ks & 1 and ks < 15: need.append(("w", st + 1))
        if ks == 13: need.append("pkv")
        a(f"s_waitcnt vmcnt({vm.after(*need)})")
        if ks & 1 and ks < 15:
            a("s_barrier")
            d = STG if ((st + 1) & 3) else -3 * STG
            for r in range(QA, QA + 11):
                a(f"v_add_u32 v{r}, {d}, v{r}" if d > 0 else f"v_subrev_u32 v{r}, {-d}, v{r}")
        if ks == 7: signal(a, kCKV, 0)
        if ks == 13:
            a(f"s_lshr_b32 s13, s{sH}, 1")
            a(f"s_add_u32 s13, s13, {C_KV}")
            poll_check(a, 13, 11, 16)
        extra = []
        for j in st_at.get(ks, []): extra.append((kvstore(j), "st"))
        if ks & 1 and st + 3 < 8: extra += [(g, ("w", st + 3)) for g in qdma(st + 3)]
        if ks == 13: extra += [(kvpre(k), "kv") for k in range(5)]
        X = [f"v[{XF + 8 * (ks % XD) + 4 * T}:{XF + 8 * (ks % XD) + 4 * T + 3}]" for T in range(2)]
        pend = []
        def mm(ins):
            a(ins)
            if pend: a(pend.pop(0))
        for dt in range(8):
            if dt % 2 == 0: a(f"s_waitcnt lgkmcnt({min(15, 18 - (2 * dt if ks == 15 else (2 if dt else 0)))})")
            for T in range(2):
                acc = QACC + 8 * dt + 4 * T
                mm(f"v_mfma_f32_16x16x32_bf16 v[{acc}:{acc+3}], v[{WQ + 4*dt}:{WQ + 4*dt + 3}], {X[T]}, {'0' if ks == 0 else f'v[{acc}:{acc+3}]'}")
            if ks < 15: pend += qread(ks + 1, dt)
            if extra and dt >= 1:
                g, tag = extra.pop(0); emit([g], tag)
        l2 = a.newlabel("z2"); l3 = a.newlabel("zd")
        a(f"s_cmp_eq_u32 s{sZT}, 0")
        a(f"s_waitcnt lgkmcnt({14 if ks < 15 else 0})")
        a(f"s_cbranch_scc0 {l2}")
        keep = list(pend)
        for zt in range(2):
            if zt: a.label(l2)
            pend[:] = keep
            for ft in range(3):
                for T in range(2):
                    acc = ZACC + 8 * ft + 4 * T
                    w = f"v[{WQ + 32 + 4*ft}:{WQ + 32 + 4*ft + 3}]"
                    A, B = (X[T], w) if zt else (w, X[T])
                    mm(f"v_mfma_f32_16x16x32_bf16 v[{acc}:{acc+3}], {A}, {B}, {'0' if ks == 0 else f'v[{acc}:{acc+3}]'}")
                if ks < 15: pend += qread(ks + 1, 8 + ft)
            for x in pend: a(x)
            if not zt: a(f"s_branch {l3}")
        a.label(l3)
        if ks + XD < 16: emit(xload(ks + XD), ("x", ks + XD))
        if ks == 11:
            a(f"s_lshr_b32 s13, s{sH}, 1")
            a(f"s_add_u32 s13, s13, {C_KV}")
            poll_issue(a, 13, 11); vm.issue("pkv")
    stamp(a, 4)
    a(f"s_waitcnt vmcnt({vm.after('kv')})")
    a("s_barrier")
    a.settle(8)
    c0 = -2.0 * math.sqrt(2.0 / math.pi) * math.log2(math.e); c1 = c0 * 0.044715
    for k, c in enumerate((c0, c1, 1.0)):
        a(f"v_mov_b32 v{4 + 2*k}, {f32(c)}")
        a(f"v_mov_b32 v{5 + 2*k}, {f32(c)}")
    pr = lambda r: f"v[{r}:{r+1}]"
    for grp in range(3):
        Z = ZACC + 8 * grp; T0 = 64
        for k in range(0, 8, 2): a(f"v_pk_mul_f32 {pr(T0 + k)}, {pr(Z + k)}, {pr(Z + k)}")
        for k in range(0, 8, 2): a(f"v_pk_fma_f32 {pr(T0 + k)}, {pr(T0 + k)}, v[6:7], v[4:5]")
        for k in range(0, 8, 2): a(f"v_pk_mul_f32 {pr(T0 + k)}, {pr(T0 + k)}, {pr(Z + k)}")
        for k in range(8): a(f"v_exp_f32 v{T0 + k}, v{T0 + k}")
        for k in range(0, 8, 2): a(f"v_pk_add_f32 {pr(T0 + k)}, {pr(T0 + k)}, v[8:9]")
        for k in range(8): a(f"v_rcp_f32 v{T0 + k}, v{T0 + k}")
        for k in range(0, 8, 2): a(f"v_pk_mul_f32 {pr(Z + k)}, {pr(T0 + k)}, {pr(Z + k)}")
        for T in range(2):
            r = Z + 4 * T
            a(f"v_cvt_pk_bf16_f32 v{72 + 4*grp + 2*T}, v{r}, v{r+1}")
            a(f"v_cvt_pk_bf16_f32 v{73 + 4*grp + 2*T}, v{r+2}, v{r+3}")
    a("v_and_b32 v4, 15, v1")
    a("v_lshrrev_b32 v5, 5, v1")
    a("v_lshl_add_u32 v4, v5, 4, v4")
    a("v_lshlrev_b32 v4, 4, v4")
    a("v_bfe_u32 v5, v1, 4, 1")
    a("v_lshl_add_u32 v4, v5, 3, v4")
    a("s_movk_i32 s11, 512")
    a(f"s_cmp_eq_u32 s{sZT}, 0")
    a("s_cselect_b64 vcc, -1, 0")
    a("v_cndmask_b32 v4, v4, v2, vcc")
    a("s_cselect_b32 s10, 43, 86")
    a(f"s_cselect_b32 s11, {22 * 1024}, s11")
    for ft in range(3):
        a(f"s_add_u32 s12, s{sN0}, {ft}")
        a(f"s_mul_i32 s13, s{sR0}, 22")
        a("s_lshr_b32 s14, s12, 1")
        a("s_add_u32 s13, s13, s14")
        a("s_lshl_b32 s13, s13, 10")
        a("s_and_b32 s14, s12, 1")
        a("s_lshl_b32 s14, s14, 3")
        a("s_add_u32 s13, s13, s14")
        a(f"s_add_u32 s13, s13, {Z1F}")
        a("s_sub_u32 s14, s12, 43")
        a("s_lshl_b32 s14, s14, 6")
        a(f"s_lshr_b32 s15, s{sR0}, 1")
        a("s_add_u32 s14, s14, s15")
        a("s_lshl_b32 s14, s14, 10")
        a(f"s_add_u32 s14, s14, {Z2F}")
        a(f"s_cmp_eq_u32 s{sZT}, 0")
        a("s_cselect_b32 s13, s13, s14")
        a("s_cmp_lt_u32 s12, s10")
        a(f"s_cselect_b32 s13, s13, {OOB}")
        for T in range(2):
            a(f"buffer_store_dwordx2 v[{72 + 4*ft + 2*T}:{73 + 4*ft + 2*T}], v4, s[4:7], s13 offen{SC}"); vm.issue("z")
            if T == 0: a("s_add_u32 s13, s13, s11")
    a(f"v_mov_b32 v6, {f32(128 ** -0.5 * math.log2(math.e))}")
    a("v_mov_b32 v7, v6")
    for dt in range(8):
        D, e = dt >> 1, dt & 1
        for T in range(2):
            r = QACC + 8 * dt + 4 * T
            for k in (0, 2): a(f"v_pk_mul_f32 {pr(r + k)}, {pr(r + k)}, v[6:7]")
            q = QF + (2 * D + T) * 4 + 2 * e
            a(f"v_cvt_pk_bf16_f32 v{q}, v{r}, v{r+1}")
            a(f"v_cvt_pk_bf16_f32 v{q+1}, v{r+2}, v{r+3}")
    for D in range(4):
        for k in range(4):
            a(f"v_permlane16_swap_b32 v{QF + 8*D + k}, v{QF + 8*D + 4 + k}")
    stamp(a, 5)

def finish(a, nst):
    if STAMP:
        a("s_waitcnt vmcnt(0)")
        stamp(a, nst)
        a("s_waitcnt lgkmcnt(0)")
        a("s_lshl_b32 s100, s2, 3")
        a("s_add_u32 s100, s100, s3")
        a("s_lshl_b32 s100, s100, 6")
        a(f"s_add_u32 s100, s100, {TSO}")
        a("v_mov_b32 v3, 0")
        for i in range(nst + 1):
            a(f"v_mov_b32 v2, s{68 + 2*i}")
            a(f"buffer_store_dword v2, v3, s[4:7], s100 offen offset:{4*i}")
    a.label(f"{N}_end")
    a("s_endpgm")

def build():
    import mg_attn, mg_tail
    a = Asm()
    front(a); mg_attn.attention(a); mg_tail.tail(a); finish(a, 15)
    hdr = open("cdna_kernels/" + NAME + ".s.ref").read().split("\n")
    top = [l for l in hdr if l.startswith(";") and "@launch" not in l]
    out = "\n".join(top) + "\n; @launch grid=(256,1,1) block=(512,1,1) lds=163840\n"
    out += '.amdgcn_target "amdgcn-amd-amdhsa--gfx950"\n.text\n' + a.text()
    out += '.section .rodata,"a"\n.p2align 6\n' + kernel_desc(N, 256)
    return out

def main():
    import mg as M
    if "--stamp" in sys.argv:
        M.STAMP = True; sys.argv.remove("--stamp")
    for x in list(sys.argv):
        if x.startswith("-D"):
            k, _, v = x[2:].partition("="); M.OPT[k] = int(v or 1); sys.argv.remove(x)
    txt = M.build()
    if not M.OPT.get("noalign"):
        import align
        txt, npro, nnop = align.align(txt, use_nop=bool(M.OPT.get('nop')))
        print("align: promoted", npro, "nops", nnop)
    open(sys.argv[1] if len(sys.argv) > 1 else "k.s", "w").write(txt)
```

```python
from asmlib import *
import mg as G
from mg import sH, sI, sTILE, sR0, sZT, sN0, sNT, sU, sUC, sNI, sKSRC, sVSRC, sTHR, QF
aW, aWV, aLim, aUnit, aK, aV, aHook, aKL, aVL = 46, 47, 48, 49, 52, 53, 54, 56, 57
LOOK = G.OPT.get('look', 0)
O, S, NEGM, FR, P, E, T_, LS = 192, (160, 176), 144, 80, (64, 72), 56, (54, 55), 53
vK, vV, vD, vPL, vT = 14, 15, 16, 17, 18
ORDER = [0, 1, 2, 3, 8, 9, 10, 11, 4, 5, 6, 7, 12, 13, 14, 15]
HOOKS = (0, 1, 2, 3, 4, 5, 10, 12)
AHOOKS = (0, 1, 2, 3, 5, 10, 12)
BHOOKS = tuple(range(12))

def attention(a):
    name = G.N; SC = G.SC
    def fr(m): return f"v[{FR + 4 * (m & 7)}:{FR + 4 * (m & 7) + 3}]"
    def rdK(m, half): return f"ds_read_b128 {fr(m)}, v{vK} offset:{half * 8192 + (m & 7) * 1024}"
    def rdV(m, half): return f"ds_read_b128 {fr(m)}, v{vV} offset:{half * 8192 + (m & 7) * 1024}"
    def qk(m, p, c=None):
        d = f"v[{S[p]}:{S[p]+15}]"
        if c is None: c = f"v[{NEGM}:{NEGM+15}]" if m == 0 else d
        return f"v_mfma_f32_32x32x16_bf16 {d}, {fr(m)}, v[{QF + 4*m}:{QF + 4*m + 3}], {c}"
    def pv(m, p):
        s, dt = (m & 7) >> 2, m & 3
        o = f"v[{O + 16*dt}:{O + 16*dt + 15}]"
        return f"v_mfma_f32_32x32x16_bf16 {o}, {fr(m)}, v[{P[p] + 4*s}:{P[p] + 4*s + 3}], {o}"
    def ex(p, e): return f"v_exp_f32 v{E + (e & 3)}, v{S[p] + ORDER[e]}"
    def ad(p, e):
        if e == 0: return None
        if e == 1: return f"v_add_f32 v{T_[p]}, v{E}, v{E + 1}"
        return f"v_add_f32 v{T_[p]}, v{T_[p]}, v{E + (e & 3)}"
    def cv(p, e):
        return f"v_cvt_pk_bf16_f32 v{P[p] + e // 2}, v{E + ((e - 1) & 3)}, v{E + (e & 3)}" if e & 1 else None
    def slot(p, e):
        out = []
        if e >= 1: out.append(ad(p, e - 1))
        if e < 16: out.append(ex(p, e))
        if e >= 1: out.append(cv(p, e - 1))
        return [x for x in out if x]
    cmp_ = lambda p: f"v_cmp_nge_f32 vcc, s{sTHR}, v{T_[p]}"
    lsadd = lambda p: f"v_add_f32 v{LS}, v{LS}, v{T_[p]}"
    sites = []; hooks = []; astamps = []; AST = (1, 3, 7, 11, 15, 17)
    def check(p):
        l = a.newlabel("rs"); back = a.newlabel("rb")
        a(f"s_cbranch_vccnz {l}")
        a.label(back)
        sites.append((l, back, p))
    addr_salu = [f"s_add_u32 s{aV}, s{sNI}, 1", f"s_and_b32 s{aV}, s{aV}, 3", f"s_lshl_b32 s{aV}, s{aV}, 14",
                 f"s_add_u32 s{aK}, s{aV}, 0x4000", f"s_and_b32 s{aK}, s{aK}, 0xc000", f"s_add_u32 s{aV}, s{aV}, 0x10000"]
    setV = f"v_add_u32 v{vV}, s{aV}, v2"; setK = f"v_add_u32 v{vK}, s{aK}, v2"
    def dma_groups():
        g = []
        for src, d, base, lim in ((sKSRC, 3, aW, aKL), (sVSRC, 2, aWV, aVL)):
            pre = [f"s_add_u32 s10, s{sNI}, {d}", "s_lshl_b32 s11, s10, 14", "s_and_b32 s10, s11, 0xc000",
                   f"s_add_u32 m0, s10, s{base}", f"s_add_u32 s11, s11, s{src}", f"s_min_u32 s11, s11, s{lim}"]
            for j in range(4):
                g.append((pre if j == 0 else []) + ([] if G.OPT.get("nodma") else [f"buffer_load_dwordx4 v2, s[4:7], s11 offen offset:{j * 1024}{SC} lds"]))
        return g
    def hook():
        l = a.newlabel("hk"); back = a.newlabel("hb")
        a(f"s_bitcmp1_b32 s{aHook}, s{sNI}")
        a(f"s_cbranch_scc1 {l}")
        a.label(back)
        hooks.append((l, back))
    def bar(isA):
        if isA: a("s_waitcnt vmcnt(8)")
        a("s_barrier")
        a(f"s_add_u32 s{sNI}, s{sNI}, 1")
        if G.OPT.get("astamp") and G.STAMP and not isA:
            l = a.newlabel("as"); back = a.newlabel("ab")
            a(f"s_bitcmp1_b32 s55, s{sNI}")
            a(f"s_cbranch_scc1 {l}")
            a.label(back)
            astamps.append((l, back))
    def begin_interval(isA):
        for s in addr_salu: a(s)
        bar(isA)
        a(setV); a(setK)
        if isA:
            hook()
            for g in dma_groups():
                for s in g: a(s)
    def mask(p):
        prs = ("s[8:9]", "s[10:11]", "s[12:13]", "s[14:15]")
        for r in range(16):
            a(f"v_cmp_le_i32 {prs[r & 3]}, {8 * (r >> 2) + (r & 3)}, v{vD}")
            if r & 3 == 3:
                for k in range(4): a(f"v_cndmask_b32 v{S[p] + r - 3 + k}, v3, v{S[p] + r - 3 + k}, {prs[k]}")
    def rowmax(p, dst, tmp):
        a(f"v_max3_f32 v{dst}, v{S[p]}, v{S[p]+1}, v{S[p]+2}")
        for k in range(3, 15, 2): a(f"v_max3_f32 v{dst}, v{dst}, v{S[p]+k}, v{S[p]+k+1}")
        a(f"v_max_f32 v{dst}, v{dst}, v{S[p]+15}")
        a(f"v_mov_b32 v{tmp}, v{dst}")
        a(f"v_permlane32_swap_b32 v{dst}, v{tmp}")
        a(f"v_max_f32 v{dst}, v{dst}, v{tmp}")
    def early(p, n=6):
        for e in range(n):
            for s in slot(p, e): a(s)
    def step(p, isA, do_early=True, do_pv=True, first=0, skip_mfma0=False, fused=True, ls=True, mid=None, tailcmp=None, hk=True):
        dg = dma_groups() if (isA and fused and p == 0) else []
        for m in range(first, 16):
            mf = None if (m >= 8 and not do_pv) else (qk(m, p ^ 1) if m < 8 else pv(m, p ^ 1))
            if mf and not (m == first and skip_mfma0):
                if m % 2 == 0: a("s_waitcnt lgkmcnt(6)")
                a(mf)
            if m == 15: check(p)
            if mid and m == mid[0]:
                for s in mid[1]: a(s)
            if m == 0 and p == 0 and fused: bar(isA)
            if mf:
                if do_pv: rd = rdV(m, p) if m < 8 else (rdK(m, p) if do_early else None)
                else: rd = rdK(m, p) if do_early else None
                if rd: a(rd)
                elif do_pv and m % 2 == 1 and m < 15: a(f"s_waitcnt lgkmcnt({max(0, 13 - m)})")
                elif not do_pv and m % 2 == 1 and m < 7: a(f"s_waitcnt lgkmcnt({max(0, 5 - m)})")
            if fused and p == 0 and m == 0 and hk: hook()
            if dg and m % 2 == 1:
                for s in dg[m // 2]: a(s)
            if fused and p == 1 and m in (3, 5, 7):
                for s in addr_salu[m - 3:m - 1]: a(s)
            if mid and m == mid[0] - 1: a(mid[2])
            if tailcmp and m == 15: a(tailcmp)
            if m <= 10:
                for s in slot(p, m + 6): a(s)
            if m == 11: a(cmp_(p))
            if m >= 10 and do_early:
                for s in slot(p ^ 1, m - 10): a(s)
            if m == 1 and ls: a(lsadd(p ^ 1))
            if fused and p == 0 and m == 3: a(setK)
            if fused and p == 1 and m == 9: a(setV)
    def last_step(p, do_pv=True, ls=True):
        if do_pv:
            for m in range(8): a(rdV(m, p))
        if ls: a(lsadd(p ^ 1))
        mask(p)
        for e in range(17):
            if do_pv and 8 <= e < 16:
                a(f"s_waitcnt lgkmcnt({15 - e})")
                a(pv(e, p ^ 1))
            for s in slot(p, e): a(s)
        a(cmp_(p))
        check(p)
        a(lsadd(p))
    def final_pv(p):
        for m in range(8): a(rdV(m, p ^ 1))
        for m in range(8):
            a(f"s_waitcnt lgkmcnt({7 - m})")
            a(pv(m, p))
    def epilogue():
        a(f"v_mov_b32 v4, v{LS}")
        a(f"v_permlane32_swap_b32 v{LS}, v4")
        a(f"v_add_f32 v{LS}, v{LS}, v4")
        a(f"v_rcp_f32 v{LS}, v{LS}")
        a(f"v_mov_b32 v{LS - 1}, v{LS}")
        a("v_bfe_u32 v4, v1, 4, 1")
        a(f"v_mul_u32_u24 v4, {G.AF_KS * 1024}, v4")
        a("v_and_b32 v5, 15, v1")
        a("v_lshrrev_b32 v6, 5, v1")
        a("v_lshl_add_u32 v5, v6, 4, v5")
        a("v_lshl_add_u32 v4, v5, 4, v4")
        a(f"s_mul_i32 s8, s{sR0}, {G.AF_KS}")
        a(f"s_lshl_b32 s9, s{sH}, 2")
        a("s_add_u32 s8, s8, s9")
        a("s_lshl_b32 s8, s8, 10")
        a(f"s_add_u32 s8, s8, {G.AF}")
        for dt in range(4):
            for k in range(0, 16, 2): a(f"v_pk_mul_f32 v[{O + 16*dt + k}:{O + 16*dt + k + 1}], v[{O + 16*dt + k}:{O + 16*dt + k + 1}], v[{LS - 1}:{LS}]")
            for pc in range(2):
                t = FR + 4 * ((2 * dt + pc) & 7)
                for i, g in enumerate((pc, pc + 2)):
                    r = O + 16 * dt + 4 * g
                    a(f"v_cvt_pk_bf16_f32 v{t + 2*i}, v{r}, v{r+1}")
                    a(f"v_cvt_pk_bf16_f32 v{t + 2*i + 1}, v{r+2}, v{r+3}")
                a(f"buffer_store_dwordx4 v[{t}:{t+3}], v4, s[4:7], s8 offen offset:{dt * 1024 + pc * 512}{SC}")

    a("s_load_dwordx2 s[16:17], s[0:1], 64")
    a("s_load_dwordx2 s[20:21], s[0:1], 40")
    a("s_load_dwordx2 s[24:25], s[0:1], 80")
    a(f"s_mov_b32 s{sTHR}, {G.f32(2.0 ** 30)}")
    a(f"s_mov_b32 s{aHook}, {sum(1 << h for h in AHOOKS)}")
    a("s_cmp_ge_u32 s3, 4")
    a("s_lshl_b32 s8, 0x220, s3")
    a("s_and_b32 s8, s8, 0xfe0")
    a("s_or_b32 s8, s8, 31")
    a("s_cmp_ge_u32 s3, 4")
    a(f"s_cselect_b32 s{aHook}, s{aHook}, s8")
    a("s_lshr_b32 s8, s2, 3")
    a("s_lshl_b32 s8, s8, 2")
    a("s_and_b32 s9, s2, 7")
    a("s_lshl_b32 s9, s9, 7")
    a("s_add_u32 s8, s8, s9")
    a("s_add_u32 s8, s8, s3")
    a("s_lshl_b32 s50, s8, 13")
    a("s_and_b32 s8, s3, 1")
    a("s_lshl_b32 s8, s8, 8")
    a("s_add_u32 s8, s8, s2")
    a("s_lshl_b32 s51, s8, 13")
    a(f"s_mov_b32 s55, {sum(1 << h for h in AST)}")
    a("v_mov_b32 v3, 0xff800000")
    a("v_and_b32 v4, 31, v1")
    a("v_lshrrev_b32 v5, 5, v1")
    a("v_lshlrev_b32 v5, 2, v5")
    a(f"v_sub_u32 v{vD}, v4, v5")
    a("v_mov_b32 v4, 0"); a("v_mov_b32 v5, 0")
    for r in range(O, O + 64, 2): a(f"v_pk_mov_b32 v[{r}:{r+1}], v[4:5], v[4:5]")
    a(f"v_mov_b32 v{LS}, 0")
    a(f"s_and_b32 s{aW}, s3, 3")
    a(f"s_lshl_b32 s{aW}, s{aW}, 12")
    a(f"s_add_u32 s{aWV}, s{aW}, 0x10000")
    a(f"s_add_u32 s{aKL}, s{sKSRC}, {524288 - 4096}")
    a(f"s_add_u32 s{aVL}, s{sVSRC}, {8192 + 524288 - 4096}")
    a("v_lshlrev_b32 v19, 7, v1")
    a(f"s_add_u32 s{sKSRC}, s{sKSRC}, s{aW}")
    a(f"s_add_u32 s{sVSRC}, s{sVSRC}, s{aW}")
    a(f"s_mov_b32 s{sNI}, -1")
    a(f"v_mov_b32 v{vK}, v2")
    a("s_waitcnt lgkmcnt(0)")
    G.srd(a, 16, 16, 17, 2048 * 4096)
    G.srd(a, 20, 20, 21, 4096 * 1024)
    G.srd(a, 24, 24, 25, 688 * 1024)
    a("s_cmp_lt_u32 s3, 2")
    a("s_cselect_b64 s[28:29], s[20:21], s[24:25]")
    a("s_cselect_b32 s30, s22, s26")
    a("s_mov_b32 s31, 0x00020000")
    for m in range(8): a(rdK(m, 0))
    for m in range(8):
        a("s_waitcnt lgkmcnt(7)")
        a(qk(m, 0, "0" if m == 0 else None))
        a(rdK(m, 1))
    lm = a.newlabel("nomask")
    a(f"s_cmp_eq_u32 s{sU}, 0")
    a(f"s_cbranch_scc0 {lm}")
    a.settle(12)
    mask(0)
    a.label(lm)
    a.settle(12)
    rowmax(0, 4, 5)
    for r in range(16): a(f"v_sub_f32 v{NEGM + r}, 0, v4")
    for r in range(16): a(f"v_sub_f32 v{S[0] + r}, v{S[0] + r}, v4")
    early(0)
    a("s_cmp_ge_u32 s3, 4")
    a(f"s_cbranch_scc1 {name}_at_A")
    for isA in (0, 1):
        k = "AB"[1 - isA]
        if isA: a.label(f"{name}_at_A")
        if not isA:
            for s in addr_salu: a(s)
            a(f"s_add_u32 s{sNI}, s{sNI}, 1"); a(setV); a(setK); hook()
        else:
            for s in addr_salu: a(s)
            a(f"s_add_u32 s{sNI}, s{sNI}, 1"); a(setV); a(setK); hook()
            for g in dma_groups():
                for s in g: a(s)
            a(f"s_cmp_lt_u32 s{sU}, 2")
            a(f"s_cbranch_scc1 {name}_at_small")
        a(f"s_sub_u32 s{sUC}, s{sU}, 2")
        step(0, isA, do_pv=False, fused=False, ls=False, tailcmp=f"s_cmp_eq_u32 s{sUC}, 0")
        a("s_waitcnt lgkmcnt(6)")
        a(qk(0, 0))
        a(f"s_cbranch_scc1 {name}_at_todd{k}")
        if not isA:
            a.label(f"{name}_at_loopB1")
            step(1, isA, skip_mfma0=True)
            step(0, isA, mid=(5, [f"s_sub_u32 s{sUC}, s{sUC}, 2"], "s_nop 0"), tailcmp=f"s_cmp_lt_u32 s{sNI}, 11")
            a("s_waitcnt lgkmcnt(6)")
            a(qk(0, 0))
            a(f"s_cbranch_scc1 {name}_at_loopB1")
        a.label(f"{name}_at_loop{k}")
        step(1, isA, skip_mfma0=True)
        step(0, isA, mid=(5, [f"s_cbranch_scc1 {name}_at_teven{k}", f"s_sub_u32 s{sUC}, s{sUC}, 2"], f"s_cmp_eq_u32 s{sUC}, 1"),
             tailcmp=f"s_cmp_lg_u32 s{sUC}, 0", hk=isA)
        a("s_waitcnt lgkmcnt(6)")
        a(qk(0, 0))
        a(f"s_cbranch_scc1 {name}_at_loop{k}")
        a.label(f"{name}_at_todd{k}")
        step(1, isA, do_early=False, skip_mfma0=True, fused=False)
        begin_interval(isA)
        last_step(0)
        final_pv(0)
        a(f"s_branch {name}_at_epi{k}")
        a.label(f"{name}_at_teven{k}")
        step(0, isA, do_early=False, first=5, skip_mfma0=True)
        if isA: a.label(f"{name}_at_u1b")
        last_step(1)
        begin_interval(isA)
        final_pv(1)
        a.label(f"{name}_at_epi{k}")
        a.settle(12)
        if G.OPT.get("astamp"): G.stamp(a, 13, True)
        epilogue()
        if not isA:
            a.label(f"{name}_at_restB")
            a(f"s_cmp_ge_u32 s{sNI}, s{sNT}")
            a(f"s_cbranch_scc1 {name}_at_done")
            a("s_barrier")
            a(f"s_add_u32 s{sNI}, s{sNI}, 1")
            a(f"s_branch {name}_at_restB")
        else:
            def ld_interval(nv):
                if not (G.OPT.get("novm") and nv == 0): a(f"s_waitcnt vmcnt({8 + nv})")
                a("s_barrier")
                a(f"s_add_u32 s{sNI}, s{sNI}, 1")
                hook()
                for g in dma_groups():
                    for s in g: a(s)
            a(f"s_sub_u32 s{aLim}, s{sNT}, 2")
            a.label(f"{name}_at_ld")
            a(f"s_cmp_lt_u32 s{sI}, 2")
            a("s_cselect_b32 s8, 5, -2")
            a(f"s_cmp_eq_u32 s{sNI}, s8")
            a(f"s_cbranch_scc1 {name}_at_lnz")
            if G.OPT.get("pre"):
                a(f"s_add_u32 s8, s{sNI}, 8")
                a(f"s_cmp_eq_u32 s8, s{sNT}")
                a(f"s_cbranch_scc1 {name}_at_pre")
            a(f"s_cmp_ge_u32 s{sNI}, s{aLim}")
            a(f"s_cbranch_scc1 {name}_at_ld2")
            ld_interval(0)
            a(f"s_branch {name}_at_ld")
            a.label(f"{name}_at_ld2")
            a("s_waitcnt vmcnt(8)")
            a("s_barrier")
            a("s_waitcnt vmcnt(0)")
            a("s_barrier")
            a(f"s_branch {name}_at_done")
            a.label(f"{name}_at_pre")
            a(f"s_lshr_b32 s{aUnit}, s2, 3")
            a(f"s_lshl_b32 s{aUnit}, s{aUnit}, 2")
            a("s_and_b32 s8, s3, 3")
            a(f"s_add_u32 s{aUnit}, s{aUnit}, s8")
            a(f"s_lshl_b32 s{aUnit}, s{aUnit}, 13")
            a("s_and_b32 s50, s2, 7")
            a("s_lshl_b32 s50, s50, 20")
            a(f"s_add_u32 s50, s50, s{aUnit}")
            for t in range(6):
                nv = 1
                if t == 0:
                    a(f"s_mov_b32 s8, {G.C_Z2N}")
                    G.poll_issue(a, 8, 11, 8); nv = 2
                    a(f"buffer_load_dword v{vT}, v19, s[16:19], s50 offen")
                elif t == 1:
                    a(f"s_add_u32 s8, s50, {96 * 8192}")
                    a(f"s_cmp_lt_u32 s{aUnit}, {32 * 8192}")
                    a(f"s_cselect_b32 s8, s8, {G.OOB}")
                    a(f"buffer_load_dword v{vT}, v19, s[16:19], s8 offen")
                else:
                    if t == 2:
                        a(f"s_mov_b32 s8, {G.C_Z2N}")
                        G.poll_check(a, 8, 11, 32, 8)
                    a(f"s_add_u32 s8, s{aUnit}, {G.Z2N + (t - 2) * 96 * 8192}")
                    if t == 5:
                        a(f"s_cmp_lt_u32 s{aUnit}, {(344 - 288) * 8192}")
                        a(f"s_cselect_b32 s8, s8, {G.OOB}")
                    a(f"buffer_load_dword v{vT}, v19, s[4:7], s8 offen{SC}")
                ld_interval(nv)
            a(f"s_branch {name}_at_ld2")
            from mg_tail import lnz_parts
            a.label(f"{name}_at_lnz")
            a(f"s_lshl_b32 s{aUnit}, s{sI}, 5")
            a(f"s_add_u32 s{aUnit}, s{aUnit}, s{sH}")
            a(f"s_lshl_b32 s{aUnit}, s{aUnit}, 2")
            a("s_and_b32 s8, s3, 3")
            a(f"s_add_u32 s{aUnit}, s{aUnit}, s8")
            def zidx():
                a(f"s_lshr_b32 s8, s{aUnit}, 4")
                a("s_sub_u32 s9, 15, s8")
                a("s_min_u32 s8, s8, s9")
                a(f"s_add_u32 s8, s8, {G.C_Z}")
            load, sums, stats, store = lnz_parts(a, aUnit, (50, 51))
            def p0(): zidx(); G.poll_issue(a, 8, 11)
            def p2(): zidx(); G.poll_check(a, 8, 11, 32); load()
            def pz():
                a(f"s_and_b32 s8, s{aUnit}, 7")
                a(f"s_add_u32 s8, s8, {G.C_Z2N}")
                G.signal(a, 8, None)
            nop = lambda: None
            parts = [(p0, 1), (nop, 0), (p2, 11), (nop, 0)]
            parts += [((lambda lo=lo: sums(lo, min(11, lo + 3))), 0) for lo in (0, 3, 6, 9)]
            parts += [((lambda k=k: stats(k)), 0) for k in range(3)]
            parts += [((lambda lo=lo: store(lo, min(11, lo + 3))), min(11, lo + 3) - lo) for lo in (0, 3, 6, 9)]
            parts += [(nop, 0), (pz, 1)]
            for part, nv in parts:
                part()
                ld_interval(nv)
            a(f"s_branch {name}_at_ld")
            a.label(f"{name}_at_small")
            a(f"s_cmp_eq_u32 s{sU}, 0")
            a(f"s_cbranch_scc1 {name}_at_u0")
            step(0, isA, do_early=False, do_pv=False, fused=False, ls=False)
            a(f"s_branch {name}_at_u1b")
            a.label(f"{name}_at_u0")
            a("s_waitcnt lgkmcnt(0)")
            last_step(0, do_pv=False, ls=False)
            final_pv(0)
            a(f"s_branch {name}_at_epiA")
    for l, back in astamps:
        a.label(l)
        for k, n in enumerate(AST):
            nx = a.newlabel("an")
            a(f"s_cmp_lg_u32 s{sNI}, {n}")
            a(f"s_cbranch_scc1 {nx}")
            G.stamp(a, 7 + k, True)
            a.label(nx)
        a(f"s_branch {back}")
    for l, back, p in sites:
        a.label(l)
        a(f"s_call_b64 s[62:63], {name}_rare{p}")
        a(f"s_branch {back}")
    for l, back in hooks:
        a.label(l)
        a(f"s_call_b64 s[62:63], {name}_hook")
        a(f"s_branch {back}")
    for p in range(2):
        a.label(f"{name}_rare{p}")
        a.settle(16)
        rowmax(p, 4, 5)
        a("v_max_f32 v4, 0, v4")
        a("v_sub_f32 v5, 0, v4")
        a("v_exp_f32 v5, v5")
        for r in range(16): a(f"v_sub_f32 v{NEGM + r}, v{NEGM + r}, v4")
        for r in range(16): a(f"v_sub_f32 v{S[p] + r}, v{S[p] + r}, v4")
        for r in range(16): a(f"v_sub_f32 v{S[p^1] + r}, v{S[p^1] + r}, v4")
        for r in range(64): a(f"v_mul_f32 v{O + r}, v{O + r}, v5")
        a(f"v_mul_f32 v{LS}, v{LS}, v5")
        for e in range(17):
            for s in slot(p, e): a(s)
        early(p ^ 1, 5)
        a.settle(4)
        a("s_setpc_b64 s[62:63]")
    a.label(f"{name}_hook")
    a("s_cmp_ge_u32 s3, 4")
    a(f"s_cbranch_scc1 {name}_hook2")
    a(f"s_cmp_lt_u32 s{sNI}, 5")
    a(f"s_cbranch_scc1 {name}_hook2")
    a(f"s_cmp_lt_u32 s{sNI}, 9")
    a(f"s_cbranch_scc1 {name}_hook1")
    a(f"buffer_load_dword v{vT}, v19, s[28:31], s51 offen")
    a("s_setpc_b64 s[62:63]")
    a.label(f"{name}_hook1")
    a(f"buffer_load_dword v{vT}, v19, s[16:19], s50 offen")
    a("s_setpc_b64 s[62:63]")
    a.label(f"{name}_hook2")
    for h in HOOKS:
        nx = a.newlabel("hn")
        a(f"s_cmp_lg_u32 s{sNI}, {h}")
        a(f"s_cbranch_scc1 {nx}")
        if h == 1:
            lw = a.newlabel("nw")
            a("s_cmp_ge_u32 s3, 4")
            a(f"s_cbranch_scc1 {lw}")
            a(f"s_waitcnt vmcnt({0 if G.OPT.get('st16') else 2})")
            a.label(lw)
        if h == 2:
            a(f"s_add_u32 s8, s{sI}, {G.C_Z}")
            G.signal(a, 8, 4)
        if h < 4:
            for j in (() if G.OPT.get('st16') else (8 + 2 * h, 9 + 2 * h)):
                for x in G.kvstore(j): a(x)
        if h == 4:
            a("s_waitcnt vmcnt(0)")
        if h == 5:
            a(f"s_add_u32 s8, s{G.kCKV}, 32")
            G.signal(a, 8, 4)
        if h == 10:
            a(f"s_lshr_b32 s8, s{sH}, 1")
            a(f"s_add_u32 s8, s8, {G.C_KV + 32}")
            G.poll_issue(a, 8, vPL)
        if h == 12:
            a(f"s_lshr_b32 s8, s{sH}, 1")
            a(f"s_add_u32 s8, s8, {G.C_KV + 32}")
            G.poll_check(a, 8, vPL, 16)
        a("s_setpc_b64 s[62:63]")
        a.label(nx)
    a.label(f"{name}_hookret")
    a("s_setpc_b64 s[62:63]")
    a.label(f"{name}_at_done")
    if G.OPT.get("astamp"): G.stamp(a, 14, True)
```

```python
import sys, math, struct
from asmlib import *

NAME = "parallel_sum__compressed_kv_cla__mixer_gmlp__prompt"
XNF = 0x0000000
KF  = 0x0200000
VF  = 0x1200000
AF  = 0x2200000
AF_KS = 150
Z1F = 0x3600000
Z2F = 0x3A00000
Z2N = 0x3E00000
CNTO = 0x7000000
TSO = 0x8000000
WS_BYTES = 0x10000000
OOB = 0x20000000
C_XN, C_KV, C_Z, C_Z2N, C_CTX, C_U, C_P, C_CTXS = 0, 16, 80, 88, 96, 160, 192, 224
PF = 0x4200000
STAMP = False
OPT = {}
SC = " sc1"
N = NAME + "_kernel"

sH, sI, sTILE, sR0, sZT, sN0, sNT, sU, sUC, sNI, sKSRC, sVSRC, sTHR = range(32, 45)
qWq, qWin, qL2k, qL1k, qXN = range(46, 51)
kX, kW, kL4k, kIsV, kST, kSA, kCKV, kRow = range(54, 62)

def f32(x): return "0x%08x" % struct.unpack("<I", struct.pack("<f", x))[0]
def stamp(a, i, force=False):
    if (OPT.get("astamp") or OPT.get("fstamp")) and 7 <= i <= 14 and not force: return
    if STAMP: a(f"{'s_memtime' if OPT.get('cyc') else 's_memrealtime'} s[{68 + 2*i}:{69 + 2*i}]")
def stampc(a, i):
    if STAMP: a(f"s_memtime s[{68 + 2*i}:{69 + 2*i}]")
def srd(a, d, lo, hi, nbytes):
    a(f"s_mov_b32 s{d}, s{lo}")
    a(f"s_and_b32 s{d+1}, s{hi}, 0xffff")
    a(f"s_mov_b32 s{d+2}, {nbytes:#x}")
    a(f"s_mov_b32 s{d+3}, 0x00020000")
def wave_allreduce(a, v, t, op="v_add_f32"):
    for mod in ("quad_perm:[1,0,3,2]", "quad_perm:[2,3,0,1]", "row_half_mirror", "row_mirror"):
        a(f"{op} v{v}, v{v}, v{v} {mod} row_mask:0xf bank_mask:0xf")
    for sw in ("v_permlane16_swap_b32", "v_permlane32_swap_b32"):
        a(f"v_mov_b32 v{t}, v{v}")
        a(f"{sw} v{v}, v{t}")
        a(f"{op} v{v}, v{v}, v{t}")
def pi_of(a, dst, src, tmp):
    a(f"v_lshrrev_b32 v{tmp}, 1, v{src}")
    a(f"v_mul_u32_u24 v{tmp}, 3, v{tmp}")
    a(f"v_lshlrev_b32 v{dst}, 1, v{src}")
    a(f"v_xor_b32 v{dst}, v{dst}, v{tmp}")
    a(f"v_and_b32 v{dst}, 3, v{dst}")

class VM:
    def __init__(self): self.q = []
    def issue(self, tag, n=1): self.q += [tag] * n
    def after(self, *tags):
        return min(63, min(len(self.q) - 1 - max(i for i, t in enumerate(self.q) if t == tag) for tag in tags))

def signal(a, sidx, wave, release=False):
    l = a.newlabel("sig")
    if wave is not None:
        a(f"s_cmp_lg_u32 s3, {wave}")
        a(f"s_cbranch_scc1 {l}")
    if release:
        a("buffer_wbl2 sc1")
        a("s_waitcnt vmcnt(0)")
    a(f"s_lshl_b32 s14, s{sidx}, 8")
    a(f"s_add_u32 s14, s14, {CNTO}")
    a("v_mov_b32 v8, 0")
    a("v_mov_b32 v9, 1")
    a("s_mov_b64 exec, 1")
    a("buffer_atomic_add v9, v8, s[4:7], s14 offen sc1")
    a("s_mov_b64 exec, -1")
    a.label(l)
def poll_issue(a, sidx, vdst, nshard=1):
    a(f"s_lshl_b32 s14, s{sidx}, 8")
    a(f"s_add_u32 s14, s14, {CNTO}")
    a(f"v_and_b32 v8, {nshard - 1}, v1")
    a("v_lshlrev_b32 v8, 8, v8")
    a(f"buffer_load_dword v{vdst}, v8, s[4:7], s14 offen sc1")
def poll_check(a, sidx, vdst, target, nshard=1):
    l = a.newlabel("poll"); d = a.newlabel("polld")
    a("s_mov_b32 s15, 0x20000")
    a.label(l)
    a(f"v_cmp_gt_u32 vcc, {target}, v{vdst}")
    a(f"s_cbranch_vccz {d}")
    a("s_sleep 2")
    poll_issue(a, sidx, vdst, nshard)
    a("s_waitcnt vmcnt(0)")
    a("s_sub_u32 s15, s15, 1")
    a("s_cmp_lg_u32 s15, 0")
    a(f"s_cbranch_scc1 {l}")
    a.label(d)

def kvstore(j):
    t = pk(j)
    out = [f"s_add_u32 s12, s{kST}, {(j >> 3) * 32 * 8192 + ((j >> 2) & 1) * 8192}"]
    if (j >> 1) & 1: out.append(f"s_add_u32 s12, s12, s{kSA}")
    out.append(f"buffer_store_dwordx4 v[{t}:{t+3}], v10, s[4:7], s12 offen offset:{(j & 1) * 256}{SC}")
    return out
RING = 65536; STG = 24576
QACC, ZACC, XF, WQ, QF = 192, 168, 64, 120, 112
PKE, PKL, QA = 88, 20, 52
def pk(j): return PKE + 4 * j if j < 8 else PKL + 4 * (j - 8)
XD = 3

def front(a):
    vm = VM()
    kernel_header(a, N)
    a("s_cmp_ge_u32 s2, 256")
    a(f"s_cbranch_scc1 {N}_end")
    stamp(a, 0)
    a("s_load_dwordx4 s[8:11], s[0:1], 96")
    a("s_load_dwordx4 s[24:27], s[0:1], 0")
    a("s_load_dwordx4 s[28:31], s[0:1], 24")
    a("s_load_dwordx2 s[64:65], s[0:1], 16")
    a("s_load_dwordx2 s[66:67], s[0:1], 56")
    a("v_and_b32 v1, 63, v0")
    a("v_lshrrev_b32 v2, 6, v0")
    a("v_readfirstlane_b32 s3, v2")
    a("v_lshlrev_b32 v2, 4, v1")
    a("s_and_b32 s12, s2, 7")
    a("s_lshr_b32 s13, s2, 3")
    a("s_and_b32 s62, s13, 7")
    a(f"s_bfe_u32 s{kIsV}, s13, 0x10003")
    a("s_lshr_b32 s13, s13, 4")
    a("s_lshl_b32 s63, s12, 1")
    a("s_add_u32 s63, s63, s13")
    a(f"s_add_u32 s{kCKV}, s63, {C_KV}")
    a("v_lshrrev_b32 v4, 3, v1")
    a("v_lshlrev_b32 v4, 10, v4")
    a("v_and_b32 v5, 7, v1")
    a("v_lshrrev_b32 v6, 4, v1")
    a("v_xor_b32 v5, v5, v6")
    a("v_lshl_add_u32 v10, v5, 4, v4")
    a("v_xor_b32 v11, 64, v10")
    a("v_and_b32 v5, 15, v1")
    a("v_lshrrev_b32 v4, 1, v5")
    a("v_and_b32 v5, 1, v5")
    a("s_and_b32 s12, s3, 1")
    a("s_lshl_b32 s13, s12, 2")
    a("v_or_b32 v7, s13, v6")
    a("v_xor_b32 v4, v4, v7")
    a("v_lshlrev_b32 v4, 5, v4")
    a("v_lshl_add_u32 v4, v5, 4, v4")
    a("v_lshl_add_u32 v12, v6, 13, v4")
    a("v_lshrrev_b32 v4, 5, v1")
    a("v_and_b32 v5, 31, v1")
    a("v_lshrrev_b32 v6, 1, v5")
    a("v_and_b32 v5, 1, v5")
    a("s_and_b32 s13, s3, 2")
    a("s_lshl_b32 s13, s13, 1")
    a("v_or_b32 v7, s13, v4")
    a("v_xor_b32 v6, v6, v7")
    a("v_lshlrev_b32 v6, 5, v6")
    a("v_lshl_add_u32 v6, v5, 4, v6")
    a("v_lshl_add_u32 v30, v4, 13, v6")
    a("v_xor_b32 v31, 64, v30")
    a(f"s_lshl_b32 s{kX}, s62, 7")
    a("s_and_b32 s13, s3, 3")
    a("s_lshl_b32 s13, s13, 5")
    a(f"s_add_u32 s{kX}, s{kX}, s13")
    a("s_lshr_b32 s13, s3, 2")
    a("s_lshl_b32 s13, s13, 10")
    a(f"s_add_u32 s{kX}, s{kX}, s13")
    a(f"s_lshl_b32 s{kX}, s{kX}, 10")
    a(f"s_lshl_b32 s{kW}, s3, 15")
    a("s_lshl_b32 s13, s63, 9")
    a(f"s_add_u32 s{kW}, s{kW}, s13")
    a(f"s_lshl_b32 s{kL4k}, s3, 12")
    a(f"s_lshl_b32 s{qL2k}, s3, 11")
    a(f"s_lshl_b32 s{qL1k}, s3, 10")
    a(f"s_lshl_b32 s{kRow}, s2, 3")
    a(f"s_add_u32 s{kRow}, s{kRow}, s3")
    a("s_waitcnt lgkmcnt(0)")
    if OPT.get("fstamp"): stamp(a, 7, True)
    srd(a, 16, 26, 27, 2048 * 1024)
    a("s_mov_b64 s[52:53], s[26:27]")
    a(f"s_cmp_eq_u32 s{kIsV}, 0")
    a("s_cselect_b32 s28, s28, s30")
    a("s_cselect_b32 s29, s29, s31")
    srd(a, 20, 28, 29, 512 * 8192)
    srd(a, 4, 10, 11, WS_BYTES)
    srd(a, 28, 8, 9, 256)
    srd(a, 24, 24, 25, 2048 * 1024)
    def xdma(c):
        return [[f"s_add_u32 m0, s{kL4k}, {(c % 3) * 32768 + m * 1024}", f"s_add_u32 s12, s{kX}, {m * 8192 + c * 128}",
                 f"buffer_load_dwordx4 v{10 + (m & 1)}, s[16:19], s12 offen lds"] for m in range(4)]
    def wdma(ks):
        return [[f"s_add_u32 m0, s{qL2k}, {98304 + (ks & 3) * 16384 + m * 1024}", f"s_add_u32 s12, s{kW}, {(ks * 32 + 2 * m) * 8192}",
                 f"buffer_load_dwordx4 v{30 + m}, s[20:23], s12 offen lds"] for m in range(2)]
    def emit(groups, tag):
        for g in groups:
            for s in g:
                if isinstance(s, tuple): a.label(s[1]); continue
                a(s)
                if s.startswith("buffer_") and tag != "misc": vm.issue(tag)
    emit(wdma(0), ("w0", 0)); emit(xdma(0), ("x0", 0))
    if OPT.get("fstamp"): stamp(a, 8, True)
    a(f"s_lshl_b32 s12, s{kRow}, 10")
    a("buffer_load_dwordx4 v[32:35], v2, s[24:27], s12 offen"); vm.issue("ln")
    a("s_or_b32 s12, s2, s3")
    a(f"s_cbranch_scc1 {N}_noinit")
    a("v_lshlrev_b32 v8, 8, v1")
    a("v_mov_b32 v9, 0")
    a(f"s_mov_b32 s12, {CNTO}")
    a("buffer_store_dword v9, v8, s[4:7], s12 offen sc1")
    a(f"s_mov_b32 s12, {CNTO + 64 * 256}")
    a("buffer_store_dword v9, v8, s[4:7], s12 offen sc1")
    a(f"s_mov_b32 s12, {CNTO + 128 * 256}")
    a("buffer_store_dword v9, v8, s[4:7], s12 offen sc1")
    a(f"s_mov_b32 s12, {CNTO + 192 * 256}")
    a("buffer_store_dword v9, v8, s[4:7], s12 offen sc1")
    a(f"s_mov_b32 s12, {CNTO + 256 * 256}")
    a("buffer_store_dword v9, v8, s[4:7], s12 offen sc1")
    a.label(f"{N}_noinit")
    a("s_barrier")
    emit(wdma(1), ("w0", 1))
    if not OPT.get("nocode"):
        a("s_cmp_lg_u32 s3, 7")
        a(f"s_cbranch_scc1 {N}_nocode")
        a("s_getpc_b64 s[14:15]")
        a.label(f"{N}_pc")
        a("s_lshr_b32 s12, s2, 3")
        a("s_lshl_b32 s12, s12, 13")
        a("v_lshlrev_b32 v8, 7, v1")
        a("v_add_u32 v8, s12, v8")
        a(f"v_min_u32 v8, {N}_end - {N}_pc, v8")
        a("global_load_dword v28, v8, s[14:15]")
        a.label(f"{N}_nocode")
    a("v_and_b32 v4, 15, v1")
    a("v_lshrrev_b32 v5, 4, v1")
    a("v_lshrrev_b32 v6, 1, v4")
    a("v_xor_b32 v6, v6, v5")
    a("v_lshlrev_b32 v6, 4, v6")
    a("v_lshl_add_u32 v6, v4, 7, v6")
    a("s_and_b32 s12, s3, 1")
    a("s_lshl_b32 s12, s12, 13")
    a("v_add_u32 v14, s12, v6")
    a("v_xor_b32 v15, 64, v14")
    a("v_add_u32 v16, 65536, v14")
    a("v_add_u32 v17, 65536, v15")
    a("v_lshrrev_b32 v6, 2, v4")
    a("v_and_b32 v7, 1, v5")
    a("v_lshl_or_b32 v7, v7, 2, v6")
    a("v_lshl_add_u32 v6, v5, 3, v6")
    a("v_lshlrev_b32 v6, 9, v6")
    a("v_and_b32 v3, 3, v1")
    a("v_lshl_add_u32 v6, v3, 3, v6")
    a("v_add_u32 v6, 98304, v6")
    a("s_lshr_b32 s13, s3, 1")
    a("s_lshl_b32 s12, s13, 2")
    for nt in range(4):
        a(f"s_add_u32 s14, s12, {nt}")
        a("v_xor_b32 v3, s14, v7")
        a(f"v_lshl_add_u32 v{18 + nt}, v3, 5, v6")
    a(f"s_lshl_b32 s{kST}, s63, 1")
    a("s_lshr_b32 s12, s13, 1")
    a(f"s_add_u32 s{kST}, s{kST}, s12")
    a(f"s_lshl_b32 s{kST}, s{kST}, 6")
    a("s_lshl_b32 s12, s62, 2")
    a(f"s_add_u32 s{kST}, s{kST}, s12")
    a("s_and_b32 s12, s3, 1")
    a("s_lshl_b32 s12, s12, 1")
    a(f"s_add_u32 s{kST}, s{kST}, s12")
    a(f"s_lshl_b32 s{kST}, s{kST}, 13")
    a("s_and_b32 s13, s13, 1")
    a(f"s_cmp_eq_u32 s{kIsV}, 0")
    a(f"s_movk_i32 s{kSA}, 1024")
    a(f"s_cselect_b32 s{kSA}, 2048, s{kSA}")
    a(f"s_mov_b32 s12, {VF}")
    a(f"s_cselect_b32 s12, {KF}, s12")
    a("s_cselect_b64 vcc, -1, 0")
    a(f"s_add_u32 s{kST}, s{kST}, s12")
    a(f"s_mul_i32 s12, s13, s{kSA}")
    a("s_lshl_b32 s12, s12, 1")
    a(f"s_add_u32 s{kST}, s{kST}, s12")
    a("v_and_b32 v6, 1, v5")
    a("v_lshrrev_b32 v7, 1, v5")
    a("v_lshl_add_u32 v3, v7, 5, v4")
    a("v_lshlrev_b32 v3, 4, v3")
    a("v_lshl_add_u32 v3, v6, 10, v3")
    a("v_lshl_add_u32 v27, v6, 5, v4")
    a("v_lshlrev_b32 v27, 4, v27")
    a("v_lshl_add_u32 v27, v7, 12, v27")
    a("v_cndmask_b32 v27, v27, v3, vcc")
    emit(wdma(2), ("w0", 2)); emit(xdma(1), ("x0", 1))
    a("s_and_b32 s12, s2, 7")
    a("s_lshr_b32 s13, s2, 3")
    a("s_and_b32 s14, s13, 3")
    a("s_lshl_b32 s12, s12, 2")
    a(f"s_add_u32 s{sH}, s12, s14")
    a(f"s_lshr_b32 s{sI}, s13, 2")
    a(f"s_sub_u32 s12, 15, s{sI}")
    a("s_cmp_ge_u32 s3, 4")
    a(f"s_cselect_b32 s{sTILE}, s{sI}, s12")
    a("s_and_b32 s13, s3, 3")
    a(f"s_lshl_b32 s12, s{sTILE}, 2")
    a(f"s_add_u32 s{sU}, s12, s13")
    a(f"s_lshl_b32 s{sR0}, s{sU}, 1")
    a(f"s_lshl_b32 s12, s{sI}, 1")
    a(f"s_sub_u32 s{sNT}, 32, s12")
    a(f"s_mul_i32 s{sN0}, s{sH}, 3")
    a(f"s_sub_u32 s12, s{sN0}, 2")
    a(f"s_cmp_ge_u32 s{sH}, 15")
    a(f"s_cselect_b32 s{sZT}, 1, 0")
    a(f"s_cselect_b32 s{sN0}, s12, s{sN0}")
    a(f"s_min_u32 s{sN0}, s{sN0}, 86")
    a(f"s_lshl_b32 s{qWq}, s3, 16")
    a(f"s_lshl_b32 s12, s{sH}, 8")
    a(f"s_add_u32 s{qWq}, s{qWq}, s12")
    a(f"s_mul_i32 s{qWin}, s3, {8 * 2752}")
    a(f"s_lshl_b32 s12, s{sN0}, 5")
    a(f"s_add_u32 s{qWin}, s{qWin}, s12")
    a(f"s_lshl_b32 s{qXN}, s{sR0}, 14")
    a(f"s_lshl_b32 s12, s{sH}, 19")
    a(f"s_add_u32 s{sKSRC}, s12, {KF}")
    a(f"s_add_u32 s{sVSRC}, s12, {VF - 8192}")
    a("v_lshrrev_b32 v4, 3, v1")
    a("v_and_b32 v5, 7, v1")
    a("v_lshrrev_b32 v6, 1, v5")
    a("v_and_b32 v5, 1, v5")
    a("v_bfe_u32 v7, v1, 4, 1")
    a("s_and_b32 s12, s3, 1")
    a("s_lshl_b32 s12, s12, 1")
    a("v_or_b32 v7, s12, v7")
    a("v_xor_b32 v6, v6, v7")
    a("v_lshlrev_b32 v6, 5, v6")
    a("v_lshl_add_u32 v6, v5, 4, v6")
    a("v_mul_u32_u24 v4, 2752, v4")
    a("v_add_u32 v13, v4, v6")
    if OPT.get("fstamp"): stamp(a, 9, True)
    a(f"s_waitcnt vmcnt({vm.after('ln')}) lgkmcnt(0)")
    if OPT.get("fstamp"): stamp(a, 10, True)
    for i in range(4):
        a(f"v_lshlrev_b32 v{40 + 2*i}, 16, v{32 + i}")
        a(f"v_and_b32 v{41 + 2*i}, 0xffff0000, v{32 + i}")
    a("v_add_f32 v36, v40, v41")
    for i in range(2, 8): a(f"v_add_f32 v36, v36, v{40 + i}")
    wave_allreduce(a, 36, 37)
    a(f"v_mul_f32 v36, {f32(1.0/512)}, v36")
    for i in range(8): a(f"v_sub_f32 v{40 + i}, v{40 + i}, v36")
    a("v_mul_f32 v38, v40, v40")
    for i in range(1, 8): a(f"v_fmac_f32 v38, v{40 + i}, v{40 + i}")
    wave_allreduce(a, 38, 37)
    a(f"v_mov_b32 v37, {f32(1e-5)}")
    a(f"v_fmac_f32 v37, {f32(1.0/512)}, v38")
    a("v_rsq_f32 v37, v37")
    for i in range(8): a(f"v_mul_f32 v{40 + i}, v{40 + i}, v37")
    for i in range(4): a(f"v_cvt_pk_bf16_f32 v{96 + i}, v{40 + 2*i}, v{41 + 2*i}")
    a("s_lshl_b32 s12, s3, 4")
    a("s_add_u32 s12, s12, 65536")
    a("v_lshlrev_b32 v4, 7, v1")
    a("v_add_u32 v4, s12, v4")
    a("ds_write_b128 v4, v[96:99]")
    a("v_lshrrev_b32 v5, 5, v1")
    a("v_lshlrev_b32 v5, 10, v5")
    a("v_bfe_u32 v4, v1, 3, 2")
    a("v_lshl_add_u32 v5, v4, 8, v5")
    a("v_and_b32 v4, 7, v1")
    a("v_lshl_add_u32 v3, v4, 4, v5")
    a("s_lshr_b32 s45, s2, 1")
    a("s_lshl_b32 s45, s45, 14")
    a("s_and_b32 s13, s2, 1")
    a("s_lshl_b32 s13, s13, 7")
    a("s_add_u32 s45, s45, s13")
    a("s_lshl_b32 s13, s3, 11")
    a("s_add_u32 s45, s45, s13")
    a(f"v_add_u32 v22, s{qL1k}, v2")
    a("v_add_u32 v22, 65536, v22")
    a("s_lshr_b32 s12, s2, 3")
    a("s_and_b32 s13, s2, 7")
    a("s_cmp_eq_u32 s3, 2")
    a("s_cselect_b64 s[8:9], s[66:67], s[64:65]")
    a(f"s_mov_b32 s10, {512 * 8192}")
    a(f"s_cselect_b32 s10, {512 * 2752}, s10")
    a("s_cmp_eq_u32 s3, 3")
    a("s_cselect_b64 s[8:9], s[52:53], s[8:9]")
    a(f"s_cselect_b32 s10, {2048 * 1024}, s10")
    a("s_and_b32 s9, s9, 0xffff")
    a("s_mov_b32 s11, 0x00020000")
    a("s_lshl_b32 s14, s3, 5")
    a("s_add_u32 s14, s14, s12")
    a("s_lshl_b32 s14, s14, 16")
    a("s_lshl_b32 s15, s13, 10")
    a("s_add_u32 s14, s14, s15")
    a("s_lshl_b32 s15, s13, 5")
    a("s_add_u32 s15, s15, s12")
    a("s_lshl_b32 s15, s15, 13")
    a("s_cmp_ge_u32 s3, 2")
    a("s_cselect_b32 s51, s15, s14")
    a("s_cselect_b64 vcc, -1, 0")
    a("s_lshr_b32 s15, s15, 1")
    a(f"s_or_b32 s15, s15, {1024 * 1024}")
    a("s_cmp_eq_u32 s3, 3")
    a("s_cselect_b32 s51, s15, s51")
    a("v_lshlrev_b32 v8, 7, v1")
    a("v_lshrrev_b32 v4, 3, v1")
    a("v_lshlrev_b32 v4, 13, v4")
    a("v_and_b32 v5, 7, v1")
    a("v_lshl_add_u32 v29, v5, 7, v4")
    a("v_cndmask_b32 v29, v29, v8, vcc")
    def qdma(st):
        base = RING + (st & 3) * STG
        out = []
        for m in range(2):
            out.append([f"s_add_u32 m0, s{qL2k}, {base + m * 1024}",
                        f"s_add_u32 s12, s{qWq}, {(st * 64 + 4 * m) * 8192}",
                        f"buffer_load_dwordx4 v12, s[16:19], s12 offen lds"])
        out.append([f"s_add_u32 m0, s{qL1k}, {base + 16384}",
                    f"s_add_u32 s12, s{qWin}, {st * 64 * 2752}",
                    f"buffer_load_dwordx4 v13, s[20:23], s12 offen lds"])
        return out
    def xload(ks):
        out = []
        for T in range(2):
            r = XF + 8 * (ks % XD) + 4 * T
            out.append([f"s_add_u32 s12, s{qXN}, {T * 16384 + (ks >> 2) * 4096}",
                        f"buffer_load_dwordx4 v[{r}:{r+3}], v2, s[4:7], s12 offen offset:{(ks & 3) * 1024}{SC}"])
        return out
    def pack(j, t, acc, isV):
        kt, x, y = j >> 2, (j >> 1) & 1, j & 1
        tiles = [(2 * kt + e, 2 * x + y) for e in range(2)] if isV else [(2 * kt + y, 2 * x + e) for e in range(2)]
        out = []
        for i, (rt, nt) in enumerate(tiles):
            r = acc + 16 * rt + 4 * nt
            out.append(f"v_cvt_pk_bf16_f32 v{t + 2*i}, v{r}, v{r+1}")
            out.append(f"v_cvt_pk_bf16_f32 v{t + 2*i + 1}, v{r+2}, v{r+3}")
        return out
    F2 = (32, 80)
    def kreads(ks, F):
        sl = (ks >> 1) % 3; hi = sl == 2; off = 0 if hi else sl * 32768
        xs = [f"ds_read_b128 v[{F + 4*rt}:{F + 4*rt + 3}], v{14 + 2*hi + (ks & 1)} offset:{off + (rt >> 2) * 16384 + (rt & 3) * 2048}" for rt in range(8)]
        ws = []
        for nt in range(4):
            b = F + 32 + 4 * nt
            ws.append(f"ds_read_b64_tr_b16 v[{b}:{b+1}], v{18 + nt} offset:{(ks & 3) * 16384}")
            ws.append(f"ds_read_b64_tr_b16 v[{b+2}:{b+3}], v{18 + nt} offset:{(ks & 3) * 16384 + 2048}")
        return [xs[0]] + ws + xs[1:]
    def kmfma(F, isV, first, fill):
        j = 0
        for rt in range(8):
            for nt in range(4):
                acc = 128 + 16 * rt + 4 * nt
                x = f"v[{F + 4*rt}:{F + 4*rt + 3}]"; w = f"v[{F + 32 + 4*nt}:{F + 32 + 4*nt + 3}]"
                A, B = (x, w) if isV else (w, x)
                a(f"v_mfma_f32_16x16x32_bf16 v[{acc}:{acc+3}], {A}, {B}, {'0' if first else f'v[{acc}:{acc+3}]'}")
                for grp, tag in fill.get(j, []): emit([grp], tag)
                j += 1
    if OPT.get("fstamp"): stamp(a, 11, True)
    a("s_waitcnt lgkmcnt(0)")
    a("s_barrier")
    stamp(a, 1)
    a("ds_read_b128 v[22:25], v22")
    for s in kreads(0, F2[0]): a(s)
    a(f"s_cmp_eq_u32 s{kIsV}, 0")
    a(f"s_cbranch_scc0 {N}_kv_v")
    snap = list(vm.q)
    for isV in (0, 1):
        vm.q = list(snap)
        if isV: a.label(f"{N}_kv_v")
        for ks in range(16):
            fill = {}
            def put(j, grp, tag=None): fill.setdefault(j, []).append((grp, tag))
            if ks < 15:
                a(f"s_waitcnt vmcnt({vm.after(('w0', ks + 1), ('x0', (ks + 1) >> 1))}) lgkmcnt(0)")
                a("s_barrier")
                for j, s in enumerate(kreads(ks + 1, F2[(ks + 1) & 1])): put(j, [s])
            else:
                a(f"s_waitcnt vmcnt({vm.after(('w', 0))}) lgkmcnt(0)")
                a("s_barrier")
            pos = 16
            def late(groups, tag):
                nonlocal pos
                for g in groups: put(min(pos, 31), g, tag); pos += 2
            if ks == 0:
                put(0, [f"buffer_store_dwordx4 v[22:25], v3, s[4:7], s45 offen{SC}"], "lnst")
                pos = 8; late(wdma(3), ("w0", 3)); late(xdma(2), ("x0", 2))
            if ks + 4 < 16: late(wdma(ks + 4), ("w0", ks + 4))
            c = (ks + 5) >> 1
            if ks >= 1 and c < 8: late(xdma(c)[0:2] if ks & 1 else xdma(c)[2:4], ("x0", c))
            if ks == 2:
                l = a.newlabel("flag")
                late([["s_or_b32 s12, s2, s3", f"s_cbranch_scc1 {l}", "v_mov_b32 v8, 0", "v_mov_b32 v9, 1",
                       "buffer_store_dword v9, v8, s[28:31], 0 offen sc1", ("label", l)]], "misc")
            if ks == 3 and not OPT.get("nowarm"):
                l = a.newlabel("warm")
                late([["s_cmp_ge_u32 s3, 3", f"s_cbranch_scc1 {l}", "buffer_load_dword v28, v29, s[8:11], s51 offen", ("label", l)]], "misc")
            if ks == 4: late([["v_mov_b32 v8, 0", "buffer_load_dword v26, v8, s[28:31], 0 offen sc1"]], "flag")
            if ks == 8:
                lw = a.newlabel("initw"); ld = a.newlabel("initd")
                a("s_cmp_lg_u32 s3, 0")
                a(f"s_cbranch_scc1 {ld}")
                a("s_mov_b32 s15, 0x20000")
                a.label(lw)
                a("v_cmp_eq_u32 vcc, 0, v26")
                a(f"s_cbranch_vccz {ld}")
                a("s_sleep 8")
                a("v_mov_b32 v8, 0")
                a("buffer_load_dword v26, v8, s[28:31], 0 offen sc1")
                a("s_waitcnt vmcnt(0)")
                a("s_sub_u32 s15, s15, 1")
                a("s_cmp_lg_u32 s15, 0")
                a(f"s_cbranch_scc1 {lw}")
                a.label(ld)
                a("s_lshr_b32 s13, s2, 4")
                signal(a, 13, 0)
            if ks == 12:
                srd(a, 16, 64, 65, 512 * 8192)
                srd(a, 20, 66, 67, 512 * 2752)
                a(f"s_add_u32 s13, s{sTILE}, {C_XN}")
                poll_issue(a, 13, 26); vm.issue("pxn")
                late(qdma(0), ("w", 0)); late(qdma(1), ("w", 1))
            if ks == 14: late(qdma(2), ("w", 2))
            if ks == 15:
                a(f"s_waitcnt vmcnt({vm.after('pxn')})")
                a(f"s_add_u32 s13, s{sTILE}, {C_XN}")
                poll_check(a, 13, 26, 16)
                pos = 0
                for k in range(2): late(xload(k), ("x", k))
            kmfma(F2[ks & 1], isV, ks == 0, fill)
        stamp(a, 2)
        emit(xload(2), ("x", 2))
        a("v_mov_b32 v10, v27")
        for j in range(16):
            for s in pack(j, pk(j), 128, isV): a(s)
        if not isV: a(f"s_branch {N}_kv_done")
    a.label(f"{N}_kv_done")
    a("v_and_b32 v4, 15, v1")
    a("v_lshrrev_b32 v5, 4, v1")
    a("v_lshrrev_b32 v6, 2, v4")
    a("v_and_b32 v7, 1, v5")
    a("v_lshl_or_b32 v8, v7, 2, v6")
    a("v_lshl_add_u32 v9, v5, 3, v6")
    a("v_and_b32 v4, 3, v1")
    a("v_lshlrev_b32 v4, 3, v4")
    a("v_lshl_add_u32 v3, v9, 8, v4")
    a(f"v_add_u32 v3, {RING}, v3")
    for dt in range(8):
        a(f"v_xor_b32 v63, {dt}, v8")
        a(f"v_lshl_add_u32 v{QA + dt}, v63, 5, v3")
    a("v_lshrrev_b32 v6, 1, v6")
    a("v_lshl_or_b32 v8, v7, 1, v6")
    a("v_lshl_add_u32 v3, v9, 7, v4")
    a(f"v_add_u32 v3, {RING + 16384}, v3")
    for ft in range(3):
        a(f"v_xor_b32 v63, {ft}, v8")
        a(f"v_lshl_add_u32 v{QA + 8 + ft}, v63, 5, v3")
    def qread(ks, j):
        e = ks & 1; b = WQ + 4 * j
        o, d = (e * 8192, 1024) if j < 8 else (e * 4096, 512)
        return [f"ds_read_b64_tr_b16 v[{b}:{b+1}], v{QA + j} offset:{o}",
                f"ds_read_b64_tr_b16 v[{b+2}:{b+3}], v{QA + j} offset:{o + d}"]
    def kvpre(k):
        src, tile, lds = ((sKSRC, 0, 0), (sKSRC, 1, 16384), (sVSRC, 0, 65536), (sKSRC, 2, 32768), (sVSRC, 1, 81920))[k]
        return [f"s_add_u32 m0, s{qL2k}, {lds}",
                f"s_add_u32 s12, s{src}, s{qL2k}",
                f"s_add_u32 s12, s12, {tile * 16384}"] + (["s_cmp_lt_u32 s3, 4", f"s_cselect_b32 s12, {OOB}, s12"] if k == 2 else []) + [
                f"buffer_load_dwordx4 v2, s[4:7], s12 offen{SC} lds",
                f"buffer_load_dwordx4 v2, s[4:7], s12 offen offset:1024{SC} lds"]
    stamp(a, 3)
    for j in range(11):
        for s in qread(0, j): a(s)
    st_at = {j: [2 * j, 2 * j + 1] for j in range(4)}
    for ks in range(16):
        st = ks >> 1
        need = [("x", ks)]
        if ks & 1 and ks < 15: need.append(("w", st + 1))
        if ks == 13: need.append("pkv")
        if ks == 15: need.append("kv")
        a(f"s_waitcnt vmcnt({vm.after(*need)})")
        if ks & 1 and ks < 15:
            a("s_barrier")
            d = STG if ((st + 1) & 3) else -3 * STG
            for r in range(QA, QA + 11):
                a(f"v_add_u32 v{r}, {d}, v{r}" if d > 0 else f"v_subrev_u32 v{r}, {-d}, v{r}")
        if ks == 15: a("s_barrier")
        if ks == 7: signal(a, kCKV, 0)
        if ks == 13:
            a(f"s_lshr_b32 s13, s{sH}, 1")
            a(f"s_add_u32 s13, s13, {C_KV}")
            poll_check(a, 13, 11, 16)
        extra = []
        for j in st_at.get(ks, []): extra.append((kvstore(j), "st"))
        if ks & 1 and st + 3 < 8: extra += [(g, ("w", st + 3)) for g in qdma(st + 3)]
        if ks == 13: extra += [(kvpre(k), "kv") for k in range(5)]
        X = [f"v[{XF + 8 * (ks % XD) + 4 * T}:{XF + 8 * (ks % XD) + 4 * T + 3}]" for T in range(2)]
        pend = []
        def mm(ins):
            a(ins)
            if pend: a(pend.pop(0))
        for dt in range(8):
            if dt % 2 == 0: a(f"s_waitcnt lgkmcnt({min(15, 18 - (2 * dt if ks == 15 else (2 if dt else 0)))})")
            for T in range(2):
                acc = QACC + 8 * dt + 4 * T
                mm(f"v_mfma_f32_16x16x32_bf16 v[{acc}:{acc+3}], v[{WQ + 4*dt}:{WQ + 4*dt + 3}], {X[T]}, {'0' if ks == 0 else f'v[{acc}:{acc+3}]'}")
            if ks < 15: pend += qread(ks + 1, dt)
            if extra and dt >= 1:
                g, tag = extra.pop(0); emit([g], tag)
        l2 = a.newlabel("z2"); l3 = a.newlabel("zd")
        a(f"s_cmp_eq_u32 s{sZT}, 0")
        a(f"s_waitcnt lgkmcnt({14 if ks < 15 else 0})")
        a(f"s_cbranch_scc0 {l2}")
        keep = list(pend)
        for zt in range(2):
            if zt: a.label(l2)
            pend[:] = keep
            for ft in range(3):
                for T in range(2):
                    acc = ZACC + 8 * ft + 4 * T
                    w = f"v[{WQ + 32 + 4*ft}:{WQ + 32 + 4*ft + 3}]"
                    A, B = (X[T], w) if zt else (w, X[T])
                    mm(f"v_mfma_f32_16x16x32_bf16 v[{acc}:{acc+3}], {A}, {B}, {'0' if ks == 0 else f'v[{acc}:{acc+3}]'}")
                if ks < 15: pend += qread(ks + 1, 8 + ft)
            for x in pend: a(x)
            if not zt: a(f"s_branch {l3}")
        a.label(l3)
        if ks + XD < 16: emit(xload(ks + XD), ("x", ks + XD))
        if ks == 11:
            a(f"s_lshr_b32 s13, s{sH}, 1")
            a(f"s_add_u32 s13, s13, {C_KV}")
            poll_issue(a, 13, 11); vm.issue("pkv")
    stamp(a, 4)
    a.settle(8)
    c0 = -2.0 * math.sqrt(2.0 / math.pi) * math.log2(math.e); c1 = c0 * 0.044715
    for k, c in enumerate((c0, c1, 1.0)):
        a(f"v_mov_b32 v{4 + 2*k}, {f32(c)}")
        a(f"v_mov_b32 v{5 + 2*k}, {f32(c)}")
    pr = lambda r: f"v[{r}:{r+1}]"
    for grp in range(3):
        Z = ZACC + 8 * grp; T0 = 64
        for k in range(0, 8, 2): a(f"v_pk_mul_f32 {pr(T0 + k)}, {pr(Z + k)}, {pr(Z + k)}")
        for k in range(0, 8, 2): a(f"v_pk_fma_f32 {pr(T0 + k)}, {pr(T0 + k)}, v[6:7], v[4:5]")
        for k in range(0, 8, 2): a(f"v_pk_mul_f32 {pr(T0 + k)}, {pr(T0 + k)}, {pr(Z + k)}")
        for k in range(8): a(f"v_exp_f32 v{T0 + k}, v{T0 + k}")
        for k in range(0, 8, 2): a(f"v_pk_add_f32 {pr(T0 + k)}, {pr(T0 + k)}, v[8:9]")
        for k in range(8): a(f"v_rcp_f32 v{T0 + k}, v{T0 + k}")
        for k in range(0, 8, 2): a(f"v_pk_mul_f32 {pr(Z + k)}, {pr(T0 + k)}, {pr(Z + k)}")
        for T in range(2):
            r = Z + 4 * T
            a(f"v_cvt_pk_bf16_f32 v{72 + 4*grp + 2*T}, v{r}, v{r+1}")
            a(f"v_cvt_pk_bf16_f32 v{73 + 4*grp + 2*T}, v{r+2}, v{r+3}")
    a("v_and_b32 v4, 15, v1")
    a("v_lshrrev_b32 v5, 5, v1")
    a("v_lshl_add_u32 v4, v5, 4, v4")
    a("v_lshlrev_b32 v4, 4, v4")
    a("v_bfe_u32 v5, v1, 4, 1")
    a("v_lshl_add_u32 v4, v5, 3, v4")
    a("s_movk_i32 s11, 512")
    a(f"s_cmp_eq_u32 s{sZT}, 0")
    a("s_cselect_b64 vcc, -1, 0")
    a("v_lshlrev_b32 v5, 3, v1")
    a("v_cndmask_b32 v4, v4, v5, vcc")
    a("s_cselect_b32 s10, 43, 86")
    a(f"s_cselect_b32 s11, {22 * 1024}, s11")
    for ft in range(3):
        a(f"s_add_u32 s12, s{sN0}, {ft}")
        a(f"s_mul_i32 s13, s{sR0}, 44")
        a("s_add_u32 s13, s13, s12")
        a("s_lshl_b32 s13, s13, 9")
        a(f"s_add_u32 s13, s13, {Z1F}")
        a("s_sub_u32 s14, s12, 43")
        a("s_lshl_b32 s14, s14, 6")
        a(f"s_lshr_b32 s15, s{sR0}, 1")
        a("s_add_u32 s14, s14, s15")
        a("s_lshl_b32 s14, s14, 10")
        a(f"s_add_u32 s14, s14, {Z2F}")
        a(f"s_cmp_eq_u32 s{sZT}, 0")
        a("s_cselect_b32 s13, s13, s14")
        a("s_cmp_lt_u32 s12, s10")
        a(f"s_cselect_b32 s13, s13, {OOB}")
        for T in range(2):
            a(f"buffer_store_dwordx2 v[{72 + 4*ft + 2*T}:{73 + 4*ft + 2*T}], v4, s[4:7], s13 offen{SC}"); vm.issue("z")
            if T == 0: a("s_add_u32 s13, s13, s11")
    a(f"v_mov_b32 v6, {f32(128 ** -0.5 * math.log2(math.e))}")
    a("v_mov_b32 v7, v6")
    for dt in range(8):
        D, e = dt >> 1, dt & 1
        for T in range(2):
            r = QACC + 8 * dt + 4 * T
            for k in (0, 2): a(f"v_pk_mul_f32 {pr(r + k)}, {pr(r + k)}, v[6:7]")
            q = QF + (2 * D + T) * 4 + 2 * e
            a(f"v_cvt_pk_bf16_f32 v{q}, v{r}, v{r+1}")
            a(f"v_cvt_pk_bf16_f32 v{q+1}, v{r+2}, v{r+3}")
    for D in range(4):
        for k in range(4):
            a(f"v_permlane16_swap_b32 v{QF + 8*D + k}, v{QF + 8*D + 4 + k}")
    stamp(a, 5)

def finish(a, nst):
    if STAMP:
        a("s_waitcnt vmcnt(0)")
        stamp(a, nst)
        a("s_waitcnt lgkmcnt(0)")
        a("s_lshl_b32 s100, s2, 3")
        a("s_add_u32 s100, s100, s3")
        a("s_lshl_b32 s100, s100, 6")
        a(f"s_add_u32 s100, s100, {TSO}")
        a("v_mov_b32 v3, 0")
        for i in range(nst + 1):
            a(f"v_mov_b32 v2, s{68 + 2*i}")
            a(f"buffer_store_dword v2, v3, s[4:7], s100 offen offset:{4*i}")
    a.label(f"{N}_end")
    a("s_endpgm")

def build():
    import mg_attn, mg_tail
    a = Asm()
    front(a); mg_attn.attention(a); mg_tail.tail(a); finish(a, 15)
    hdr = open("cdna_kernels/" + NAME + ".s.ref").read().split("\n")
    top = [l for l in hdr if l.startswith(";") and "@launch" not in l]
    out = "\n".join(top) + "\n; @launch grid=(256,1,1) block=(512,1,1) lds=163840\n"
    out += '.amdgcn_target "amdgcn-amd-amdhsa--gfx950"\n.text\n' + a.text()
    out += '.section .rodata,"a"\n.p2align 6\n' + kernel_desc(N, 256)
    return out

def main():
    import mg as M
    if "--stamp" in sys.argv:
        M.STAMP = True; sys.argv.remove("--stamp")
    for x in list(sys.argv):
        if x.startswith("-D"):
            k, _, v = x[2:].partition("="); M.OPT[k] = int(v or 1); sys.argv.remove(x)
    txt = M.build()
    if not M.OPT.get("noalign"):
        import align
        txt, npro, nnop = align.align(txt, use_nop=bool(M.OPT.get('nop')))
        print("align: promoted", npro, "nops", nnop)
    open(sys.argv[1] if len(sys.argv) > 1 else "k.s", "w").write(txt)
```

```python
from asmlib import *
import mg as G
from mg import sH, sI, sTILE, sR0, sZT, sN0, sNT, sU, sUC, sNI, sKSRC, sVSRC, sTHR, QF
aW, aWV, aLim, aUnit, aK, aV, aHook, aKL, aVL = 46, 47, 48, 49, 52, 53, 54, 56, 57
LOOK = G.OPT.get('look', 0)
O, S, NEGM, FR, P, E, T_, LS = 192, (160, 176), 144, 80, (64, 72), 56, (54, 55), 53
vK, vV, vD, vPL, vT = 14, 15, 16, 17, 18
LNI = G.OPT.get('lni', 0)
ORDER = [0, 1, 2, 3, 8, 9, 10, 11, 4, 5, 6, 7, 12, 13, 14, 15]
HOOKS = (0, 1, 2, 3, 4, 5, 10, 12)
AHOOKS = (0, 1, 2, 3, 5, 10, 12)
BHOOKS = tuple(range(12))

def attention(a):
    name = G.N; SC = G.SC
    def fr(m): return f"v[{FR + 4 * (m & 7)}:{FR + 4 * (m & 7) + 3}]"
    def rdK(m, half): return f"ds_read_b128 {fr(m)}, v{vK} offset:{half * 8192 + (m & 7) * 1024}"
    def rdV(m, half): return f"ds_read_b128 {fr(m)}, v{vV} offset:{half * 8192 + (m & 7) * 1024}"
    def qk(m, p, c=None):
        d = f"v[{S[p]}:{S[p]+15}]"
        if c is None: c = f"v[{NEGM}:{NEGM+15}]" if m == 0 else d
        return f"v_mfma_f32_32x32x16_bf16 {d}, {fr(m)}, v[{QF + 4*m}:{QF + 4*m + 3}], {c}"
    def pv(m, p):
        s, dt = (m & 7) >> 2, m & 3
        o = f"v[{O + 16*dt}:{O + 16*dt + 15}]"
        return f"v_mfma_f32_32x32x16_bf16 {o}, {fr(m)}, v[{P[p] + 4*s}:{P[p] + 4*s + 3}], {o}"
    def ex(p, e): return f"v_exp_f32 v{E + (e & 3)}, v{S[p] + ORDER[e]}"
    def ad(p, e):
        if e == 0: return None
        if e == 1: return f"v_add_f32 v{T_[p]}, v{E}, v{E + 1}"
        return f"v_add_f32 v{T_[p]}, v{T_[p]}, v{E + (e & 3)}"
    def cv(p, e):
        return f"v_cvt_pk_bf16_f32 v{P[p] + e // 2}, v{E + ((e - 1) & 3)}, v{E + (e & 3)}" if e & 1 else None
    def slot(p, e):
        out = []
        if e >= 1: out.append(ad(p, e - 1))
        if e < 16: out.append(ex(p, e))
        if e >= 1: out.append(cv(p, e - 1))
        return [x for x in out if x]
    cmp_ = lambda p: f"v_cmp_nge_f32 vcc, s{sTHR}, v{T_[p]}"
    lsadd = lambda p: f"v_add_f32 v{LS}, v{LS}, v{T_[p]}"
    sites = []; hooks = []; astamps = []; AST = (1, 3, 7, 11, 15, 17)
    def check(p):
        l = a.newlabel("rs"); back = a.newlabel("rb")
        a(f"s_cbranch_vccnz {l}")
        a.label(back)
        sites.append((l, back, p))
    addr_salu = [f"s_add_u32 s{aV}, s{sNI}, 1", f"s_and_b32 s{aV}, s{aV}, 3", f"s_lshl_b32 s{aV}, s{aV}, 14",
                 f"s_add_u32 s{aK}, s{aV}, 0x4000", f"s_and_b32 s{aK}, s{aK}, 0xc000", f"s_add_u32 s{aV}, s{aV}, 0x10000"]
    setV = f"v_add_u32 v{vV}, s{aV}, v2"; setK = f"v_add_u32 v{vK}, s{aK}, v2"
    def dma_groups():
        g = []
        for src, d, base, lim in ((sKSRC, 3, aW, aKL), (sVSRC, 2, aWV, aVL)):
            pre = [f"s_add_u32 s10, s{sNI}, {d}", "s_lshl_b32 s11, s10, 14", "s_and_b32 s10, s11, 0xc000",
                   f"s_add_u32 m0, s10, s{base}", f"s_add_u32 s11, s11, s{src}", f"s_min_u32 s11, s11, s{lim}"]
            for j in range(4):
                g.append((pre if j == 0 else []) + ([] if G.OPT.get("nodma") else [f"buffer_load_dwordx4 v2, s[4:7], s11 offen offset:{j * 1024}{SC} lds"]))
        return g
    def hook():
        l = a.newlabel("hk"); back = a.newlabel("hb")
        a(f"s_bitcmp1_b32 s{aHook}, s{sNI}")
        a(f"s_cbranch_scc1 {l}")
        a.label(back)
        hooks.append((l, back))
    def bar(isA):
        if isA: a("s_waitcnt vmcnt(8)")
        a("s_barrier")
        a(f"s_add_u32 s{sNI}, s{sNI}, 1")
        if G.OPT.get("astamp") and G.STAMP and not isA:
            l = a.newlabel("as"); back = a.newlabel("ab")
            a(f"s_bitcmp1_b32 s55, s{sNI}")
            a(f"s_cbranch_scc1 {l}")
            a.label(back)
            astamps.append((l, back))
    def begin_interval(isA):
        for s in addr_salu: a(s)
        bar(isA)
        a(setV); a(setK)
        if isA:
            hook()
            for g in dma_groups():
                for s in g: a(s)
    def mask(p):
        prs = ("s[8:9]", "s[10:11]", "s[12:13]", "s[14:15]")
        for r in range(16):
            a(f"v_cmp_le_i32 {prs[r & 3]}, {8 * (r >> 2) + (r & 3)}, v{vD}")
            if r & 3 == 3:
                for k in range(4): a(f"v_cndmask_b32 v{S[p] + r - 3 + k}, v3, v{S[p] + r - 3 + k}, {prs[k]}")
    def rowmax(p, dst, tmp):
        a(f"v_max3_f32 v{dst}, v{S[p]}, v{S[p]+1}, v{S[p]+2}")
        for k in range(3, 15, 2): a(f"v_max3_f32 v{dst}, v{dst}, v{S[p]+k}, v{S[p]+k+1}")
        a(f"v_max_f32 v{dst}, v{dst}, v{S[p]+15}")
        a(f"v_mov_b32 v{tmp}, v{dst}")
        a(f"v_permlane32_swap_b32 v{dst}, v{tmp}")
        a(f"v_max_f32 v{dst}, v{dst}, v{tmp}")
    def early(p, n=6):
        for e in range(n):
            for s in slot(p, e): a(s)
    def step(p, isA, do_early=True, do_pv=True, first=0, skip_mfma0=False, fused=True, ls=True, mid=None, tailcmp=None, hk=True):
        dg = dma_groups() if (isA and fused and p == 0) else []
        for m in range(first, 16):
            mf = None if (m >= 8 and not do_pv) else (qk(m, p ^ 1) if m < 8 else pv(m, p ^ 1))
            if mf and not (m == first and skip_mfma0):
                if m % 2 == 0: a("s_waitcnt lgkmcnt(6)")
                a(mf)
            if m == 15: check(p)
            if mid and m == mid[0]:
                for s in mid[1]: a(s)
            if m == 0 and p == 0 and fused: bar(isA)
            if mf:
                if do_pv: rd = rdV(m, p) if m < 8 else (rdK(m, p) if do_early else None)
                else: rd = rdK(m, p) if do_early else None
                if rd: a(rd)
                elif do_pv and m % 2 == 1 and m < 15: a(f"s_waitcnt lgkmcnt({max(0, 13 - m)})")
                elif not do_pv and m % 2 == 1 and m < 7: a(f"s_waitcnt lgkmcnt({max(0, 5 - m)})")
            if fused and p == 0 and m == 0 and hk: hook()
            if dg and m % 2 == 1:
                for s in dg[m // 2]: a(s)
            if fused and p == 1 and m in (3, 5, 7):
                for s in addr_salu[m - 3:m - 1]: a(s)
            if mid and m == mid[0] - 1: a(mid[2])
            if tailcmp and m == 15: a(tailcmp)
            if m <= 10:
                for s in slot(p, m + 6): a(s)
            if m == 11: a(cmp_(p))
            if m >= 10 and do_early:
                for s in slot(p ^ 1, m - 10): a(s)
            if m == 1 and ls: a(lsadd(p ^ 1))
            if fused and p == 0 and m == 3: a(setK)
            if fused and p == 1 and m == 9: a(setV)
    def last_step(p, do_pv=True, ls=True):
        if do_pv:
            for m in range(8): a(rdV(m, p))
        if ls: a(lsadd(p ^ 1))
        mask(p)
        for e in range(17):
            if do_pv and 8 <= e < 16:
                a(f"s_waitcnt lgkmcnt({15 - e})")
                a(pv(e, p ^ 1))
            for s in slot(p, e): a(s)
        a(cmp_(p))
        check(p)
        a(lsadd(p))
    def final_pv(p):
        for m in range(8): a(rdV(m, p ^ 1))
        for m in range(8):
            a(f"s_waitcnt lgkmcnt({7 - m})")
            a(pv(m, p))
    def epilogue():
        a(f"v_mov_b32 v4, v{LS}")
        a(f"v_permlane32_swap_b32 v{LS}, v4")
        a(f"v_add_f32 v{LS}, v{LS}, v4")
        a(f"v_rcp_f32 v{LS}, v{LS}")
        a(f"v_mov_b32 v{LS - 1}, v{LS}")
        a("v_bfe_u32 v4, v1, 4, 1")
        a(f"v_mul_u32_u24 v4, {G.AF_KS * 1024}, v4")
        a("v_and_b32 v5, 15, v1")
        a("v_lshrrev_b32 v6, 5, v1")
        a("v_lshl_add_u32 v5, v6, 4, v5")
        a("v_lshl_add_u32 v4, v5, 4, v4")
        a(f"s_mul_i32 s8, s{sR0}, {G.AF_KS}")
        a(f"s_lshl_b32 s9, s{sH}, 2")
        a("s_add_u32 s8, s8, s9")
        a("s_lshl_b32 s8, s8, 10")
        a(f"s_add_u32 s8, s8, {G.AF}")
        for dt in range(4):
            for k in range(0, 16, 2): a(f"v_pk_mul_f32 v[{O + 16*dt + k}:{O + 16*dt + k + 1}], v[{O + 16*dt + k}:{O + 16*dt + k + 1}], v[{LS - 1}:{LS}]")
            for pc in range(2):
                t = FR + 4 * ((2 * dt + pc) & 7)
                for i, g in enumerate((pc, pc + 2)):
                    r = O + 16 * dt + 4 * g
                    a(f"v_cvt_pk_bf16_f32 v{t + 2*i}, v{r}, v{r+1}")
                    a(f"v_cvt_pk_bf16_f32 v{t + 2*i + 1}, v{r+2}, v{r+3}")
                a(f"buffer_store_dwordx4 v[{t}:{t+3}], v4, s[4:7], s8 offen offset:{dt * 1024 + pc * 512}{SC}")

    a("s_load_dwordx2 s[16:17], s[0:1], 64")
    a("s_load_dwordx2 s[20:21], s[0:1], 40")
    a("s_load_dwordx2 s[24:25], s[0:1], 80")
    a(f"s_mov_b32 s{sTHR}, {G.f32(2.0 ** 30)}")
    a(f"s_mov_b32 s{aHook}, {sum(1 << h for h in AHOOKS)}")
    a("s_cmp_ge_u32 s3, 4")
    a("s_lshl_b32 s8, 0x220, s3")
    a("s_and_b32 s8, s8, 0xfe0")
    a("s_or_b32 s8, s8, 31")
    a("s_cmp_ge_u32 s3, 4")
    a(f"s_cselect_b32 s{aHook}, s{aHook}, s8")
    a("s_lshr_b32 s8, s2, 3")
    a("s_lshl_b32 s8, s8, 2")
    a("s_and_b32 s9, s2, 7")
    a("s_lshl_b32 s9, s9, 7")
    a("s_add_u32 s8, s8, s9")
    a("s_add_u32 s8, s8, s3")
    a("s_lshl_b32 s50, s8, 13")
    a("s_and_b32 s8, s3, 1")
    a("s_lshl_b32 s8, s8, 8")
    a("s_add_u32 s8, s8, s2")
    a("s_lshl_b32 s51, s8, 13")
    a(f"s_mov_b32 s55, {sum(1 << h for h in AST)}")
    a("v_mov_b32 v3, 0xff800000")
    a("v_and_b32 v4, 31, v1")
    a("v_lshrrev_b32 v5, 5, v1")
    a("v_lshlrev_b32 v5, 2, v5")
    a(f"v_sub_u32 v{vD}, v4, v5")
    a("v_mov_b32 v4, 0"); a("v_mov_b32 v5, 0")
    for r in range(O, O + 64, 2): a(f"v_pk_mov_b32 v[{r}:{r+1}], v[4:5], v[4:5]")
    a(f"v_mov_b32 v{LS}, 0")
    a(f"s_and_b32 s{aW}, s3, 3")
    a(f"s_lshl_b32 s{aW}, s{aW}, 12")
    a(f"s_add_u32 s{aWV}, s{aW}, 0x10000")
    a(f"s_add_u32 s{aKL}, s{sKSRC}, {524288 - 4096}")
    a(f"s_add_u32 s{aVL}, s{sVSRC}, {8192 + 524288 - 4096}")
    a("v_lshlrev_b32 v19, 7, v1")
    a(f"s_add_u32 s{sKSRC}, s{sKSRC}, s{aW}")
    a(f"s_add_u32 s{sVSRC}, s{sVSRC}, s{aW}")
    a(f"s_mov_b32 s{sNI}, -1")
    a(f"v_mov_b32 v{vK}, v2")
    a("s_waitcnt lgkmcnt(0)")
    G.srd(a, 16, 16, 17, 2048 * 4096)
    G.srd(a, 20, 20, 21, 4096 * 1024)
    G.srd(a, 24, 24, 25, 688 * 1024)
    a("s_cmp_lt_u32 s3, 2")
    a("s_cselect_b64 s[28:29], s[20:21], s[24:25]")
    a("s_cselect_b32 s30, s22, s26")
    a("s_mov_b32 s31, 0x00020000")
    for m in range(8): a(rdK(m, 0))
    for m in range(8):
        a("s_waitcnt lgkmcnt(7)")
        a(qk(m, 0, "0" if m == 0 else None))
        a(rdK(m, 1))
    lm = a.newlabel("nomask")
    a(f"s_cmp_eq_u32 s{sU}, 0")
    a(f"s_cbranch_scc0 {lm}")
    a.settle(12)
    mask(0)
    a.label(lm)
    a.settle(12)
    rowmax(0, 4, 5)
    for r in range(16): a(f"v_sub_f32 v{NEGM + r}, 0, v4")
    for r in range(16): a(f"v_sub_f32 v{S[0] + r}, v{S[0] + r}, v4")
    early(0)
    a("s_cmp_ge_u32 s3, 4")
    a(f"s_cbranch_scc1 {name}_at_A")
    for isA in (0, 1):
        k = "AB"[1 - isA]
        if isA: a.label(f"{name}_at_A")
        if not isA:
            for s in addr_salu: a(s)
            a(f"s_add_u32 s{sNI}, s{sNI}, 1"); a(setV); a(setK); hook()
        else:
            for s in addr_salu: a(s)
            a(f"s_add_u32 s{sNI}, s{sNI}, 1"); a(setV); a(setK); hook()
            for g in dma_groups():
                for s in g: a(s)
            a(f"s_cmp_lt_u32 s{sU}, 2")
            a(f"s_cbranch_scc1 {name}_at_small")
        a(f"s_sub_u32 s{sUC}, s{sU}, 2")
        step(0, isA, do_pv=False, fused=False, ls=False, tailcmp=f"s_cmp_eq_u32 s{sUC}, 0")
        a("s_waitcnt lgkmcnt(6)")
        a(qk(0, 0))
        a(f"s_cbranch_scc1 {name}_at_todd{k}")
        if not isA:
            a.label(f"{name}_at_loopB1")
            step(1, isA, skip_mfma0=True)
            step(0, isA, mid=(5, [f"s_sub_u32 s{sUC}, s{sUC}, 2"], "s_nop 0"), tailcmp=f"s_cmp_lt_u32 s{sNI}, 11")
            a("s_waitcnt lgkmcnt(6)")
            a(qk(0, 0))
            a(f"s_cbranch_scc1 {name}_at_loopB1")
        a.label(f"{name}_at_loop{k}")
        step(1, isA, skip_mfma0=True)
        step(0, isA, mid=(5, [f"s_cbranch_scc1 {name}_at_teven{k}", f"s_sub_u32 s{sUC}, s{sUC}, 2"], f"s_cmp_eq_u32 s{sUC}, 1"),
             tailcmp=f"s_cmp_lg_u32 s{sUC}, 0", hk=isA)
        a("s_waitcnt lgkmcnt(6)")
        a(qk(0, 0))
        a(f"s_cbranch_scc1 {name}_at_loop{k}")
        a.label(f"{name}_at_todd{k}")
        step(1, isA, do_early=False, skip_mfma0=True, fused=False)
        begin_interval(isA)
        last_step(0)
        final_pv(0)
        a(f"s_branch {name}_at_epi{k}")
        a.label(f"{name}_at_teven{k}")
        step(0, isA, do_early=False, first=5, skip_mfma0=True)
        if isA: a.label(f"{name}_at_u1b")
        last_step(1)
        begin_interval(isA)
        final_pv(1)
        a.label(f"{name}_at_epi{k}")
        a.settle(12)
        if G.OPT.get("astamp"): G.stamp(a, 13, True)
        epilogue()
        if not isA:
            a.label(f"{name}_at_restB")
            a(f"s_cmp_ge_u32 s{sNI}, s{sNT}")
            a(f"s_cbranch_scc1 {name}_at_done")
            a("s_barrier")
            a(f"s_add_u32 s{sNI}, s{sNI}, 1")
            a(f"s_branch {name}_at_restB")
        else:
            def ld_interval(nv):
                if not (G.OPT.get("novm") and nv == 0): a(f"s_waitcnt vmcnt({8 + nv})")
                a("s_barrier")
                a(f"s_add_u32 s{sNI}, s{sNI}, 1")
                hook()
                for g in dma_groups():
                    for s in g: a(s)
            a(f"s_sub_u32 s{aLim}, s{sNT}, 2")
            a.label(f"{name}_at_ld")
            a(f"s_lshr_b32 s8, s{sI}, 1")
            a(f"s_cmp_eq_u32 s8, {LNI}")
            a(f"s_cselect_b32 s8, {5 if LNI == 0 else 8}, -2")
            a(f"s_cmp_eq_u32 s{sNI}, s8")
            a(f"s_cbranch_scc1 {name}_at_lnz")
            if G.OPT.get("pre"):
                a(f"s_add_u32 s8, s{sNI}, 8")
                a(f"s_cmp_eq_u32 s8, s{sNT}")
                a(f"s_cbranch_scc1 {name}_at_pre")
            a(f"s_cmp_ge_u32 s{sNI}, s{aLim}")
            a(f"s_cbranch_scc1 {name}_at_ld2")
            ld_interval(0)
            a(f"s_branch {name}_at_ld")
            a.label(f"{name}_at_ld2")
            a("s_waitcnt vmcnt(8)")
            a("s_barrier")
            a("s_waitcnt vmcnt(0)")
            a("s_barrier")
            a(f"s_branch {name}_at_done")
            a.label(f"{name}_at_pre")
            a(f"s_lshr_b32 s{aUnit}, s2, 3")
            a(f"s_lshl_b32 s{aUnit}, s{aUnit}, 2")
            a("s_and_b32 s8, s3, 3")
            a(f"s_add_u32 s{aUnit}, s{aUnit}, s8")
            a(f"s_lshl_b32 s{aUnit}, s{aUnit}, 13")
            a("s_and_b32 s50, s2, 7")
            a("s_lshl_b32 s50, s50, 20")
            a(f"s_add_u32 s50, s50, s{aUnit}")
            for t in range(6):
                nv = 1
                if t == 0:
                    a(f"s_mov_b32 s8, {G.C_Z2N}")
                    G.poll_issue(a, 8, 11, 8); nv = 2
                    a(f"buffer_load_dword v{vT}, v19, s[16:19], s50 offen")
                elif t == 1:
                    a(f"s_add_u32 s8, s50, {96 * 8192}")
                    a(f"s_cmp_lt_u32 s{aUnit}, {32 * 8192}")
                    a(f"s_cselect_b32 s8, s8, {G.OOB}")
                    a(f"buffer_load_dword v{vT}, v19, s[16:19], s8 offen")
                else:
                    if t == 2:
                        a(f"s_mov_b32 s8, {G.C_Z2N}")
                        G.poll_check(a, 8, 11, 32, 8)
                    a(f"s_add_u32 s8, s{aUnit}, {G.Z2N + (t - 2) * 96 * 8192}")
                    if t == 5:
                        a(f"s_cmp_lt_u32 s{aUnit}, {(344 - 288) * 8192}")
                        a(f"s_cselect_b32 s8, s8, {G.OOB}")
                    a(f"buffer_load_dword v{vT}, v19, s[4:7], s8 offen{SC}")
                ld_interval(nv)
            a(f"s_branch {name}_at_ld2")
            from mg_tail import lnz_parts
            a.label(f"{name}_at_lnz")
            a(f"s_and_b32 s{aUnit}, s{sI}, 1")
            a(f"s_lshl_b32 s{aUnit}, s{aUnit}, 5")
            a(f"s_add_u32 s{aUnit}, s{aUnit}, s{sH}")
            a(f"s_lshl_b32 s{aUnit}, s{aUnit}, 2")
            a("s_and_b32 s8, s3, 3")
            a(f"s_add_u32 s{aUnit}, s{aUnit}, s8")
            def zidx():
                a(f"s_lshr_b32 s8, s{aUnit}, 4")
                a("s_sub_u32 s9, 15, s8")
                a("s_min_u32 s8, s8, s9")
                a(f"s_add_u32 s8, s8, {G.C_Z}")
            load, sums, stats, store = lnz_parts(a, aUnit, (50, 51))
            def p0(): zidx(); G.poll_issue(a, 8, 11)
            def p2(): zidx(); G.poll_check(a, 8, 11, 32); load()
            def pz():
                a(f"s_and_b32 s8, s{aUnit}, 7")
                a(f"s_add_u32 s8, s8, {G.C_Z2N}")
                G.signal(a, 8, None)
            nop = lambda: None
            st = 3 if LNI == 0 else 4
            parts = [(p0, 1), (nop, 0), (p2, 11), (nop, 0)]
            parts += [((lambda lo=lo: sums(lo, min(11, lo + st))), 0) for lo in range(0, 11, st)]
            parts += [((lambda k=k: stats(k)), 0) for k in range(3)]
            parts += [((lambda lo=lo: store(lo, min(11, lo + st))), min(11, lo + st) - lo) for lo in range(0, 11, st)]
            parts += [(nop, 0), (pz, 1)]
            for part, nv in parts:
                part()
                ld_interval(nv)
            a(f"s_branch {name}_at_ld")
            a.label(f"{name}_at_small")
            a(f"s_cmp_eq_u32 s{sU}, 0")
            a(f"s_cbranch_scc1 {name}_at_u0")
            step(0, isA, do_early=False, do_pv=False, fused=False, ls=False)
            a(f"s_branch {name}_at_u1b")
            a.label(f"{name}_at_u0")
            a("s_waitcnt lgkmcnt(0)")
            last_step(0, do_pv=False, ls=False)
            final_pv(0)
            a(f"s_branch {name}_at_epiA")
    for l, back in astamps:
        a.label(l)
        for k, n in enumerate(AST):
            nx = a.newlabel("an")
            a(f"s_cmp_lg_u32 s{sNI}, {n}")
            a(f"s_cbranch_scc1 {nx}")
            G.stamp(a, 7 + k, True)
            a.label(nx)
        a(f"s_branch {back}")
    for l, back, p in sites:
        a.label(l)
        a(f"s_call_b64 s[62:63], {name}_rare{p}")
        a(f"s_branch {back}")
    for l, back in hooks:
        a.label(l)
        a(f"s_call_b64 s[62:63], {name}_hook")
        a(f"s_branch {back}")
    for p in range(2):
        a.label(f"{name}_rare{p}")
        a.settle(16)
        rowmax(p, 4, 5)
        a("v_max_f32 v4, 0, v4")
        a("v_sub_f32 v5, 0, v4")
        a("v_exp_f32 v5, v5")
        for r in range(16): a(f"v_sub_f32 v{NEGM + r}, v{NEGM + r}, v4")
        for r in range(16): a(f"v_sub_f32 v{S[p] + r}, v{S[p] + r}, v4")
        for r in range(16): a(f"v_sub_f32 v{S[p^1] + r}, v{S[p^1] + r}, v4")
        for r in range(64): a(f"v_mul_f32 v{O + r}, v{O + r}, v5")
        a(f"v_mul_f32 v{LS}, v{LS}, v5")
        for e in range(17):
            for s in slot(p, e): a(s)
        early(p ^ 1, 5)
        a.settle(4)
        a("s_setpc_b64 s[62:63]")
    a.label(f"{name}_hook")
    a("s_cmp_ge_u32 s3, 4")
    a(f"s_cbranch_scc1 {name}_hook2")
    a(f"s_cmp_lt_u32 s{sNI}, 5")
    a(f"s_cbranch_scc1 {name}_hook2")
    a(f"s_cmp_lt_u32 s{sNI}, 9")
    a(f"s_cbranch_scc1 {name}_hook1")
    a(f"buffer_load_dword v{vT}, v19, s[28:31], s51 offen")
    a("s_setpc_b64 s[62:63]")
    a.label(f"{name}_hook1")
    a(f"buffer_load_dword v{vT}, v19, s[16:19], s50 offen")
    a("s_setpc_b64 s[62:63]")
    a.label(f"{name}_hook2")
    for h in HOOKS:
        nx = a.newlabel("hn")
        a(f"s_cmp_lg_u32 s{sNI}, {h}")
        a(f"s_cbranch_scc1 {nx}")
        if h == 1:
            lw = a.newlabel("nw")
            a("s_cmp_ge_u32 s3, 4")
            a(f"s_cbranch_scc1 {lw}")
            a(f"s_waitcnt vmcnt({0 if G.OPT.get('st16') else 2})")
            a.label(lw)
        if h == 2:
            a(f"s_add_u32 s8, s{sI}, {G.C_Z}")
            G.signal(a, 8, 4)
        if h < 4:
            for j in (() if G.OPT.get('st16') else (8 + 2 * h, 9 + 2 * h)):
                for x in G.kvstore(j): a(x)
        if h == 4:
            a("s_waitcnt vmcnt(0)")
        if h == 5:
            a(f"s_add_u32 s8, s{G.kCKV}, 32")
            G.signal(a, 8, 4)
        if h == 10:
            a(f"s_lshr_b32 s8, s{sH}, 1")
            a(f"s_add_u32 s8, s8, {G.C_KV + 32}")
            G.poll_issue(a, 8, vPL)
        if h == 12:
            a(f"s_lshr_b32 s8, s{sH}, 1")
            a(f"s_add_u32 s8, s8, {G.C_KV + 32}")
            G.poll_check(a, 8, vPL, 16)
        a("s_setpc_b64 s[62:63]")
        a.label(nx)
    a.label(f"{name}_hookret")
    a("s_setpc_b64 s[62:63]")
    a.label(f"{name}_at_done")
    if G.OPT.get("astamp"): G.stamp(a, 14, True)
```

```python
from asmlib import *
import mg as G

def lnz_parts(a, sUnit, st):
    SC = G.SC
    PZ, SUM, SQ, TA, TB = 64, 108, 116, 124, 125
    s0, s1 = st[0], st[1]
    def load():
        a("v_lshrrev_b32 v4, 4, v1")
        a("v_lshlrev_b32 v4, 16, v4")
        a("v_and_b32 v5, 15, v1")
        a("v_lshl_add_u32 v6, v5, 4, v4")
        a("v_mov_b32 v4, 0x20000000")
        a("v_cmp_gt_u32 vcc, 48, v1")
        a("v_cndmask_b32 v7, v4, v6, vcc")
        a(f"s_lshl_b32 s{s0}, s{sUnit}, 8")
        for m in range(11):
            a(f"s_add_u32 s{s1}, s{s0}, {G.Z2F + m * 262144}")
            a(f"buffer_load_dwordx4 v[{PZ + 4*m}:{PZ + 4*m + 3}], v{7 if m == 10 else 6}, s[4:7], s{s1} offen{SC}")
    def sums(lo=0, hi=11):
        for m in range(lo, hi):
            for d in range(4):
                r = PZ + 4 * m + d
                a(f"v_lshlrev_b32 v{TA}, 16, v{r}")
                a(f"v_and_b32 v{TB}, 0xffff0000, v{r}")
                if m == 0:
                    a(f"v_mov_b32 v{SUM + 2*d}, v{TA}"); a(f"v_mov_b32 v{SUM + 2*d + 1}, v{TB}")
                    a(f"v_mul_f32 v{SQ + 2*d}, v{TA}, v{TA}"); a(f"v_mul_f32 v{SQ + 2*d + 1}, v{TB}, v{TB}")
                else:
                    a(f"v_add_f32 v{SUM + 2*d}, v{SUM + 2*d}, v{TA}"); a(f"v_add_f32 v{SUM + 2*d + 1}, v{SUM + 2*d + 1}, v{TB}")
                    a(f"v_fmac_f32 v{SQ + 2*d}, v{TA}, v{TA}"); a(f"v_fmac_f32 v{SQ + 2*d + 1}, v{TB}, v{TB}")
    def stats(part):
        if part == 0:
            for mod in ("quad_perm:[1,0,3,2]", "quad_perm:[2,3,0,1]", "row_half_mirror", "row_mirror"):
                for j in range(16):
                    a(f"v_add_f32 v{SUM + j}, v{SUM + j}, v{SUM + j} {mod} row_mask:0xf bank_mask:0xf")
        if part == 1:
            for op in ("v_permlane16_swap_b32", "v_permlane32_swap_b32"):
                for j0 in range(0, 16, 4):
                    for j in range(4): a(f"v_mov_b32 v{126 + j}, v{SUM + j0 + j}")
                    for j in range(4): a(f"{op} v{SUM + j0 + j}, v{126 + j}")
                    for j in range(4): a(f"v_add_f32 v{SUM + j0 + j}, v{SUM + j0 + j}, v{126 + j}")
        if part == 2:
            a(f"s_mov_b32 s{s1}, {G.f32(1.0 / 688)}")
            for j in range(8):
                a(f"v_mul_f32 v{SUM + j}, s{s1}, v{SUM + j}")
                a(f"v_mul_f32 v{SQ + j}, s{s1}, v{SQ + j}")
                a(f"v_fma_f32 v{SQ + j}, -v{SUM + j}, v{SUM + j}, v{SQ + j}")
                a(f"v_max_f32 v{SQ + j}, 0, v{SQ + j}")
                a(f"v_add_f32 v{SQ + j}, {G.f32(1e-5)}, v{SQ + j}")
                a(f"v_rsq_f32 v{SQ + j}, v{SQ + j}")
            for j in range(8):
                a(f"v_mul_f32 v{SUM + j}, v{SUM + j}, v{SQ + j}")
    def store(lo=0, hi=11):
        for m in range(lo, hi):
            for d in range(4):
                r = PZ + 4 * m + d
                a(f"v_lshlrev_b32 v{TA}, 16, v{r}")
                a(f"v_and_b32 v{TB}, 0xffff0000, v{r}")
                a(f"v_fma_f32 v{TA}, v{TA}, v{SQ + 2*d}, -v{SUM + 2*d}")
                a(f"v_fma_f32 v{TB}, v{TB}, v{SQ + 2*d + 1}, -v{SUM + 2*d + 1}")
                a(f"v_cvt_pk_bf16_f32 v{r}, v{TA}, v{TB}")
            a(f"s_add_u32 s{s1}, s{s0}, {G.Z2N + m * 262144}")
            a(f"buffer_store_dwordx4 v[{PZ + 4*m}:{PZ + 4*m + 3}], v{7 if m == 10 else 6}, s[4:7], s{s1} offen{SC}")
    return load, sums, stats, store

def tail(a):
    name = G.N; SC = G.SC
    sTG, oX, oC, oI, oCNT, oRT, oOUT = 33, 34, 35, 36, 37, 38, 39
    def emit(vm, g, tag):
        for x in g:
            a(x)
            if x.startswith("buffer_"): vm.issue(tag)
    a("s_load_dwordx2 s[10:11], s[0:1], 72")
    a("s_load_dwordx2 s[12:13], s[0:1], 88")
    a("s_load_dwordx2 s[64:65], s[0:1], 0")
    a(f"s_mov_b32 s8, {G.C_Z2N}")
    G.poll_issue(a, 8, 26, 8)
    a(f"s_and_b32 s{oX}, s2, 7")
    a(f"s_bfe_u32 s{oC}, s2, 0x20003")
    a(f"s_lshr_b32 s{oI}, s2, 5")
    a(f"s_lshl_b32 s{sTG}, s{oX}, 2")
    a(f"s_add_u32 s{sTG}, s{sTG}, s{oC}")
    a(f"s_lshl_b32 s8, s{oX}, 2")
    a(f"s_lshr_b32 s9, s{oI}, 1")
    a("s_add_u32 s8, s8, s9")
    a(f"s_add_u32 s{oCNT}, s8, {G.C_CTX}")
    a("v_lshrrev_b32 v6, 4, v1")
    a("v_lshrrev_b32 v4, 3, v1")
    a("v_and_b32 v5, 7, v1")
    a("v_lshrrev_b32 v7, 1, v5")
    a("v_and_b32 v5, 1, v5")
    a("v_xor_b32 v7, v7, v6")
    a("v_lshlrev_b32 v7, 5, v7")
    a("v_lshl_add_u32 v7, v5, 4, v7")
    a("v_lshl_add_u32 v27, v4, 10, v7")
    a("s_lshl_b32 s30, s3, 13")
    a(f"s_lshl_b32 s8, s{oI}, 7")
    a("s_add_u32 s100, s30, s8")
    a("s_lshl_b32 s101, s3, 10")
    def odma(n, parts):
        lds = parts[min(2, n >> 2)] + (n - 4 * min(2, n >> 2)) * 8192
        return [f"s_add_u32 m0, s101, {lds}", f"s_add_u32 s12, s100, {n * 65536}", "buffer_load_dwordx4 v27, s[24:27], s12 offen lds"]
    OPP, SPP = (131072, 0, 32768), (131072, 98304, 0)
    a(f"s_and_b32 s32, s{oI}, 3")
    a(f"s_bitcmp1_b32 s{oI}, 2")
    a(f"s_cbranch_scc1 {name}_t_s")
    vm = G.VM()
    OACC, OA, WR = 128, 64, 32
    a("v_and_b32 v5, 15, v1")
    a("v_lshrrev_b32 v4, 1, v5")
    a("v_and_b32 v5, 1, v5")
    a("v_xor_b32 v4, v4, v6")
    a("v_lshlrev_b32 v4, 5, v4")
    a("v_lshl_add_u32 v4, v5, 4, v4")
    a("v_lshl_add_u32 v24, v6, 10, v4")
    a("v_xor_b32 v25, 128, v24")
    a(f"s_lshl_b32 s40, s{oX}, 19")
    a("s_lshl_b32 s8, s3, 14")
    a("s_add_u32 s40, s40, s8")
    a(f"s_lshl_b32 s8, s{oC}, 8")
    a("s_add_u32 s40, s40, s8")
    a("s_lshl_b32 s41, s3, 12")
    a("s_bfe_u32 s8, s3, 0x10001")
    a("s_lshl_b32 s9, s32, 1")
    a("s_add_u32 s8, s8, s9")
    a(f"s_lshl_b32 s43, s{oX}, 2")
    a("s_add_u32 s43, s43, s32")
    a(f"s_add_u32 s43, s43, {G.C_CTX}")
    a("s_sub_u32 s9, 15, s8")
    a("s_cmp_ge_u32 s3, 4")
    a("s_cselect_b32 s8, s9, s8")
    a("s_lshl_b32 s8, s8, 3")
    a("s_and_b32 s9, s3, 1")
    a("s_lshl_b32 s9, s9, 2")
    a("s_add_u32 s44, s8, s9")
    a(f"s_mul_i32 s42, s44, {G.AF_KS}")
    a(f"s_lshl_b32 s8, s{oX}, 4")
    a("s_add_u32 s42, s42, s8")
    a("s_lshl_b32 s42, s42, 10")
    a(f"s_add_u32 s42, s42, {G.AF}")
    a("v_and_b32 v4, 15, v1")
    a("v_lshrrev_b32 v4, 2, v4")
    a("v_lshl_add_u32 v7, v6, 2, v4")
    a("v_and_b32 v5, 7, v7")
    a("v_and_b32 v4, 3, v1")
    a("v_lshlrev_b32 v4, 3, v4")
    a("v_lshl_add_u32 v4, v7, 8, v4")
    for mt in range(8):
        a(f"v_xor_b32 v3, {mt}, v5")
        a(f"v_lshl_add_u32 v{16 + mt}, v3, 5, v4")
    def wdma(g):
        return [[f"s_add_u32 m0, s41, {g * 32768 + m * 1024}", f"s_add_u32 s12, s40, {(g * 128 + 4 * m) * 1024}",
                 f"buffer_load_dwordx4 v{24 + (m & 1)}, s[20:23], s12 offen lds"] for m in range(4)]
    def cload(ks):
        out = []
        for T in range(4):
            r = OA + 16 * (ks & 3) + 4 * T
            out.append([f"s_add_u32 s12, s42, {T * G.AF_KS * 1024 + (ks >> 2) * 4096}",
                        f"buffer_load_dwordx4 v[{r}:{r+3}], v2, s[4:7], s12 offen offset:{(ks & 3) * 1024}{SC}"])
        return out
    def srds():
        G.srd(a, 28, 10, 11, 4096)
        G.srd(a, 60, 12, 13, 2048 * 1024)
        G.srd(a, 64, 64, 65, 2048 * 1024)
    a("s_waitcnt vmcnt(0) lgkmcnt(0)")
    srds()
    a("s_barrier")
    G.signal(a, oCNT, 0)
    G.stamp(a, 6)
    G.poll_issue(a, 43, 26); vm.issue("pc")
    for x in wdma(0): emit(vm, x, ("w", 0))
    a(f"s_waitcnt vmcnt({vm.after('pc')})")
    G.poll_check(a, 43, 26, 8)
    for ks in range(2):
        for g in cload(ks): emit(vm, g, ("c", ks))
    a(f"s_waitcnt vmcnt({vm.after(('w', 0))})")
    a("s_barrier")
    def wread(ks, mt):
        b = WR + 4 * mt; o = (ks & 7) * 8192
        return [f"ds_read_b64_tr_b16 v[{b}:{b+1}], v{16 + mt} offset:{o}", f"ds_read_b64_tr_b16 v[{b+2}:{b+3}], v{16 + mt} offset:{o + 4096}"]
    for mt in range(8):
        for x in wread(0, mt): a(x)
    G.stamp(a, 7)
    for ks in range(16):
        a(f"s_waitcnt vmcnt({vm.after(('c', ks))})")
        if ks % 4 == 3 and ks < 15:
            a(f"s_waitcnt vmcnt({vm.after(('w', ks // 4 + 1))})")
            a("s_barrier")
        if ks == 7:
            for mt in range(8): a(f"v_add_u32 v{16 + mt}, 0x10000, v{16 + mt}")
        extra = []
        if ks == 0: extra = [(g, ("w", 1)) for g in wdma(1)] + [(g, ("c", 2)) for g in cload(2)]
        if ks == 1: extra = [(g, ("c", 3)) for g in cload(3)] + [(g, ("w", 2)) for g in wdma(2)]
        if ks == 2: extra = [(g, ("w", 3)) for g in wdma(3)]
        if ks == 5: extra = [(odma(n, OPP), "wo") for n in range(4)]
        if ks == 11: extra = [(odma(n, OPP), "wo") for n in range(4, 11)]
        for mt in range(8):
            if mt % 2 == 0: a(f"s_waitcnt lgkmcnt({12 if ks < 15 else 12 - 2 * mt})")
            for T in range(4):
                acc = OACC + 16 * mt + 4 * T; r = OA + 16 * (ks & 3) + 4 * T
                a(f"v_mfma_f32_16x16x32_bf16 v[{acc}:{acc+3}], v[{WR + 4*mt}:{WR + 4*mt + 3}], v[{r}:{r+3}], {'0' if ks == 0 else f'v[{acc}:{acc+3}]'}")
            if ks < 15:
                for x in wread(ks + 1, mt): a(x)
            if extra:
                g, tag = extra.pop(0); emit(vm, g, tag)
        if ks + 4 < 16:
            for g in cload(ks + 4): emit(vm, g, ("c", ks + 4))
    G.stamp(a, 8)
    a(f"s_lshl_b32 s8, s{oX}, 7")
    a("s_add_u32 s8, s8, s44")
    a("s_lshl_b32 s8, s8, 14")
    a(f"s_lshl_b32 s9, s{oC}, 12")
    a("s_add_u32 s8, s8, s9")
    a(f"s_add_u32 s8, s8, {G.PF}")
    for T in range(4):
        for D in range(4):
            t = 32 + 4 * (4 * (T & 1) + D)
            for e in range(2):
                r = OACC + 16 * (2 * D + e) + 4 * T
                a(f"v_cvt_pk_bf16_f32 v{t + 2*e}, v{r}, v{r+1}")
                a(f"v_cvt_pk_bf16_f32 v{t + 2*e + 1}, v{r+2}, v{r+3}")
            a(f"buffer_store_dwordx4 v[{t}:{t+3}], v2, s[4:7], s8 offen offset:{D * 1024}{SC}")
        a("s_add_u32 s8, s8, 16384")
    a("s_waitcnt vmcnt(0)")
    a("s_barrier")
    a("s_lshl_b32 s8, s32, 2")
    a(f"s_add_u32 s8, s8, s{oC}")
    a(f"s_add_u32 s8, s8, {G.C_P}")
    G.signal(a, 8, 0)
    G.stamp(a, 9)
    a(f"s_mov_b32 s40, {OPP[1]}"); a(f"s_mov_b32 s41, {OPP[2]}")
    a(f"s_branch {name}_t_f")
    a.label(f"{name}_t_s")
    vm = G.VM()
    bT, bFG, bFT0, bLIM, bWSP, bREG, bZN, bIDX = 42, 43, 44, 45, 46, 47, 48, 49
    ACC, ZF, BF = 160, 64, (96, 128)
    ZF = 32; ZD = 5
    a(f"s_lshl_b32 s{bT}, s{oX}, 1")
    a(f"s_and_b32 s8, s{oC}, 1")
    a(f"s_add_u32 s{bT}, s{bT}, s8")
    a(f"s_lshr_b32 s8, s{oC}, 1")
    a("s_lshl_b32 s8, s8, 2")
    a(f"s_add_u32 s{bFG}, s8, s32")
    a(f"s_mul_i32 s{bFT0}, s{bFG}, 6")
    a(f"s_lshl_b32 s8, s{bFG}, 2")
    a("s_add_u32 s8, s8, 12")
    a(f"s_cmp_lt_u32 s{bFG}, 6")
    a(f"s_cselect_b32 s{bFT0}, s{bFT0}, s8")
    a(f"s_cmp_eq_u32 s{bFG}, 6")
    a(f"s_cselect_b32 s{bLIM}, 40, 44")
    a("s_and_b32 s8, s3, 1")
    a(f"s_add_u32 s{bFT0}, s{bFT0}, s8")
    a("v_lshrrev_b32 v4, 3, v1")
    a("v_lshlrev_b32 v4, 12, v4")
    a("v_and_b32 v5, 7, v1")
    a("v_xor_b32 v5, v5, v6")
    a("v_lshl_add_u32 v14, v5, 4, v4")
    a("v_xor_b32 v15, 64, v14")
    a("s_lshr_b32 s50, s3, 1")
    a(f"s_lshl_b32 s{bWSP}, s{bT}, 19")
    a("s_lshl_b32 s8, s50, 10")
    a(f"s_add_u32 s{bWSP}, s{bWSP}, s8")
    a("s_and_b32 s8, s3, 1")
    a("s_lshl_b32 s8, s8, 18")
    a(f"s_add_u32 s{bWSP}, s{bWSP}, s8")
    a("s_lshl_b32 s51, s50, 15")
    a("s_and_b32 s8, s3, 1")
    a("s_lshl_b32 s8, s8, 13")
    a(f"s_add_u32 s{bREG}, s51, s8")
    for j in range(3):
        a(f"s_add_u32 s9, s{bFT0}, {2 * j}")
        a("s_min_u32 s9, s9, 42")
        a("s_lshl_b32 s9, s9, 16")
        a("s_lshl_b32 s8, s50, 14")
        a("s_add_u32 s9, s9, s8")
        a(f"s_add_u32 s{52 + j}, s9, {G.Z2N}")
    a("v_and_b32 v4, 15, v1")
    a("v_lshrrev_b32 v5, 1, v4")
    a("v_xor_b32 v5, v5, v6")
    a("v_lshlrev_b32 v5, 4, v5")
    a("v_lshl_add_u32 v5, v4, 7, v5")
    a("v_add_u32 v16, s51, v5")
    a("v_xor_b32 v17, 64, v16")
    def bdma(c):
        return [[f"s_add_u32 m0, s{bREG}, {(c & 1) * 16384 + m * 1024}", f"s_add_u32 s12, s{bWSP}, {m * 32768 + c * 128}",
                 f"buffer_load_dwordx4 v{14 + (m & 1)}, s[16:19], s12 offen lds"] for m in range(8)]
    def zload(ks):
        out = []
        for j in range(3):
            r = ZF + 12 * (ks % ZD) + 4 * j
            out.append([f"s_add_u32 s12, s{52 + j}, {(ks >> 2) * 4096}",
                        f"buffer_load_dwordx4 v[{r}:{r+3}], v2, s[4:7], s12 offen offset:{(ks & 3) * 1024}{SC}"])
        return out
    def bread(ks):
        return [f"ds_read_b128 v[{BF[ks & 1] + 4*tt}:{BF[ks & 1] + 4*tt + 3}], v{16 + (ks & 1)} offset:{((ks >> 1) & 1) * 16384 + tt * 2048}" for tt in range(8)]
    a("s_waitcnt vmcnt(0) lgkmcnt(0)")
    srds()
    a("s_barrier")
    G.signal(a, oCNT, 0)
    G.stamp(a, 6)
    for g in bdma(0): emit(vm, g, ("b", 0))
    a(f"s_mov_b32 s8, {G.C_Z2N}")
    G.poll_check(a, 8, 26, 32, 8)
    for ks in range(2):
        for g in zload(ks): emit(vm, g, ("z", ks))
    for g in bdma(1): emit(vm, g, ("b", 1))
    a("v_lshlrev_b32 v10, 6, v1")
    a("buffer_load_dword v92, v10, s[28:31], 0 offen"); vm.issue("t")
    a(f"s_waitcnt vmcnt({vm.after(('b', 0))})")
    a("s_barrier")
    G.stamp(a, 7)
    for x in bread(0): a(x)
    for ks in range(2, ZD):
        for g in zload(ks): emit(vm, g, ("z", ks))
    Z1R, BSR = 44, 56
    def eload(e):
        if e == 0:
            a(f"s_mul_i32 s{bIDX}, s50, 6")
            a("v_and_b32 v10, 15, v1")
            a("v_lshlrev_b32 v10, 1, v10")
            a("v_lshlrev_b32 v11, 3, v1")
        tile_ids(e)
        a("s_mul_i32 s8, s11, 44")
        a("s_add_u32 s8, s8, s10")
        a("s_lshl_b32 s8, s8, 9")
        a(f"s_add_u32 s8, s8, {G.Z1F}")
        a("s_cmp_lt_u32 s10, 43")
        a(f"s_cselect_b32 s8, s8, {G.OOB}")
        a(f"buffer_load_dwordx2 v[{Z1R + 2*e}:{Z1R + 2*e + 1}], v11, s[4:7], s8 offen{SC}"); vm.issue("e")
        a("s_lshl_b32 s8, s11, 5")
        a(f"buffer_load_ushort v{BSR + e}, v10, s[28:31], s8 offen"); vm.issue("e")
        frag_off(G.AF_KS, G.AF + 128 * 1024)
        a("s_andn2_b32 s8, s8, 8")
        a(f"s_cmp_lt_u32 s10, s{bLIM}")
        a(f"s_cselect_b32 s{(55, 56, 57, 58, 59, 48)[e]}, s8, {G.OOB}")
    def tile_ids(e):
        a(f"s_add_u32 s8, s{bIDX}, {e}")
        a("s_lshr_b32 s9, s8, 3")
        a("s_lshl_b32 s9, s9, 1")
        a(f"s_add_u32 s10, s9, s{bFT0}")
        a("s_and_b32 s8, s8, 7")
        a(f"s_lshl_b32 s9, s{bT}, 3")
        a("s_add_u32 s11, s9, s8")
    def frag_off(stride, base):
        a(f"s_mul_i32 s8, s11, {stride}")
        a("s_lshr_b32 s9, s10, 1")
        a("s_add_u32 s8, s8, s9")
        a("s_lshl_b32 s8, s8, 10")
        a("s_and_b32 s9, s10, 1")
        a("s_lshl_b32 s9, s9, 3")
        a("s_add_u32 s8, s8, s9")
        a(f"s_add_u32 s8, s8, {base}")
    for ks in range(16):
        c = ks >> 1
        need = [("z", ks)]
        if ks & 1 and ks < 15: need.append(("b", c + 1))
        a(f"s_waitcnt vmcnt({vm.after(*need)}) lgkmcnt(0)")
        extra = []
        if ks & 1 and ks < 15:
            a("s_barrier")
            if c + 2 < 8: extra = [(g, ("b", c + 2)) for g in bdma(c + 2)]
        if ks == 12: extra = [(odma(n, SPP), "wo") for n in range(4)]
        rd = bread(ks + 1) if ks < 15 else []
        for j in range(3):
            for tt in range(8):
                acc = ACC + 4 * (8 * j + tt); r = ZF + 12 * (ks % ZD) + 4 * j; b = BF[ks & 1] + 4 * tt
                a(f"v_mfma_f32_16x16x32_bf16 v[{acc}:{acc+3}], v[{r}:{r+3}], v[{b}:{b+3}], {'0' if ks == 0 else f'v[{acc}:{acc+3}]'}")
                if extra:
                    g, tag = extra.pop(0); emit(vm, g, tag)
                elif rd: a(rd.pop(0))
            if ks + ZD < 16: emit(vm, zload(ks + ZD)[j], ("z", ks + ZD))
            if ks in (13, 14): eload(3 * (ks - 13) + j)
    G.stamp(a, 8)
    a("s_barrier")
    for n in range(4, 8): emit(vm, odma(n, SPP), "wo")
    n = 24
    for rnd, bit in enumerate((4, 2)):
        h = n // 2
        lab = f"{name}_sr{rnd}"
        a(f"s_xor_b32 s8, s3, {0 if rnd == 0 else 4}")
        a("s_mul_i32 s8, s8, 12288")
        a("v_add_u32 v12, s8, v2")
        a(f"s_xor_b32 s8, s3, {4 if rnd == 0 else 6}")
        a("s_mul_i32 s8, s8, 12288")
        a("v_add_u32 v13, s8, v2")
        a(f"s_and_b32 s9, s3, {bit}")
        a(f"s_cbranch_scc1 {lab}_hi")
        for hi in (0, 1):
            if hi: a.label(f"{lab}_hi")
            send = 0 if hi else h; keep = h if hi else 0
            for t in range(h): a(f"ds_write_b128 v12, v[{ACC + 4*(send + t)}:{ACC + 4*(send + t) + 3}] offset:{t * 1024}")
            a("s_waitcnt lgkmcnt(0)")
            a("s_barrier")
            for t in range(h): a(f"ds_read_b128 v[{ACC + 4*(send + t)}:{ACC + 4*(send + t) + 3}], v13 offset:{t * 1024}")
            for t in range(h):
                a(f"s_waitcnt lgkmcnt({h - 1 - t})")
                for q in (0, 2): a(f"v_pk_add_f32 v[{ACC + 4*t + q}:{ACC + 4*t + q + 1}], v[{ACC + 4*(keep + t) + q}:{ACC + 4*(keep + t) + q + 1}], v[{ACC + 4*(send + t) + q}:{ACC + 4*(send + t) + q + 1}]")
            if not hi: a(f"s_branch {lab}_j")
        a.label(f"{lab}_j")
        n = h
    a(f"s_waitcnt vmcnt({vm.after('e')})")
    for e in range(6):
        r = ACC + 4 * e
        a(f"v_lshlrev_b32 v{BSR + e}, 16, v{BSR + e}")
        for q in range(4): a(f"v_add_f32 v{r + q}, v{r + q}, v{BSR + e}")
        for d in range(2):
            z = Z1R + 2 * e + d
            a(f"v_lshlrev_b32 v4, 16, v{z}")
            a(f"v_and_b32 v5, 0xffff0000, v{z}")
            a(f"v_mul_f32 v4, v4, v{r + 2*d}")
            a(f"v_mul_f32 v5, v5, v{r + 2*d + 1}")
            a(f"v_cvt_pk_bf16_f32 v{z}, v4, v5")
    a("v_lshrrev_b32 v4, 1, v2")
    a("s_mul_i32 s8, s3, 12288")
    a("s_add_u32 s8, s8, 8192")
    a("v_add_u32 v5, s8, v4")
    a("s_xor_b32 s8, s3, 1")
    a("s_mul_i32 s8, s8, 12288")
    a("s_add_u32 s8, s8, 8192")
    a("v_add_u32 v6, s8, v4")
    a("s_bitcmp1_b32 s3, 0")
    a(f"s_cbranch_scc1 {name}_up1")
    for odd in (0, 1):
        if odd: a.label(f"{name}_up1")
        send = 0 if odd else 3; keep = 3 if odd else 0
        for t in range(3): a(f"ds_write_b64 v5, v[{Z1R + 2*(send + t)}:{Z1R + 2*(send + t) + 1}] offset:{t * 512}")
        a("s_waitcnt lgkmcnt(0)")
        a("s_barrier")
        for t in range(3):
            d = 64 + 4 * t
            own, oth = (d + 2, d) if odd else (d, d + 2)
            a(f"ds_read_b64 v[{oth}:{oth+1}], v6 offset:{t * 512}")
            a(f"v_mov_b32 v{own}, v{Z1R + 2*(keep + t)}")
            a(f"v_mov_b32 v{own + 1}, v{Z1R + 2*(keep + t) + 1}")
        a("s_waitcnt lgkmcnt(0)")
        for t in range(3):
            a(f"buffer_store_dwordx4 v[{64 + 4*t}:{67 + 4*t}], v2, s[4:7], s{(55, 56, 57, 58, 59, 48)[keep + t]} offen{SC}")
        if not odd: a(f"s_branch {name}_up2")
    a.label(f"{name}_up2")
    a("s_waitcnt vmcnt(0)")
    a("s_barrier")
    a(f"s_add_u32 s8, s{bT}, {G.C_U}")
    G.signal(a, 8, 0)
    G.stamp(a, 9)
    for n in range(8, 11):
        for x in odma(n, SPP): a(x)
    a(f"s_mov_b32 s40, {SPP[1]}"); a(f"s_mov_b32 s41, {SPP[2]}")
    a.label(f"{name}_t_f")
    G.stamp(a, 10)
    a(f"s_lshr_b32 s8, s{sTG}, 1")
    a(f"s_add_u32 s45, s8, {G.C_U}")
    a("s_sub_u32 s9, 15, s8")
    a("s_min_u32 s8, s8, s9")
    a("s_lshr_b32 s8, s8, 1")
    a("s_lshl_b32 s8, s8, 2")
    a(f"s_lshr_b32 s9, s{oI}, 1")
    a("s_add_u32 s8, s8, s9")
    a(f"s_add_u32 s42, s8, {G.C_P}")
    G.poll_issue(a, 45, 26)
    a(f"s_lshl_b32 s{oRT}, s{sTG}, 2")
    a("s_lshr_b32 s8, s3, 1")
    a(f"s_add_u32 s{oRT}, s{oRT}, s8")
    a(f"s_mul_i32 s43, s{oRT}, {G.AF_KS}")
    a("s_lshl_b32 s43, s43, 10")
    a(f"s_add_u32 s43, s43, {G.AF + 128 * 1024}")
    a("v_and_b32 v4, 15, v1")
    a("v_lshlrev_b32 v4, 10, v4")
    a("v_lshrrev_b32 v5, 4, v1")
    a("v_lshl_add_u32 v13, v5, 3, v4")
    a(f"s_lshl_b32 s{oOUT}, s{oRT}, 14")
    a(f"s_lshl_b32 s8, s{oI}, 7")
    a(f"s_add_u32 s{oOUT}, s{oOUT}, s8")
    a("s_and_b32 s8, s3, 1")
    a("s_lshl_b32 s8, s8, 6")
    a(f"s_add_u32 s{oOUT}, s{oOUT}, s8")
    for e in range(2):
        a(f"buffer_load_dwordx2 v[{28 + 2*e}:{29 + 2*e}], v13, s[64:67], s{oOUT} offen offset:{32 * e}")
    a("v_and_b32 v4, 15, v1")
    a("v_lshrrev_b32 v6, 2, v4")
    a("v_lshl_add_u32 v7, v5, 2, v6")
    a("v_bfe_u32 v6, v7, 1, 2")
    a("v_and_b32 v4, 3, v1")
    a("v_lshlrev_b32 v4, 3, v4")
    a("v_lshl_add_u32 v4, v7, 7, v4")
    a("s_and_b32 s8, s3, 1")
    a("s_lshl_b32 s8, s8, 1")
    for e in range(2):
        a(f"s_add_u32 s9, s8, {e}")
        a("v_xor_b32 v3, s9, v6")
        a("v_lshl_add_u32 v3, v3, 5, v4")
        a(f"v_add_u32 v{14 + e}, 0x20000, v3")
        a(f"v_add_u32 v{16 + e}, s40, v3")
        a(f"v_add_u32 v{18 + e}, s41, v3")
    a(f"s_lshl_b32 s46, s{oRT}, 14")
    a(f"s_lshl_b32 s9, s{oI}, 1")
    a("s_and_b32 s10, s3, 1")
    a("s_add_u32 s9, s9, s10")
    a("s_lshl_b32 s9, s9, 10")
    a("s_add_u32 s46, s46, s9")
    WU, FA, UF = 160, 192, 64
    def uread(ks):
        out = []
        for e in range(2):
            b = WU + 8 * (ks & 3) + 4 * e; o = (ks & 7) * 4096; v = 14 + 2 * (ks >> 3) + e
            out += [f"ds_read_b64_tr_b16 v[{b}:{b+1}], v{v} offset:{o}", f"ds_read_b64_tr_b16 v[{b+2}:{b+3}], v{v} offset:{o + 2048}"]
        return out
    for ks in range(3):
        for x in uread(ks): a(x)
    a("s_waitcnt vmcnt(0)")
    a("s_barrier")
    G.poll_check(a, 45, 26, 8)
    G.stamp(a, 11)
    G.poll_issue(a, 42, 26)
    for ks in range(22):
        if ks % 4 == 0: a(f"s_add_u32 s12, s43, {ks * 1024}")
        a(f"buffer_load_dwordx4 v[{UF + 4*ks}:{UF + 4*ks + 3}], v2, s[4:7], s12 offen offset:{(ks & 3) * 1024}{SC}")
    a("s_waitcnt vmcnt(22)")
    G.poll_check(a, 42, 26, 8)
    G.stamp(a, 12)
    for x in range(8):
        a(f"s_add_u32 s12, s46, {G.PF + x * 128 * 16384}")
        a(f"buffer_load_dwordx4 v[{200 + 4*x}:{203 + 4*x}], v2, s[4:7], s12 offen{SC}")
    for k in range(4):
        a(f"v_lshlrev_b32 v{FA + 2*k}, 16, v{28 + k}")
        a(f"v_and_b32 v{FA + 2*k + 1}, 0xffff0000, v{28 + k}")
    for ks in range(22):
        a(f"s_waitcnt vmcnt({29 - ks}) lgkmcnt({4 * min(2, 21 - ks)})")
        for e in range(2):
            b = WU + 8 * (ks & 3) + 4 * e
            a(f"v_mfma_f32_16x16x32_bf16 v[{FA + 4*e}:{FA + 4*e + 3}], v[{b}:{b+3}], v[{UF + 4*ks}:{UF + 4*ks + 3}], v[{FA + 4*e}:{FA + 4*e + 3}]")
        if ks + 3 < 22:
            for x in uread(ks + 3): a(x)
    G.stamp(a, 13)
    for x in range(8):
        a(f"s_waitcnt vmcnt({7 - x})")
        for k in range(4):
            z = 200 + 4 * x + k; r = 32 + 2 * k
            if x == 0:
                a(f"v_lshlrev_b32 v{r}, 16, v{z}")
                a(f"v_and_b32 v{r+1}, 0xffff0000, v{z}")
            else:
                a(f"v_lshlrev_b32 v4, 16, v{z}")
                a(f"v_and_b32 v5, 0xffff0000, v{z}")
                a(f"v_pk_add_f32 v[{r}:{r+1}], v[{r}:{r+1}], v[4:5]")
    for k in range(4): a(f"v_pk_add_f32 v[{FA + 2*k}:{FA + 2*k + 1}], v[{FA + 2*k}:{FA + 2*k + 1}], v[{32 + 2*k}:{33 + 2*k}]")
    G.stamp(a, 14)
    for e in range(2):
        r = FA + 4 * e
        a(f"v_cvt_pk_bf16_f32 v{28 + 2*e}, v{r}, v{r+1}")
        a(f"v_cvt_pk_bf16_f32 v{29 + 2*e}, v{r+2}, v{r+3}")
        a(f"buffer_store_dwordx2 v[{28 + 2*e}:{29 + 2*e}], v13, s[60:63], s{oOUT} offen offset:{32 * e}")
```

```python
import sys, math, struct
from asmlib import *

NAME = "parallel_sum__compressed_kv_cla__mixer_gmlp__prompt"
XNF = 0x0000000
KF  = 0x0200000
VF  = 0x1200000
AF  = 0x2200000
AF_KS = 150
Z1F = 0x3600000
Z2F = 0x3A00000
Z2N = 0x3E00000
CNTO = 0x7000000
TSO = 0x8000000
WS_BYTES = 0x10000000
OOB = 0x20000000
C_XN, C_KV, C_Z, C_Z2N, C_CTX, C_U, C_P, C_CTXS = 0, 16, 80, 88, 96, 160, 192, 224
PF = 0x4200000
STAMP = False
OPT = {}
SC = " sc1"
N = NAME + "_kernel"

sH, sI, sTILE, sR0, sZT, sN0, sNT, sU, sUC, sNI, sKSRC, sVSRC, sTHR = range(32, 45)
qWq, qWin, qL2k, qL1k, qXN = range(46, 51)
kX, kW, kL4k, kIsV, kST, kSA, kCKV, kRow = range(54, 62)

def f32(x): return "0x%08x" % struct.unpack("<I", struct.pack("<f", x))[0]
def stamp(a, i, force=False):
    if (OPT.get("astamp") or OPT.get("fstamp")) and 7 <= i <= 14 and not force: return
    if STAMP: a(f"{'s_memtime' if OPT.get('cyc') else 's_memrealtime'} s[{68 + 2*i}:{69 + 2*i}]")
def stampc(a, i):
    if STAMP: a(f"s_memtime s[{68 + 2*i}:{69 + 2*i}]")
def srd(a, d, lo, hi, nbytes):
    a(f"s_mov_b32 s{d}, s{lo}")
    a(f"s_and_b32 s{d+1}, s{hi}, 0xffff")
    a(f"s_mov_b32 s{d+2}, {nbytes:#x}")
    a(f"s_mov_b32 s{d+3}, 0x00020000")
def wave_allreduce(a, v, t, op="v_add_f32"):
    for mod in ("quad_perm:[1,0,3,2]", "quad_perm:[2,3,0,1]", "row_half_mirror", "row_mirror"):
        a(f"{op} v{v}, v{v}, v{v} {mod} row_mask:0xf bank_mask:0xf")
    for sw in ("v_permlane16_swap_b32", "v_permlane32_swap_b32"):
        a(f"v_mov_b32 v{t}, v{v}")
        a(f"{sw} v{v}, v{t}")
        a(f"{op} v{v}, v{v}, v{t}")
def pi_of(a, dst, src, tmp):
    a(f"v_lshrrev_b32 v{tmp}, 1, v{src}")
    a(f"v_mul_u32_u24 v{tmp}, 3, v{tmp}")
    a(f"v_lshlrev_b32 v{dst}, 1, v{src}")
    a(f"v_xor_b32 v{dst}, v{dst}, v{tmp}")
    a(f"v_and_b32 v{dst}, 3, v{dst}")

class VM:
    def __init__(self): self.q = []
    def issue(self, tag, n=1): self.q += [tag] * n
    def after(self, *tags):
        return min(63, min(len(self.q) - 1 - max(i for i, t in enumerate(self.q) if t == tag) for tag in tags))

def signal(a, sidx, wave, release=False):
    l = a.newlabel("sig")
    if wave is not None:
        a(f"s_cmp_lg_u32 s3, {wave}")
        a(f"s_cbranch_scc1 {l}")
    if release:
        a("buffer_wbl2 sc1")
        a("s_waitcnt vmcnt(0)")
    a(f"s_lshl_b32 s14, s{sidx}, 8")
    a(f"s_add_u32 s14, s14, {CNTO}")
    a("v_mov_b32 v8, 0")
    a("v_mov_b32 v9, 1")
    a("s_mov_b64 exec, 1")
    a("buffer_atomic_add v9, v8, s[4:7], s14 offen sc1")
    a("s_mov_b64 exec, -1")
    a.label(l)
def poll_issue(a, sidx, vdst, nshard=1):
    a(f"s_lshl_b32 s14, s{sidx}, 8")
    a(f"s_add_u32 s14, s14, {CNTO}")
    a(f"v_and_b32 v8, {nshard - 1}, v1")
    a("v_lshlrev_b32 v8, 8, v8")
    a(f"buffer_load_dword v{vdst}, v8, s[4:7], s14 offen sc1")
def poll_check(a, sidx, vdst, target, nshard=1):
    l = a.newlabel("poll"); d = a.newlabel("polld")
    a("s_mov_b32 s15, 0x20000")
    a.label(l)
    a(f"v_cmp_gt_u32 vcc, {target}, v{vdst}")
    a(f"s_cbranch_vccz {d}")
    a("s_sleep 2")
    poll_issue(a, sidx, vdst, nshard)
    a("s_waitcnt vmcnt(0)")
    a("s_sub_u32 s15, s15, 1")
    a("s_cmp_lg_u32 s15, 0")
    a(f"s_cbranch_scc1 {l}")
    a.label(d)

def kvstore(j):
    t = pk(j)
    out = [f"s_add_u32 s12, s{kST}, {(j >> 3) * 32 * 8192 + ((j >> 2) & 1) * 8192}"]
    if (j >> 1) & 1: out.append(f"s_add_u32 s12, s12, s{kSA}")
    out.append(f"buffer_store_dwordx4 v[{t}:{t+3}], v10, s[4:7], s12 offen offset:{(j & 1) * 256}{SC}")
    return out
RING = 65536; STG = 24576
QACC, ZACC, XF, WQ, QF = 192, 168, 64, 120, 112
PKE, PKL, QA = 88, 20, 52
def pk(j): return PKE + 4 * j if j < 8 else PKL + 4 * (j - 8)
XD = 3

def front(a):
    vm = VM()
    kernel_header(a, N)
    a("s_cmp_ge_u32 s2, 256")
    a(f"s_cbranch_scc1 {N}_end")
    stamp(a, 0)
    a("s_load_dwordx4 s[8:11], s[0:1], 96")
    a("s_load_dwordx4 s[24:27], s[0:1], 0")
    a("s_load_dwordx4 s[28:31], s[0:1], 24")
    a("s_load_dwordx2 s[64:65], s[0:1], 16")
    a("s_load_dwordx2 s[66:67], s[0:1], 56")
    a("v_and_b32 v1, 63, v0")
    a("v_lshrrev_b32 v2, 6, v0")
    a("v_readfirstlane_b32 s3, v2")
    a("v_lshlrev_b32 v2, 4, v1")
    a("s_and_b32 s12, s2, 7")
    a("s_lshr_b32 s13, s2, 3")
    a("s_and_b32 s62, s13, 7")
    a(f"s_bfe_u32 s{kIsV}, s13, 0x10003")
    a("s_lshr_b32 s13, s13, 4")
    a("s_lshl_b32 s63, s12, 1")
    a("s_add_u32 s63, s63, s13")
    a(f"s_add_u32 s{kCKV}, s63, {C_KV}")
    a("v_lshrrev_b32 v4, 3, v1")
    a("v_lshlrev_b32 v4, 10, v4")
    a("v_and_b32 v5, 7, v1")
    a("v_lshrrev_b32 v6, 4, v1")
    a("v_xor_b32 v5, v5, v6")
    a("v_lshl_add_u32 v10, v5, 4, v4")
    a("v_xor_b32 v11, 64, v10")
    a("v_and_b32 v5, 15, v1")
    a("v_lshrrev_b32 v4, 1, v5")
    a("v_and_b32 v5, 1, v5")
    a("s_and_b32 s12, s3, 1")
    a("s_lshl_b32 s13, s12, 2")
    a("v_or_b32 v7, s13, v6")
    a("v_xor_b32 v4, v4, v7")
    a("v_lshlrev_b32 v4, 5, v4")
    a("v_lshl_add_u32 v4, v5, 4, v4")
    a("v_lshl_add_u32 v12, v6, 13, v4")
    a("v_lshrrev_b32 v4, 5, v1")
    a("v_and_b32 v5, 31, v1")
    a("v_lshrrev_b32 v6, 1, v5")
    a("v_and_b32 v5, 1, v5")
    a("s_and_b32 s13, s3, 2")
    a("s_lshl_b32 s13, s13, 1")
    a("v_or_b32 v7, s13, v4")
    a("v_xor_b32 v6, v6, v7")
    a("v_lshlrev_b32 v6, 5, v6")
    a("v_lshl_add_u32 v6, v5, 4, v6")
    a("v_lshl_add_u32 v30, v4, 13, v6")
    a("v_xor_b32 v31, 64, v30")
    a(f"s_lshl_b32 s{kX}, s62, 7")
    a("s_and_b32 s13, s3, 3")
    a("s_lshl_b32 s13, s13, 5")
    a(f"s_add_u32 s{kX}, s{kX}, s13")
    a("s_lshr_b32 s13, s3, 2")
    a("s_lshl_b32 s13, s13, 10")
    a(f"s_add_u32 s{kX}, s{kX}, s13")
    a(f"s_lshl_b32 s{kX}, s{kX}, 10")
    a(f"s_lshl_b32 s{kW}, s3, 15")
    a("s_lshl_b32 s13, s63, 9")
    a(f"s_add_u32 s{kW}, s{kW}, s13")
    a(f"s_lshl_b32 s{kL4k}, s3, 12")
    a(f"s_lshl_b32 s{qL2k}, s3, 11")
    a(f"s_lshl_b32 s{qL1k}, s3, 10")
    a(f"s_lshl_b32 s{kRow}, s2, 3")
    a(f"s_add_u32 s{kRow}, s{kRow}, s3")
    a("s_waitcnt lgkmcnt(0)")
    if OPT.get("fstamp"): stamp(a, 7, True)
    srd(a, 16, 26, 27, 2048 * 1024)
    a("s_mov_b64 s[52:53], s[26:27]")
    a(f"s_cmp_eq_u32 s{kIsV}, 0")
    a("s_cselect_b32 s28, s28, s30")
    a("s_cselect_b32 s29, s29, s31")
    srd(a, 20, 28, 29, 512 * 8192)
    srd(a, 4, 10, 11, WS_BYTES)
    srd(a, 28, 8, 9, 256)
    srd(a, 24, 24, 25, 2048 * 1024)
    def xdma(c):
        return [[f"s_add_u32 m0, s{kL4k}, {(c % 3) * 32768 + m * 1024}", f"s_add_u32 s12, s{kX}, {m * 8192 + c * 128}",
                 f"buffer_load_dwordx4 v{10 + (m & 1)}, s[16:19], s12 offen lds"] for m in range(4)]
    def wdma(ks):
        return [[f"s_add_u32 m0, s{qL2k}, {98304 + (ks & 3) * 16384 + m * 1024}", f"s_add_u32 s12, s{kW}, {(ks * 32 + 2 * m) * 8192}",
                 f"buffer_load_dwordx4 v{30 + m}, s[20:23], s12 offen lds"] for m in range(2)]
    def emit(groups, tag):
        for g in groups:
            for s in g:
                if isinstance(s, tuple): a.label(s[1]); continue
                a(s)
                if s.startswith("buffer_") and tag != "misc": vm.issue(tag)
    emit(wdma(0), ("w0", 0)); emit(xdma(0), ("x0", 0))
    if OPT.get("fstamp"): stamp(a, 8, True)
    a(f"s_lshl_b32 s12, s{kRow}, 10")
    a("buffer_load_dwordx4 v[32:35], v2, s[24:27], s12 offen"); vm.issue("ln")
    a("s_or_b32 s12, s2, s3")
    a(f"s_cbranch_scc1 {N}_noinit")
    a("v_lshlrev_b32 v8, 8, v1")
    a("v_mov_b32 v9, 0")
    a(f"s_mov_b32 s12, {CNTO}")
    a("buffer_store_dword v9, v8, s[4:7], s12 offen sc1")
    a(f"s_mov_b32 s12, {CNTO + 64 * 256}")
    a("buffer_store_dword v9, v8, s[4:7], s12 offen sc1")
    a(f"s_mov_b32 s12, {CNTO + 128 * 256}")
    a("buffer_store_dword v9, v8, s[4:7], s12 offen sc1")
    a(f"s_mov_b32 s12, {CNTO + 192 * 256}")
    a("buffer_store_dword v9, v8, s[4:7], s12 offen sc1")
    a(f"s_mov_b32 s12, {CNTO + 256 * 256}")
    a("buffer_store_dword v9, v8, s[4:7], s12 offen sc1")
    a.label(f"{N}_noinit")
    a("s_barrier")
    emit(wdma(1), ("w0", 1))
    if not OPT.get("nocode"):
        a("s_cmp_lg_u32 s3, 7")
        a(f"s_cbranch_scc1 {N}_nocode")
        a("s_getpc_b64 s[14:15]")
        a.label(f"{N}_pc")
        a("s_lshr_b32 s12, s2, 3")
        a("s_lshl_b32 s12, s12, 13")
        a("v_lshlrev_b32 v8, 7, v1")
        a("v_add_u32 v8, s12, v8")
        a(f"v_min_u32 v8, {N}_end - {N}_pc, v8")
        a("global_load_dword v28, v8, s[14:15]")
        a.label(f"{N}_nocode")
    a("v_and_b32 v4, 15, v1")
    a("v_lshrrev_b32 v5, 4, v1")
    a("v_lshrrev_b32 v6, 1, v4")
    a("v_xor_b32 v6, v6, v5")
    a("v_lshlrev_b32 v6, 4, v6")
    a("v_lshl_add_u32 v6, v4, 7, v6")
    a("s_and_b32 s12, s3, 1")
    a("s_lshl_b32 s12, s12, 13")
    a("v_add_u32 v14, s12, v6")
    a("v_xor_b32 v15, 64, v14")
    a("v_add_u32 v16, 65536, v14")
    a("v_add_u32 v17, 65536, v15")
    a("v_lshrrev_b32 v6, 2, v4")
    a("v_and_b32 v7, 1, v5")
    a("v_lshl_or_b32 v7, v7, 2, v6")
    a("v_lshl_add_u32 v6, v5, 3, v6")
    a("v_lshlrev_b32 v6, 9, v6")
    a("v_and_b32 v3, 3, v1")
    a("v_lshl_add_u32 v6, v3, 3, v6")
    a("v_add_u32 v6, 98304, v6")
    a("s_lshr_b32 s13, s3, 1")
    a("s_lshl_b32 s12, s13, 2")
    for nt in range(4):
        a(f"s_add_u32 s14, s12, {nt}")
        a("v_xor_b32 v3, s14, v7")
        a(f"v_lshl_add_u32 v{18 + nt}, v3, 5, v6")
    a(f"s_lshl_b32 s{kST}, s63, 1")
    a("s_lshr_b32 s12, s13, 1")
    a(f"s_add_u32 s{kST}, s{kST}, s12")
    a(f"s_lshl_b32 s{kST}, s{kST}, 6")
    a("s_lshl_b32 s12, s62, 2")
    a(f"s_add_u32 s{kST}, s{kST}, s12")
    a("s_and_b32 s12, s3, 1")
    a("s_lshl_b32 s12, s12, 1")
    a(f"s_add_u32 s{kST}, s{kST}, s12")
    a(f"s_lshl_b32 s{kST}, s{kST}, 13")
    a("s_and_b32 s13, s13, 1")
    a(f"s_cmp_eq_u32 s{kIsV}, 0")
    a(f"s_movk_i32 s{kSA}, 1024")
    a(f"s_cselect_b32 s{kSA}, 2048, s{kSA}")
    a(f"s_mov_b32 s12, {VF}")
    a(f"s_cselect_b32 s12, {KF}, s12")
    a("s_cselect_b64 vcc, -1, 0")
    a(f"s_add_u32 s{kST}, s{kST}, s12")
    a(f"s_mul_i32 s12, s13, s{kSA}")
    a("s_lshl_b32 s12, s12, 1")
    a(f"s_add_u32 s{kST}, s{kST}, s12")
    a("v_and_b32 v6, 1, v5")
    a("v_lshrrev_b32 v7, 1, v5")
    a("v_lshl_add_u32 v3, v7, 5, v4")
    a("v_lshlrev_b32 v3, 4, v3")
    a("v_lshl_add_u32 v3, v6, 10, v3")
    a("v_lshl_add_u32 v27, v6, 5, v4")
    a("v_lshlrev_b32 v27, 4, v27")
    a("v_lshl_add_u32 v27, v7, 12, v27")
    a("v_cndmask_b32 v27, v27, v3, vcc")
    emit(wdma(2), ("w0", 2)); emit(xdma(1), ("x0", 1))
    a("s_and_b32 s12, s2, 7")
    a("s_lshr_b32 s13, s2, 3")
    a("s_and_b32 s14, s13, 3")
    a("s_lshl_b32 s12, s12, 2")
    a(f"s_add_u32 s{sH}, s12, s14")
    a(f"s_lshr_b32 s{sI}, s13, 2")
    a(f"s_sub_u32 s12, 15, s{sI}")
    a("s_cmp_ge_u32 s3, 4")
    a(f"s_cselect_b32 s{sTILE}, s{sI}, s12")
    a("s_and_b32 s13, s3, 3")
    a(f"s_lshl_b32 s12, s{sTILE}, 2")
    a(f"s_add_u32 s{sU}, s12, s13")
    a(f"s_lshl_b32 s{sR0}, s{sU}, 1")
    a(f"s_lshl_b32 s12, s{sI}, 1")
    a(f"s_sub_u32 s{sNT}, 32, s12")
    a(f"s_mul_i32 s{sN0}, s{sH}, 3")
    a(f"s_sub_u32 s12, s{sN0}, 2")
    a(f"s_cmp_ge_u32 s{sH}, 15")
    a(f"s_cselect_b32 s{sZT}, 1, 0")
    a(f"s_cselect_b32 s{sN0}, s12, s{sN0}")
    a(f"s_min_u32 s{sN0}, s{sN0}, 86")
    a(f"s_lshl_b32 s{qWq}, s3, 16")
    a(f"s_lshl_b32 s12, s{sH}, 8")
    a(f"s_add_u32 s{qWq}, s{qWq}, s12")
    a(f"s_mul_i32 s{qWin}, s3, {8 * 2752}")
    a(f"s_lshl_b32 s12, s{sN0}, 5")
    a(f"s_add_u32 s{qWin}, s{qWin}, s12")
    a(f"s_lshl_b32 s{qXN}, s{sR0}, 14")
    a(f"s_lshl_b32 s12, s{sH}, 19")
    a(f"s_add_u32 s{sKSRC}, s12, {KF}")
    a(f"s_add_u32 s{sVSRC}, s12, {VF - 8192}")
    a("v_lshrrev_b32 v4, 3, v1")
    a("v_and_b32 v5, 7, v1")
    a("v_lshrrev_b32 v6, 1, v5")
    a("v_and_b32 v5, 1, v5")
    a("v_bfe_u32 v7, v1, 4, 1")
    a("s_and_b32 s12, s3, 1")
    a("s_lshl_b32 s12, s12, 1")
    a("v_or_b32 v7, s12, v7")
    a("v_xor_b32 v6, v6, v7")
    a("v_lshlrev_b32 v6, 5, v6")
    a("v_lshl_add_u32 v6, v5, 4, v6")
    a("v_mul_u32_u24 v4, 2752, v4")
    a("v_add_u32 v13, v4, v6")
    if OPT.get("fstamp"): stamp(a, 9, True)
    a(f"s_waitcnt vmcnt({vm.after('ln')}) lgkmcnt(0)")
    if OPT.get("fstamp"): stamp(a, 10, True)
    for i in range(4):
        a(f"v_lshlrev_b32 v{40 + 2*i}, 16, v{32 + i}")
        a(f"v_and_b32 v{41 + 2*i}, 0xffff0000, v{32 + i}")
    a("v_add_f32 v36, v40, v41")
    for i in range(2, 8): a(f"v_add_f32 v36, v36, v{40 + i}")
    wave_allreduce(a, 36, 37)
    a(f"v_mul_f32 v36, {f32(1.0/512)}, v36")
    for i in range(8): a(f"v_sub_f32 v{40 + i}, v{40 + i}, v36")
    a("v_mul_f32 v38, v40, v40")
    for i in range(1, 8): a(f"v_fmac_f32 v38, v{40 + i}, v{40 + i}")
    wave_allreduce(a, 38, 37)
    a(f"v_mov_b32 v37, {f32(1e-5)}")
    a(f"v_fmac_f32 v37, {f32(1.0/512)}, v38")
    a("v_rsq_f32 v37, v37")
    for i in range(8): a(f"v_mul_f32 v{40 + i}, v{40 + i}, v37")
    for i in range(4): a(f"v_cvt_pk_bf16_f32 v{96 + i}, v{40 + 2*i}, v{41 + 2*i}")
    a("s_lshl_b32 s12, s3, 4")
    a("s_add_u32 s12, s12, 65536")
    a("v_lshlrev_b32 v4, 7, v1")
    a("v_add_u32 v4, s12, v4")
    a("ds_write_b128 v4, v[96:99]")
    a("v_lshrrev_b32 v5, 5, v1")
    a("v_lshlrev_b32 v5, 10, v5")
    a("v_bfe_u32 v4, v1, 3, 2")
    a("v_lshl_add_u32 v5, v4, 8, v5")
    a("v_and_b32 v4, 7, v1")
    a("v_lshl_add_u32 v3, v4, 4, v5")
    a("s_lshr_b32 s45, s2, 1")
    a("s_lshl_b32 s45, s45, 14")
    a("s_and_b32 s13, s2, 1")
    a("s_lshl_b32 s13, s13, 7")
    a("s_add_u32 s45, s45, s13")
    a("s_lshl_b32 s13, s3, 11")
    a("s_add_u32 s45, s45, s13")
    a(f"v_add_u32 v22, s{qL1k}, v2")
    a("v_add_u32 v22, 65536, v22")
    a("s_lshr_b32 s12, s2, 3")
    a("s_and_b32 s13, s2, 7")
    a("s_cmp_eq_u32 s3, 2")
    a("s_cselect_b64 s[8:9], s[66:67], s[64:65]")
    a(f"s_mov_b32 s10, {512 * 8192}")
    a(f"s_cselect_b32 s10, {512 * 2752}, s10")
    a("s_cmp_eq_u32 s3, 3")
    a("s_cselect_b64 s[8:9], s[52:53], s[8:9]")
    a(f"s_cselect_b32 s10, {2048 * 1024}, s10")
    a("s_and_b32 s9, s9, 0xffff")
    a("s_mov_b32 s11, 0x00020000")
    a("s_lshl_b32 s14, s3, 5")
    a("s_add_u32 s14, s14, s12")
    a("s_lshl_b32 s14, s14, 16")
    a("s_lshl_b32 s15, s13, 10")
    a("s_add_u32 s14, s14, s15")
    a("s_lshl_b32 s15, s13, 5")
    a("s_add_u32 s15, s15, s12")
    a("s_lshl_b32 s15, s15, 13")
    a("s_cmp_ge_u32 s3, 2")
    a("s_cselect_b32 s51, s15, s14")
    a("s_cselect_b64 vcc, -1, 0")
    a("s_lshr_b32 s15, s15, 1")
    a(f"s_or_b32 s15, s15, {1024 * 1024}")
    a("s_cmp_eq_u32 s3, 3")
    a("s_cselect_b32 s51, s15, s51")
    a("v_lshlrev_b32 v8, 7, v1")
    a("v_lshrrev_b32 v4, 3, v1")
    a("v_lshlrev_b32 v4, 13, v4")
    a("v_and_b32 v5, 7, v1")
    a("v_lshl_add_u32 v29, v5, 7, v4")
    a("v_cndmask_b32 v29, v29, v8, vcc")
    def qdma(st):
        base = RING + (st & 3) * STG
        out = []
        for m in range(2):
            out.append([f"s_add_u32 m0, s{qL2k}, {base + m * 1024}",
                        f"s_add_u32 s12, s{qWq}, {(st * 64 + 4 * m) * 8192}",
                        f"buffer_load_dwordx4 v12, s[16:19], s12 offen lds"])
        out.append([f"s_add_u32 m0, s{qL1k}, {base + 16384}",
                    f"s_add_u32 s12, s{qWin}, {st * 64 * 2752}",
                    f"buffer_load_dwordx4 v13, s[20:23], s12 offen lds"])
        return out
    def xload(ks):
        out = []
        for T in range(2):
            r = XF + 8 * (ks % XD) + 4 * T
            out.append([f"s_add_u32 s12, s{qXN}, {T * 16384 + (ks >> 2) * 4096}",
                        f"buffer_load_dwordx4 v[{r}:{r+3}], v2, s[4:7], s12 offen offset:{(ks & 3) * 1024}{SC}"])
        return out
    def pack(j, t, acc, isV):
        kt, x, y = j >> 2, (j >> 1) & 1, j & 1
        tiles = [(2 * kt + e, 2 * x + y) for e in range(2)] if isV else [(2 * kt + y, 2 * x + e) for e in range(2)]
        out = []
        for i, (rt, nt) in enumerate(tiles):
            r = acc + 16 * rt + 4 * nt
            out.append(f"v_cvt_pk_bf16_f32 v{t + 2*i}, v{r}, v{r+1}")
            out.append(f"v_cvt_pk_bf16_f32 v{t + 2*i + 1}, v{r+2}, v{r+3}")
        return out
    F2 = (32, 80)
    def kreads(ks, F):
        sl = (ks >> 1) % 3; hi = sl == 2; off = 0 if hi else sl * 32768
        xs = [f"ds_read_b128 v[{F + 4*rt}:{F + 4*rt + 3}], v{14 + 2*hi + (ks & 1)} offset:{off + (rt >> 2) * 16384 + (rt & 3) * 2048}" for rt in range(8)]
        ws = []
        for nt in range(4):
            b = F + 32 + 4 * nt
            ws.append(f"ds_read_b64_tr_b16 v[{b}:{b+1}], v{18 + nt} offset:{(ks & 3) * 16384}")
            ws.append(f"ds_read_b64_tr_b16 v[{b+2}:{b+3}], v{18 + nt} offset:{(ks & 3) * 16384 + 2048}")
        return [xs[0]] + ws + xs[1:]
    def kmfma(F, isV, first, fill):
        j = 0
        for rt in range(8):
            for nt in range(4):
                acc = 128 + 16 * rt + 4 * nt
                x = f"v[{F + 4*rt}:{F + 4*rt + 3}]"; w = f"v[{F + 32 + 4*nt}:{F + 32 + 4*nt + 3}]"
                A, B = (x, w) if isV else (w, x)
                a(f"v_mfma_f32_16x16x32_bf16 v[{acc}:{acc+3}], {A}, {B}, {'0' if first else f'v[{acc}:{acc+3}]'}")
                for grp, tag in fill.get(j, []): emit([grp], tag)
                j += 1
    if OPT.get("fstamp"): stamp(a, 11, True)
    a("s_waitcnt lgkmcnt(0)")
    a("s_barrier")
    stamp(a, 1)
    a("ds_read_b128 v[22:25], v22")
    for s in kreads(0, F2[0]): a(s)
    a(f"s_cmp_eq_u32 s{kIsV}, 0")
    a(f"s_cbranch_scc0 {N}_kv_v")
    snap = list(vm.q)
    for isV in (0, 1):
        vm.q = list(snap)
        if isV: a.label(f"{N}_kv_v")
        for ks in range(16):
            fill = {}
            def put(j, grp, tag=None): fill.setdefault(j, []).append((grp, tag))
            if ks < 15:
                a(f"s_waitcnt vmcnt({vm.after(('w0', ks + 1), ('x0', (ks + 1) >> 1))}) lgkmcnt(0)")
                a("s_barrier")
                for j, s in enumerate(kreads(ks + 1, F2[(ks + 1) & 1])): put(j, [s])
            else:
                a(f"s_waitcnt vmcnt({vm.after(('w', 0))}) lgkmcnt(0)")
                a("s_barrier")
            pos = 16
            def late(groups, tag):
                nonlocal pos
                for g in groups: put(min(pos, 31), g, tag); pos += 2
            if ks == 0:
                put(0, [f"buffer_store_dwordx4 v[22:25], v3, s[4:7], s45 offen{SC}"], "lnst")
                pos = 8; late(wdma(3), ("w0", 3)); late(xdma(2), ("x0", 2))
            if ks + 4 < 16: late(wdma(ks + 4), ("w0", ks + 4))
            c = (ks + 5) >> 1
            if ks >= 1 and c < 8: late(xdma(c)[0:2] if ks & 1 else xdma(c)[2:4], ("x0", c))
            if ks == 2:
                l = a.newlabel("flag")
                late([["s_or_b32 s12, s2, s3", f"s_cbranch_scc1 {l}", "v_mov_b32 v8, 0", "v_mov_b32 v9, 1",
                       "buffer_store_dword v9, v8, s[28:31], 0 offen sc1", ("label", l)]], "misc")
            if ks == 3 and not OPT.get("nowarm"):
                l = a.newlabel("warm")
                late([["s_cmp_ge_u32 s3, 3", f"s_cbranch_scc1 {l}", "buffer_load_dword v28, v29, s[8:11], s51 offen", ("label", l)]], "misc")
            if ks == 4: late([["v_mov_b32 v8, 0", "buffer_load_dword v26, v8, s[28:31], 0 offen sc1"]], "flag")
            if ks == 8:
                lw = a.newlabel("initw"); ld = a.newlabel("initd")
                a("s_cmp_lg_u32 s3, 0")
                a(f"s_cbranch_scc1 {ld}")
                a("s_mov_b32 s15, 0x20000")
                a.label(lw)
                a("v_cmp_eq_u32 vcc, 0, v26")
                a(f"s_cbranch_vccz {ld}")
                a("s_sleep 8")
                a("v_mov_b32 v8, 0")
                a("buffer_load_dword v26, v8, s[28:31], 0 offen sc1")
                a("s_waitcnt vmcnt(0)")
                a("s_sub_u32 s15, s15, 1")
                a("s_cmp_lg_u32 s15, 0")
                a(f"s_cbranch_scc1 {lw}")
                a.label(ld)
                a("s_lshr_b32 s13, s2, 4")
                signal(a, 13, 0)
            if ks == 12:
                srd(a, 16, 64, 65, 512 * 8192)
                srd(a, 20, 66, 67, 512 * 2752)
                a(f"s_add_u32 s13, s{sTILE}, {C_XN}")
                poll_issue(a, 13, 26); vm.issue("pxn")
                late(qdma(0), ("w", 0)); late(qdma(1), ("w", 1))
            if ks == 14: late(qdma(2), ("w", 2))
            if ks == 15:
                a(f"s_waitcnt vmcnt({vm.after('pxn')})")
                a(f"s_add_u32 s13, s{sTILE}, {C_XN}")
                poll_check(a, 13, 26, 16)
                pos = 0
                for k in range(2): late(xload(k), ("x", k))
            kmfma(F2[ks & 1], isV, ks == 0, fill)
        stamp(a, 2)
        emit(xload(2), ("x", 2))
        a("v_mov_b32 v10, v27")
        for j in range(16):
            for s in pack(j, pk(j), 128, isV): a(s)
        if not isV: a(f"s_branch {N}_kv_done")
    a.label(f"{N}_kv_done")
    a("v_and_b32 v4, 15, v1")
    a("v_lshrrev_b32 v5, 4, v1")
    a("v_lshrrev_b32 v6, 2, v4")
    a("v_and_b32 v7, 1, v5")
    a("v_lshl_or_b32 v8, v7, 2, v6")
    a("v_lshl_add_u32 v9, v5, 3, v6")
    a("v_and_b32 v4, 3, v1")
    a("v_lshlrev_b32 v4, 3, v4")
    a("v_lshl_add_u32 v3, v9, 8, v4")
    a(f"v_add_u32 v3, {RING}, v3")
    for dt in range(8):
        a(f"v_xor_b32 v63, {dt}, v8")
        a(f"v_lshl_add_u32 v{QA + dt}, v63, 5, v3")
    a("v_lshrrev_b32 v6, 1, v6")
    a("v_lshl_or_b32 v8, v7, 1, v6")
    a("v_lshl_add_u32 v3, v9, 7, v4")
    a(f"v_add_u32 v3, {RING + 16384}, v3")
    for ft in range(3):
        a(f"v_xor_b32 v63, {ft}, v8")
        a(f"v_lshl_add_u32 v{QA + 8 + ft}, v63, 5, v3")
    def qread(ks, j):
        e = ks & 1; b = WQ + 4 * j
        o, d = (e * 8192, 1024) if j < 8 else (e * 4096, 512)
        return [f"ds_read_b64_tr_b16 v[{b}:{b+1}], v{QA + j} offset:{o}",
                f"ds_read_b64_tr_b16 v[{b+2}:{b+3}], v{QA + j} offset:{o + d}"]
    def kvpre(k):
        src, tile, lds = ((sKSRC, 0, 0), (sKSRC, 1, 16384), (sVSRC, 0, 65536), (sKSRC, 2, 32768), (sVSRC, 1, 81920))[k]
        return [f"s_add_u32 m0, s{qL2k}, {lds}",
                f"s_add_u32 s12, s{src}, s{qL2k}",
                f"s_add_u32 s12, s12, {tile * 16384}"] + (["s_cmp_lt_u32 s3, 4", f"s_cselect_b32 s12, {OOB}, s12"] if k == 2 else []) + [
                f"buffer_load_dwordx4 v2, s[4:7], s12 offen{SC} lds",
                f"buffer_load_dwordx4 v2, s[4:7], s12 offen offset:1024{SC} lds"]
    stamp(a, 3)
    for j in range(11):
        for s in qread(0, j): a(s)
    st_at = {j: [2 * j, 2 * j + 1] for j in range(4)}
    for ks in range(16):
        st = ks >> 1
        need = [("x", ks)]
        if ks & 1 and ks < 15: need.append(("w", st + 1))
        if ks == 13: need.append("pkv")
        if ks == 15: need.append("kv")
        if not (OPT.get("q_novm") and ks < 13): a(f"s_waitcnt vmcnt({vm.after(*need)})")
        if ks & 1 and ks < 15:
            if not OPT.get("q_nobar"): a("s_barrier")
            d = STG if ((st + 1) & 3) else -3 * STG
            for r in range(QA, QA + 11):
                a(f"v_add_u32 v{r}, {d}, v{r}" if d > 0 else f"v_subrev_u32 v{r}, {-d}, v{r}")
        if ks == 15: a("s_barrier")
        if ks == 7: signal(a, kCKV, 0)
        if ks == 13:
            a(f"s_lshr_b32 s13, s{sH}, 1")
            a(f"s_add_u32 s13, s13, {C_KV}")
            poll_check(a, 13, 11, 16)
        extra = []
        for j in ([] if OPT.get("q_nost") else st_at.get(ks, [])): extra.append((kvstore(j), "st"))
        if ks & 1 and st + 3 < 8: extra += [(g, ("w", st + 3)) for g in qdma(st + 3)]
        if ks == 13: extra += [(kvpre(k), "kv") for k in range(5)]
        X = [f"v[{XF + 8 * (ks % XD) + 4 * T}:{XF + 8 * (ks % XD) + 4 * T + 3}]" for T in range(2)]
        pend = []
        def mm(ins):
            a(ins)
            if pend: a(pend.pop(0))
        for dt in range(8):
            if dt % 2 == 0: a(f"s_waitcnt lgkmcnt({min(15, 18 - (2 * dt if ks == 15 else (2 if dt else 0)))})")
            for T in range(2):
                acc = QACC + 8 * dt + 4 * T
                mm(f"v_mfma_f32_16x16x32_bf16 v[{acc}:{acc+3}], v[{WQ + 4*dt}:{WQ + 4*dt + 3}], {X[T]}, {'0' if ks == 0 else f'v[{acc}:{acc+3}]'}")
            if ks < 15 and not OPT.get("q_nord"): pend += qread(ks + 1, dt)
            if extra and dt >= 1:
                g, tag = extra.pop(0); emit([g], tag)
        l2 = a.newlabel("z2"); l3 = a.newlabel("zd")
        a(f"s_cmp_eq_u32 s{sZT}, 0")
        a(f"s_waitcnt lgkmcnt({14 if ks < 15 else 0})")
        a(f"s_cbranch_scc0 {l2}")
        keep = list(pend)
        for zt in range(2):
            if zt: a.label(l2)
            pend[:] = keep
            for ft in range(3):
                for T in range(2):
                    acc = ZACC + 8 * ft + 4 * T
                    w = f"v[{WQ + 32 + 4*ft}:{WQ + 32 + 4*ft + 3}]"
                    A, B = (X[T], w) if zt else (w, X[T])
                    mm(f"v_mfma_f32_16x16x32_bf16 v[{acc}:{acc+3}], {A}, {B}, {'0' if ks == 0 else f'v[{acc}:{acc+3}]'}")
                if ks < 15: pend += qread(ks + 1, 8 + ft)
            for x in pend: a(x)
            if not zt: a(f"s_branch {l3}")
        a.label(l3)
        if ks + XD < 16: emit(xload(ks + XD), ("x", ks + XD))
        if ks == 11:
            a(f"s_lshr_b32 s13, s{sH}, 1")
            a(f"s_add_u32 s13, s13, {C_KV}")
            poll_issue(a, 13, 11); vm.issue("pkv")
    stamp(a, 4)
    a.settle(8)
    c0 = -2.0 * math.sqrt(2.0 / math.pi) * math.log2(math.e); c1 = c0 * 0.044715
    for k, c in enumerate((c0, c1, 1.0)):
        a(f"v_mov_b32 v{4 + 2*k}, {f32(c)}")
        a(f"v_mov_b32 v{5 + 2*k}, {f32(c)}")
    pr = lambda r: f"v[{r}:{r+1}]"
    for grp in range(3):
        Z = ZACC + 8 * grp; T0 = 64
        for k in range(0, 8, 2): a(f"v_pk_mul_f32 {pr(T0 + k)}, {pr(Z + k)}, {pr(Z + k)}")
        for k in range(0, 8, 2): a(f"v_pk_fma_f32 {pr(T0 + k)}, {pr(T0 + k)}, v[6:7], v[4:5]")
        for k in range(0, 8, 2): a(f"v_pk_mul_f32 {pr(T0 + k)}, {pr(T0 + k)}, {pr(Z + k)}")
        for k in range(8): a(f"v_exp_f32 v{T0 + k}, v{T0 + k}")
        for k in range(0, 8, 2): a(f"v_pk_add_f32 {pr(T0 + k)}, {pr(T0 + k)}, v[8:9]")
        for k in range(8): a(f"v_rcp_f32 v{T0 + k}, v{T0 + k}")
        for k in range(0, 8, 2): a(f"v_pk_mul_f32 {pr(Z + k)}, {pr(T0 + k)}, {pr(Z + k)}")
        for T in range(2):
            r = Z + 4 * T
            a(f"v_cvt_pk_bf16_f32 v{72 + 4*grp + 2*T}, v{r}, v{r+1}")
            a(f"v_cvt_pk_bf16_f32 v{73 + 4*grp + 2*T}, v{r+2}, v{r+3}")
    a("v_and_b32 v4, 15, v1")
    a("v_lshrrev_b32 v5, 5, v1")
    a("v_lshl_add_u32 v4, v5, 4, v4")
    a("v_lshlrev_b32 v4, 4, v4")
    a("v_bfe_u32 v5, v1, 4, 1")
    a("v_lshl_add_u32 v4, v5, 3, v4")
    a("s_movk_i32 s11, 512")
    a(f"s_cmp_eq_u32 s{sZT}, 0")
    a("s_cselect_b64 vcc, -1, 0")
    a("v_lshlrev_b32 v5, 3, v1")
    a("v_cndmask_b32 v4, v4, v5, vcc")
    a("s_cselect_b32 s10, 43, 86")
    a(f"s_cselect_b32 s11, {22 * 1024}, s11")
    for ft in range(3):
        a(f"s_add_u32 s12, s{sN0}, {ft}")
        a(f"s_mul_i32 s13, s{sR0}, 44")
        a("s_add_u32 s13, s13, s12")
        a("s_lshl_b32 s13, s13, 9")
        a(f"s_add_u32 s13, s13, {Z1F}")
        a("s_sub_u32 s14, s12, 43")
        a("s_lshl_b32 s14, s14, 6")
        a(f"s_lshr_b32 s15, s{sR0}, 1")
        a("s_add_u32 s14, s14, s15")
        a("s_lshl_b32 s14, s14, 10")
        a(f"s_add_u32 s14, s14, {Z2F}")
        a(f"s_cmp_eq_u32 s{sZT}, 0")
        a("s_cselect_b32 s13, s13, s14")
        a("s_cmp_lt_u32 s12, s10")
        a(f"s_cselect_b32 s13, s13, {OOB}")
        for T in range(2):
            a(f"buffer_store_dwordx2 v[{72 + 4*ft + 2*T}:{73 + 4*ft + 2*T}], v4, s[4:7], s13 offen{SC}"); vm.issue("z")
            if T == 0: a("s_add_u32 s13, s13, s11")
    a(f"v_mov_b32 v6, {f32(128 ** -0.5 * math.log2(math.e))}")
    a("v_mov_b32 v7, v6")
    for dt in range(8):
        D, e = dt >> 1, dt & 1
        for T in range(2):
            r = QACC + 8 * dt + 4 * T
            for k in (0, 2): a(f"v_pk_mul_f32 {pr(r + k)}, {pr(r + k)}, v[6:7]")
            q = QF + (2 * D + T) * 4 + 2 * e
            a(f"v_cvt_pk_bf16_f32 v{q}, v{r}, v{r+1}")
            a(f"v_cvt_pk_bf16_f32 v{q+1}, v{r+2}, v{r+3}")
    for D in range(4):
        for k in range(4):
            a(f"v_permlane16_swap_b32 v{QF + 8*D + k}, v{QF + 8*D + 4 + k}")
    stamp(a, 5)

def finish(a, nst):
    if STAMP:
        a("s_waitcnt vmcnt(0)")
        stamp(a, nst)
        a("s_waitcnt lgkmcnt(0)")
        a("s_lshl_b32 s100, s2, 3")
        a("s_add_u32 s100, s100, s3")
        a("s_lshl_b32 s100, s100, 6")
        a(f"s_add_u32 s100, s100, {TSO}")
        a("v_mov_b32 v3, 0")
        for i in range(nst + 1):
            a(f"v_mov_b32 v2, s{68 + 2*i}")
            a(f"buffer_store_dword v2, v3, s[4:7], s100 offen offset:{4*i}")
    a.label(f"{N}_end")
    a("s_endpgm")

def build():
    import mg_attn, mg_tail
    a = Asm()
    front(a); mg_attn.attention(a); mg_tail.tail(a); finish(a, 15)
    hdr = open("cdna_kernels/" + NAME + ".s.ref").read().split("\n")
    top = [l for l in hdr if l.startswith(";") and "@launch" not in l]
    out = "\n".join(top) + "\n; @launch grid=(256,1,1) block=(512,1,1) lds=163840\n"
    out += '.amdgcn_target "amdgcn-amd-amdhsa--gfx950"\n.text\n' + a.text()
    out += '.section .rodata,"a"\n.p2align 6\n' + kernel_desc(N, 256)
    return out

def main():
    import mg as M
    if "--stamp" in sys.argv:
        M.STAMP = True; sys.argv.remove("--stamp")
    for x in list(sys.argv):
        if x.startswith("-D"):
            k, _, v = x[2:].partition("="); M.OPT[k] = int(v or 1); sys.argv.remove(x)
    txt = M.build()
    if not M.OPT.get("noalign"):
        import align
        txt, npro, nnop = align.align(txt, use_nop=bool(M.OPT.get('nop')))
        print("align: promoted", npro, "nops", nnop)
    open(sys.argv[1] if len(sys.argv) > 1 else "k.s", "w").write(txt)
```
